```python
import torch

def _softmax(x, axis=-1):
    return torch.softmax(x, dim=axis)
def _gelu(x):
    return torch.nn.functional.gelu(x, approximate="tanh")
def _silu(x):
    return torch.nn.functional.silu(x)
def _sigmoid(x):
    return torch.sigmoid(x)
def _layernorm(x, axis=-1, eps=1e-5):
    m = x.mean(dim=axis, keepdim=True)
    v = x.var(dim=axis, keepdim=True, unbiased=False)
    return (x - m) / torch.sqrt(v + eps)
def _scatter_add(tgt, idx, src, axis=0):
    return tgt.clone().index_add_(axis, idx, src)
def _segment_sum(src, seg, n):
    out = torch.zeros((n,) + src.shape[1:], dtype=src.dtype)
    return out.index_add_(0, seg, src)
def _pad(x, pw):
    flat = tuple(v for pair in reversed(pw) for v in pair)
    return torch.nn.functional.pad(x, flat)

kernel_name = 'recurrent_scan__compressed_kv_cla__swiglu_ffn__prompt'

def setup_inputs():

    _w = (lambda a: (lambda t: t.to(torch.bfloat16) if t.is_floating_point() else t)(torch.as_tensor(a)))
    def _A_setup():
        B, H, Sq, Sk, D, M = 1, 16, 2048, 2048, 256, 448
        Dc = 4 * D
        return {
            "x": _w((lambda *s: torch.randn(*s, dtype=torch.bfloat16) * 0.05)(B, Sq, M)),
            "c_kv": _w((lambda *s: torch.randn(*s, dtype=torch.bfloat16) * 0.2)(B, Sk, Dc)),
            "w_q": _w((lambda *s: torch.randn(*s, dtype=torch.bfloat16) * 3.2)(M, H, D) * (M ** -0.5)),
            "w_uk": _w((lambda *s: torch.randn(*s, dtype=torch.bfloat16) * 3.2)(Dc, H, D) * (Dc ** -0.5)),
            "w_uv": _w((lambda *s: torch.randn(*s, dtype=torch.bfloat16) * 0.2)(Dc, H, D) * (Dc ** -0.5)),
            "w_o": _w((lambda *s: torch.randn(*s, dtype=torch.bfloat16) * 0.2)(H, D, M) * ((H * D) ** -0.5)),
        }
    _A_in = _A_setup()

    def _B_setup():
        B, S, D, F = 1, 2048, 448, 1792
        return {
            "x": _w((lambda *s: torch.randn(*s, dtype=torch.bfloat16) * 0.05)(B, S, D)),
            "w_gate": _w((lambda *s: torch.randn(*s, dtype=torch.bfloat16) * 0.1)(D, F)),
            "w_up": _w((lambda *s: torch.randn(*s, dtype=torch.bfloat16) * 0.1)(D, F)),
            "w_down": _w((lambda *s: torch.randn(*s, dtype=torch.bfloat16) * 0.1)(F, D)),
        }
    _B_in = _B_setup()

    return {
        "A_x": _A_in["x"],
        "A_c_kv": _A_in["c_kv"],
        "A_w_q": _A_in["w_q"],
        "A_w_uk": _A_in["w_uk"],
        "A_w_uv": _A_in["w_uv"],
        "A_w_o": _A_in["w_o"],
        "B_x": _B_in["x"],
        "B_w_gate": _B_in["w_gate"],
        "B_w_up": _B_in["w_up"],
        "B_w_down": _B_in["w_down"],
    }

def reference(A_x, A_c_kv, A_w_q, A_w_uk, A_w_uv, A_w_o, B_x, B_w_gate, B_w_up, B_w_down):
    def _A_ref(x, c_kv, w_q, w_uk, w_uv, w_o):
        B, Sq, M = x.shape[0], x.shape[1], x.shape[2]
        Sk = c_kv.shape[1]
        H, D = w_q.shape[1], w_q.shape[2]
        q = torch.einsum("bqm,mhd->bhqd", x, w_q)
        k = torch.einsum("bkc,chd->bhkd", c_kv, w_uk)
        v = torch.einsum("bkc,chd->bhkd", c_kv, w_uv)
        scores = torch.einsum("bhqd,bhkd->bhqk", q, k) * (D ** -0.5)
        off = Sk - Sq
        qi = torch.arange(Sq)[:, None]
        kj = torch.arange(Sk)[None, :]
        cmask = kj <= (qi + off)
        scores = torch.where(cmask[None, None], scores, -1e9)
        p = _softmax(scores, axis=-1)
        ctx = torch.einsum("bhqk,bhkd->bhqd", p, v)
        return torch.einsum("bhqd,hdm->bqm", ctx, w_o)

    def _B_ref(x, w_gate, w_up, w_down):
        g = _silu(x @ w_gate)
        u = x @ w_up
        return (g * u) @ w_down

    x = A_x
    xn = _layernorm(x, axis=-1)
    s = _A_ref(xn, A_c_kv, A_w_q, A_w_uk, A_w_uv, A_w_o)
    g = _silu(_B_ref(xn, B_w_gate, B_w_up, B_w_down))
    return x + s * g
```

```python
import re

REG_RE = re.compile(r'^(-|abs\(|\|)?\s*([vas])(\d+|\[(\d+):(\d+)\])\)?\|?$')


def v(i, n=1):
    return f"v{i}" if n == 1 else f"v[{i}:{i+n-1}]"


def a(i, n=1):
    return f"a{i}" if n == 1 else f"a[{i}:{i+n-1}]"


def s(i, n=1):
    return f"s{i}" if n == 1 else f"s[{i}:{i+n-1}]"


def regs_of(tok):
    tok = tok.strip()
    if tok in ('vcc', 'vcc_lo', 'vcc_hi'):
        return [('vcc', 0)]
    if tok in ('exec', 'exec_lo', 'exec_hi'):
        return [('exec', 0)]
    if tok == 'm0':
        return [('m0', 0)]
    if tok == 'scc':
        return [('scc', 0)]
    t = tok
    if t.startswith('-'):
        t = t[1:]
    if t.startswith('abs(') and t.endswith(')'):
        t = t[4:-1]
    if t.startswith('|') and t.endswith('|'):
        t = t[1:-1]
    m = re.match(r'^([vas])(\d+)$', t)
    if m:
        return [(m.group(1), int(m.group(2)))]
    m = re.match(r'^([vas])\[(\d+):(\d+)\]$', t)
    if m:
        return [(m.group(1), i) for i in range(int(m.group(2)), int(m.group(3)) + 1)]
    return []


TRANS = ('v_exp_f32', 'v_log_f32', 'v_rcp_f32', 'v_rsq_f32', 'v_sqrt_f32', 'v_sin_f32', 'v_cos_f32',
         'v_rcp_iflag_f32')


class Ins:
    __slots__ = ('text', 'op', 'kind', 'rd', 'wr', 'tags', 'srcc', 'srcab', 'passes', 'target', 'wide_store_data',
                 'nstates', 'comment', 'addr_s')

    def __repr__(self):
        return self.text


def split_ops(rest):
    out, depth, cur = [], 0, ''
    for ch in rest:
        if ch in '[(':
            depth += 1
        if ch in '])':
            depth -= 1
        if ch == ',' and depth == 0:
            out.append(cur.strip())
            cur = ''
        else:
            cur += ch
    if cur.strip():
        out.append(cur.strip())
    return out


def parse(text, tags=()):
    I = Ins()
    I.text = text
    I.tags = tuple(tags)
    I.srcc = []
    I.srcab = []
    I.passes = 0
    I.target = None
    I.wide_store_data = []
    I.nstates = 1
    I.addr_s = []
    parts = text.split(None, 1)
    op = parts[0]
    I.op = op
    rest = parts[1] if len(parts) > 1 else ''
    ops = split_ops(rest)
    mods = ''
    if ops:
        last = ops[-1].split(None, 1)
        if len(last) > 1 and not last[0].startswith('hwreg') and not op.startswith('s_waitcnt'):
            ops[-1] = last[0]
            mods = last[1]
    R = [regs_of(o) for o in ops]
    rd, wr = [], []
    if op.startswith('v_mfma'):
        I.kind = 'mfma'
        wr = R[0]
        I.srcab = R[1] + R[2]
        I.srcc = R[3]
        rd = R[1] + R[2] + R[3]
        I.passes = 8 if '32x32x16' in op else (4 if '16x16x32' in op else None)
        assert I.passes
    elif op.startswith('buffer_load') or op.startswith('global_load'):
        if ' lds' in (' ' + mods) or 'load_lds' in op:
            I.kind = 'dma'
            for r in R:
                rd += r
            rd += [('m0', 0)]
        else:
            I.kind = 'vload'
            wr = R[0]
            for r in R[1:]:
                rd += r
        I.addr_s = [x for x in rd if x[0] == 's']
    elif op.startswith('buffer_store') or op.startswith('global_store'):
        I.kind = 'vstore'
        for r in R:
            rd += r
        data = R[0] if op.startswith('buffer') else R[1]
        if op.endswith('x4') or op.endswith('x3'):
            I.wide_store_data = data
        I.addr_s = [x for x in rd if x[0] == 's']
    elif op.startswith('buffer_atomic') or op.startswith('global_atomic'):
        I.kind = 'vatomic'
        for r in R:
            rd += r
        if 'sc0' in mods.split():
            wr = R[0]
            I.kind = 'vload'
        I.addr_s = [x for x in rd if x[0] == 's']
    elif op in ('buffer_wbl2', 'buffer_inv'):
        I.kind = 'vstore'
    elif op.startswith('ds_read') or op.startswith('ds_bpermute') or op.startswith('ds_swizzle') \
            or op.startswith('ds_permute'):
        I.kind = 'dsread'
        wr = R[0]
        for r in R[1:]:
            rd += r
    elif op.startswith('ds_write') or op.startswith('ds_add') or op.startswith('ds_max'):
        I.kind = 'dswrite'
        for r in R:
            rd += r
    elif op.startswith('s_load') or op.startswith('s_memtime') or op.startswith('s_memrealtime') \
            or op.startswith('s_buffer_load'):
        I.kind = 'smem'
        wr = R[0]
        for r in R[1:]:
            rd += r
    elif op == 's_waitcnt':
        I.kind = 'waitcnt'
    elif op == 's_nop':
        I.kind = 'nop'
        I.nstates = int(ops[0], 0) + 1
    elif op == 's_barrier':
        I.kind = 'barrier'
    elif op == 's_endpgm':
        I.kind = 'end'
    elif op == 's_branch':
        I.kind = 'branch'
        I.target = ops[0]
    elif op.startswith('s_cbranch'):
        I.kind = 'cbranch'
        I.target = ops[0]
        if 'vcc' in op:
            rd = [('vcc', 0)]
        elif 'exec' in op:
            rd = [('exec', 0)]
        else:
            rd = [('scc', 0)]
    elif op.startswith('s_'):
        I.kind = 'salu'
        if op.startswith('s_cmp') or op.startswith('s_bitcmp'):
            for r in R:
                rd += r
            wr = [('scc', 0)]
        elif op in ('s_setprio', 's_sleep', 's_setreg_imm32_b32', 's_sethalt'):
            pass
        else:
            wr = R[0] if R else []
            for r in R[1:]:
                rd += r
            if 'saveexec' in op:
                wr = wr + [('exec', 0)]
                rd += [('exec', 0)]
            if op in ('s_addk_i32', 's_mulk_i32', 's_bitset1_b32') or op.startswith('s_cmov'):
                rd += R[0]
            wr = wr + [('scc', 0)]
    elif op.startswith('v_'):
        I.kind = 'valu'
        base = op
        for suf in ('_e32', '_e64', '_dpp', '_sdwa'):
            if base.endswith(suf):
                base = base[:-len(suf)]
        if base.startswith('v_cmpx'):
            wr = R[0] + [('exec', 0)]
            for r in R[1:]:
                rd += r
        elif base.startswith('v_cmp'):
            wr = R[0]
            for r in R[1:]:
                rd += r
        elif base in ('v_add_co_u32', 'v_sub_co_u32', 'v_subrev_co_u32', 'v_addc_co_u32', 'v_subb_co_u32',
                      'v_mad_u64_u32', 'v_div_scale_f32'):
            wr = R[0] + R[1]
            for r in R[2:]:
                rd += r
        elif base.startswith('v_permlane32_swap') or base.startswith('v_permlane16_swap') or base == 'v_swap_b32':
            wr = R[0] + R[1]
            rd = R[0] + R[1]
        else:
            wr = R[0]
            for r in R[1:]:
                rd += r
            if base in ('v_fmac_f32', 'v_pk_fmac_f16', 'v_dot2c_f32_bf16', 'v_writelane_b32') or op.endswith('_dpp') \
                    or op.endswith('_sdwa'):
                rd += R[0]
            if base == 'v_div_fmas_f32':
                rd += [('vcc', 0)]
        I.op = base if not (op.endswith('_dpp')) else op
    else:
        raise ValueError('unknown op ' + text)
    I.rd = rd
    I.wr = wr
    return I


class Label:
    def __init__(self, name):
        self.name = name


class Raw:
    def __init__(self, text):
        self.text = text


class WaitTag:
    def __init__(self, tags):
        self.tags = tags


MAXD = 24


class State:
    __slots__ = ('vm', 'lg', 'smem', 'hz')

    def __init__(self):
        self.vm = {}
        self.lg = {}
        self.smem = set()
        self.hz = {}

    def copy(self):
        n = State()
        n.vm = dict(self.vm)
        n.lg = dict(self.lg)
        n.smem = set(self.smem)
        n.hz = dict(self.hz)
        return n

    def merge(self, o):
        ch = False
        for mine, other in ((self.vm, o.vm), (self.lg, o.lg), (self.hz, o.hz)):
            for k, val in other.items():
                if k not in mine or val < mine[k]:
                    mine[k] = val
                    ch = True
        if not o.smem <= self.smem:
            self.smem |= o.smem
            ch = True
        return ch


def need_states(I, st):
    need = 0
    hz = st.hz

    def chk(cls, reg, n):
        nonlocal need
        d = hz.get((cls, reg))
        if d is not None and d < n:
            need = max(need, n - d)

    k = I.kind
    isv = lambda r: r[0] in ('v', 'a')
    if k == 'mfma':
        for r in I.rd:
            chk('valu_w', r, 2)
        for r in I.srcab:
            chk('mfma8_w', r, 12)
            chk('mfma4_w', r, 8)
        for r in I.srcc:
            for cls, n, p in (('mfma8_w', 10, 8), ('mfma4_w', 6, 4)):
                d = hz.get((cls, r))
                if d is not None and d < n:
                    key = st.hz.get(('mfma_sig%d_%d_%d' % (I.passes, I.srcc[0][1], len(I.srcc)), r))
                    if not (p == I.passes and key is not None and key == d):
                        need = max(need, n - d)
        for r in I.wr:
            if r not in I.srcc:
                chk('mfma8_w', r, 10)
                chk('mfma4_w', r, 6)
        chk('valu_w', ('exec', 0), 4)
    if k == 'valu':
        for r in I.rd + I.wr:
            if isv(r):
                chk('mfma8_w', r, 12)
                chk('mfma4_w', r, 8)
        for r in I.wr:
            if isv(r):
                chk('mfma8_c', r, 7)
                chk('mfma4_c', r, 3)
                chk('wstore', r, 2)
        if I.op not in TRANS:
            for r in I.rd:
                chk('trans_w', r, 1)
        for r in I.rd:
            if r[0] in ('s', 'vcc'):
                chk('valu_w', r, 2)
        if I.op.startswith('v_permlane'):
            for r in I.rd:
                chk('valu_w', r, 2)
            chk('valu_w', ('exec', 0), 4)
        if I.op.endswith('_dpp'):
            for r in I.rd:
                chk('valu_w', r, 2)
            chk('valu_w', ('exec', 0), 5)
        if I.op.startswith('v_readlane') or I.op.startswith('v_readfirstlane') or I.op.startswith('v_writelane'):
            for r in I.rd:
                if isv(r):
                    chk('valu_w', r, 1)
                if r[0] in ('s', 'vcc'):
                    chk('valu_w', r, 4)
            chk('valu_w', ('exec', 0), 4)
        if I.op == 'v_div_fmas_f32':
            chk('valu_w', ('vcc', 0), 4)
        for r in I.rd:
            chk('sdwa_w', r, 1)
    if k in ('vload', 'vstore', 'vatomic', 'dma', 'dsread', 'dswrite'):
        for r in I.rd + I.wr:
            if isv(r):
                chk('mfma8_w', r, 12)
                chk('mfma4_w', r, 8)
        for r in I.wr:
            chk('wstore', r, 1)
            chk('mfma8_c', r, 7)
            chk('mfma4_c', r, 3)
        for r in I.addr_s:
            chk('valu_w', r, 5)
        if k == 'dma':
            chk('salu_w', ('m0', 0), 1)
    if k in ('salu', 'cbranch'):
        for r in I.rd:
            if r[0] in ('s', 'vcc'):
                chk('valu_w', r, 1)
    return need


def advance(st, n):
    dead = []
    for k in st.hz:
        st.hz[k] += n
        if st.hz[k] > MAXD:
            dead.append(k)
    for k in dead:
        del st.hz[k]


def record(I, st):
    k = I.kind
    advance(st, I.nstates)
    hz = st.hz
    if k == 'mfma':
        cls = 'mfma%d_w' % I.passes
        other = 'mfma%d_w' % (12 - I.passes)
        for r in I.wr:
            hz[(cls, r)] = 0
            hz.pop((other, r), None)
            for kk in [kk for kk in hz if kk[1] == r and kk[0].startswith('mfma_sig')]:
                del hz[kk]
            hz[('mfma_sig%d_%d_%d' % (I.passes, I.wr[0][1], len(I.wr)), r)] = 0
        for r in I.srcc:
            hz[('mfma%d_c' % I.passes, r)] = 0
    elif k == 'valu':
        for r in I.wr:
            hz[('valu_w', r)] = 0
            if I.op in TRANS:
                hz[('trans_w', r)] = 0
            else:
                hz.pop(('trans_w', r), None)
            if 'sdwa' in I.text or 'op_sel' in I.text:
                hz[('sdwa_w', r)] = 0
    elif k == 'salu':
        for r in I.wr:
            if r == ('m0', 0):
                hz[('salu_w', r)] = 0
            hz.pop(('valu_w', r), None)
    if I.wide_store_data:
        for r in I.wide_store_data:
            hz[('wstore', r)] = 0
    if k in ('vload', 'vstore', 'vatomic', 'dma'):
        for kk in st.vm:
            st.vm[kk] += 1
        for r in I.wr:
            st.vm[r] = 0
        for t in I.tags:
            st.vm[t] = 0
    elif k in ('dsread', 'dswrite'):
        for kk in st.lg:
            st.lg[kk] += 1
        for r in I.wr:
            st.lg[r] = 0
        for t in I.tags:
            st.lg[t] = 0
    elif k == 'smem':
        for r in I.wr:
            st.smem.add(r)


def apply_wait(st, vm=None, lg=None):
    if vm is not None:
        for kk in [kk for kk, ag in st.vm.items() if ag >= vm]:
            del st.vm[kk]
    if lg is not None:
        if lg == 0:
            st.smem.clear()
            st.lg.clear()
        elif not st.smem:
            for kk in [kk for kk, ag in st.lg.items() if ag >= lg]:
                del st.lg[kk]


def needed_wait(keys, st):
    vm = lg = None
    for r in keys:
        if r in st.vm:
            vm = st.vm[r] if vm is None else min(vm, st.vm[r])
        if r in st.lg:
            lg = st.lg[r] if lg is None else min(lg, st.lg[r])
        if r in st.smem:
            lg = 0
    if lg is not None and st.smem:
        lg = 0
    if vm is not None:
        vm = min(vm, 63)
    if lg is not None:
        lg = min(lg, 15)
    return vm, lg


def wait_text(vm, lg):
    t = 's_waitcnt'
    if vm is not None:
        t += f' vmcnt({vm})'
    if lg is not None:
        t += f' lgkmcnt({lg})'
    return t


class Prog:
    def __init__(self, name):
        self.name = name
        self.items = []
        self.nlab = 0

    def __call__(self, text, tags=()):
        for line in text.split('\n'):
            line = line.split(';')[0].strip()
            if not line:
                continue
            self.items.append(parse(line, tags))
        return self

    def add(self, item):
        if isinstance(item, str):
            self(item)
        elif isinstance(item, (list, tuple)):
            for x in item:
                self.add(x)
        else:
            self.items.append(item)

    def label(self, name):
        self.items.append(Label(name))

    def newlabel(self, base):
        self.nlab += 1
        return f".L{self.name}_{base}_{self.nlab}"

    def raw(self, text):
        self.items.append(Raw(text))

    def wait_tags(self, *tags):
        self.items.append(WaitTag(tags))

    def finalize(self):
        items = self.items
        labpos = {it.name: i for i, it in enumerate(items) if isinstance(it, Label)}
        instate = {}
        entry = State()
        out = None
        for it_n in range(50):
            changed = False
            out = []
            st = entry.copy()
            live = True
            for i, it in enumerate(items):
                if isinstance(it, Label):
                    if it.name in instate:
                        if live:
                            if instate[it.name].merge(st):
                                changed = True
                        st = instate[it.name].copy()
                    else:
                        if not live:
                            st = State()
                        instate[it.name] = st.copy()
                        changed = True
                    live = True
                    out.append(it.name + ':')
                    continue
                if isinstance(it, Raw):
                    out.append(it.text)
                    continue
                if isinstance(it, WaitTag):
                    vm, lg = needed_wait(it.tags, st)
                    if vm is not None or lg is not None:
                        out.append('    ' + wait_text(vm, lg))
                        apply_wait(st, vm, lg)
                        advance(st, 1)
                    continue
                I = it
                if I.kind == 'waitcnt':
                    m = re.search(r'vmcnt\((\d+)\)', I.text)
                    m2 = re.search(r'lgkmcnt\((\d+)\)', I.text)
                    apply_wait(st, int(m.group(1)) if m else None, int(m2.group(1)) if m2 else None)
                    advance(st, 1)
                    out.append('    ' + I.text)
                    continue
                vm, lg = needed_wait(I.rd + I.wr, st)
                if vm is not None or lg is not None:
                    out.append('    ' + wait_text(vm, lg))
                    apply_wait(st, vm, lg)
                    advance(st, 1)
                n = need_states(I, st)
                while n > 0:
                    c = min(n, 16)
                    out.append(f'    s_nop {c-1}')
                    advance(st, c)
                    n -= c
                out.append('    ' + I.text)
                record(I, st)
                if I.kind in ('branch', 'cbranch'):
                    t = I.target
                    assert t in labpos, t
                    if t in instate:
                        if instate[t].merge(st):
                            changed = True
                    else:
                        instate[t] = st.copy()
                        changed = True
                    if I.kind == 'branch':
                        live = False
                if I.kind == 'end':
                    live = False
            if not changed:
                break
        else:
            raise RuntimeError('no fixpoint')
        return out

    def max_regs(self):
        mv = ma = ms = -1
        for it in self.items:
            if isinstance(it, Ins):
                for r in it.rd + it.wr:
                    if r[0] == 'v':
                        mv = max(mv, r[1])
                    elif r[0] == 'a':
                        ma = max(ma, r[1])
                    elif r[0] == 's':
                        ms = max(ms, r[1])
        return mv + 1, ma + 1, ms + 1

    def kernel_text(self, min_total_vgpr=0):
        body = self.finalize()
        nv, na, ns = self.max_regs()
        acc = max(4, (nv + 3) // 4 * 4)
        nfv = acc + na if na > 0 else nv
        nfv = max(nfv, min_total_vgpr)
        assert nv <= 256 and na <= 256 and ns <= 102, (nv, na, ns)
        name = self.name
        code = [f".globl {name}", ".p2align 8", f".type {name},@function", f"{name}:"] + body
        desc = [".p2align 6", f".amdhsa_kernel {name}",
                f"  .amdhsa_next_free_vgpr {nfv}",
                f"  .amdhsa_next_free_sgpr {max(ns, 16)}",
                f"  .amdhsa_accum_offset {acc}",
                "  .amdhsa_group_segment_fixed_size 0",
                "  .amdhsa_kernarg_size 104",
                "  .amdhsa_user_sgpr_count 2",
                "  .amdhsa_user_sgpr_kernarg_segment_ptr 1",
                "  .amdhsa_system_sgpr_workgroup_id_x 1",
                "  .amdhsa_float_denorm_mode_32 3",
                ".end_amdhsa_kernel"]
        return code, desc, (nv, na, ns)


def interleave(main, fillers, start=0, per=None):
    after = {}
    for slot, it in fillers:
        after.setdefault(slot, []).append(it)
    out = list(after.get(-1, []))
    for i, m in enumerate(main):
        out.append(m)
        out += after.get(i, [])
    extra = [k for k in after if k >= len(main)]
    assert not extra, extra
    return out


def build_file(header_lines, launches, progs, path, min_vgpr=None):
    txt = []
    txt += header_lines
    for (k, g, b, lds) in launches:
        txt.append(f"; @launch kernel={k} grid=({g},1,1) block=({b},1,1) lds={lds}")
    txt.append('.amdgcn_target "amdgcn-amd-amdhsa--gfx950"')
    txt.append('.text')
    descs = []
    for p in progs:
        code, desc, n = p.kernel_text((min_vgpr or {}).get(p.name, 0))
        print(f"{p.name}: vgpr={n[0]} agpr={n[1]} sgpr={n[2]} lines={len(code)}")
        txt += code
        descs += desc
    txt.append('.Ltext_end:')
    txt.append('.section .rodata,"a"')
    txt += descs
    open(path, 'w').write('\n'.join(txt) + '\n')
```

```python
from asmlib import *

MB = 1024 * 1024
WS_K = 0
WS_V = 16 * MB
WS_CTX = 32 * MB
WS_XN = 48 * MB
WS_H = 52 * MB
KV_BYTES = 16 * MB
XN_BYTES = 64 * 28 * 1024
H_BYTES = 64 * 112 * 1024
LOG2E = 1.4426950408889634


def f2u(x):
    import struct
    return struct.unpack('<I', struct.pack('<f', x))[0]


def srd(p, d, base, nbytes):
    p(f"s_mov_b32 s{d}, s{base}")
    p(f"s_and_b32 s{d+1}, s{base+1}, 0xffff")
    p(f"s_mov_b32 s{d+2}, {nbytes}")
    p(f"s_mov_b32 s{d+3}, 0x00020000")


def srd_off(p, d, base, off, nbytes):
    p(f"s_add_u32 s{d}, s{base}, {off}")
    p(f"s_addc_u32 s{d+1}, s{base+1}, 0")
    p(f"s_and_b32 s{d+1}, s{d+1}, 0xffff")
    p(f"s_mov_b32 s{d+2}, {nbytes}")
    p(f"s_mov_b32 s{d+3}, 0x00020000")


def spread(items, lo, hi):
    n = len(items)
    out = []
    for k, it in enumerate(items):
        out.append((lo + (k * (hi - lo + 1)) // n, it))
    return out


def P(text, tags=()):
    return parse(text, tags)


def merge(main, *fills):
    f = []
    for x in fills:
        f += x
    f.sort(key=lambda t: t[0])
    return interleave(main, f)


class Stamps:
    def __init__(self, p, enable, sbase=80):
        self.p = p
        self.en = enable
        self.sb = sbase
        self.n = 0

    def start(self):
        if not self.en:
            return
        p, sb = self.p, self.sb
        p(f"s_load_dwordx2 s[{sb}:{sb+1}], s[0:1], 88")
        p(f"s_memrealtime s[{sb+2}:{sb+3}]")
        p(f"s_memtime s[{sb+4}:{sb+5}]")

    def mark(self, k):
        if not self.en:
            return
        r = self.sb + 6 + 2 * k
        self.p(f"s_memtime s[{r}:{r+1}]")
        self.p("s_waitcnt lgkmcnt(0)")

    def finish(self, sW, done, wgs, nmarks, sel='s2'):
        if not self.en:
            return
        p, sb = self.p, self.sb
        p("s_waitcnt vmcnt(0)")
        p(f"s_memtime s[{sb+18}:{sb+19}]")
        p(f"s_memrealtime s[{sb+20}:{sb+21}]")
        p("s_waitcnt lgkmcnt(0)")
        p(f"s_cmp_ge_u32 {sel}, 8")
        p(f"s_cbranch_scc1 {done}")
        p(f"s_cmp_lg_u32 s{sW}, {wgs}")
        p(f"s_cbranch_scc1 {done}")
        srd(p, 4, sb, 256)
        p(f"s_lshl_b32 s3, {sel}, 5")
        p("v_mov_b32 v2, s3")
        vals = [sb + 6 + 2 * k for k in range(6)] + [sb + 18]
        for k, r in enumerate(vals):
            if k < 6 and k >= nmarks:
                p(f"v_mov_b32 v{4+k}, 0")
                continue
            p(f"s_sub_u32 s3, s{r}, s{sb+4}")
            p(f"v_mov_b32 v{4+k}, s3")
        p(f"s_sub_u32 s3, s{sb+20}, s{sb+2}")
        p(f"v_mov_b32 v11, s3")
        p("buffer_store_dwordx4 v[4:7], v2, s[4:7], 0 offen")
        p("buffer_store_dwordx4 v[8:11], v2, s[4:7], 0 offen offset:16")
```

```python
from common import *


def ln_load(p, vLane, sW, R, sx=60):
    srd(p, sx + 4, sx, 2048 * 896)
    p(f"s_lshl_b32 s{sx+2}, s2, 2")
    p(f"s_add_u32 s{sx+2}, s{sx+2}, s{sW}")
    p(f"s_mul_i32 s{sx+3}, s{sx+2}, 1792")
    for r in range(8):
        p(f"v_mov_b32 v{R + r}, 0")
    p(f"v_lshlrev_b32 v{R + 8}, 4, v{vLane}")
    p(f"s_mov_b32 exec_hi, 0x00ffffff")
    p(f"buffer_load_dwordx4 {v(R, 4)}, v{R + 8}, s[{sx+4}:{sx+7}], s{sx+3} offen")
    p(f"buffer_load_dwordx4 {v(R + 4, 4)}, v{R + 8}, s[{sx+4}:{sx+7}], s{sx+3} offen offset:896")
    p(f"s_mov_b32 exec_hi, -1")


def wave_sum(p, regs, tmp):
    for mod in ("quad_perm:[1,0,3,2]", "quad_perm:[2,3,0,1]", "row_half_mirror", "row_mirror"):
        for r in regs:
            p(f"v_add_f32_dpp v{r}, v{r}, v{r} {mod} row_mask:0xf bank_mask:0xf")
    for op in ("v_permlane16_swap_b32", "v_permlane32_swap_b32"):
        for r, t in zip(regs, tmp):
            p(f"v_mov_b32 v{t}, v{r}")
        for r, t in zip(regs, tmp):
            p(f"{op} v{r}, v{t}")
        for r, t in zip(regs, tmp):
            p(f"v_add_f32 v{r}, v{r}, v{t}")


def ln_compute(p, vLane, R, sws, sx=60):
    X = [R + 10, R + 18]
    Sm = [R + 26, R + 27]
    Tm = [R + 28, R + 29]
    D = [R + 30, R + 38]
    Q = [R + 46, R + 47]
    for j in range(2):
        for r in range(4):
            p(f"v_lshlrev_b32 v{X[j] + 2 * r}, 16, v{R + 4 * j + r}")
            p(f"v_and_b32 v{X[j] + 2 * r + 1}, 0xffff0000, v{R + 4 * j + r}")
    for j in range(2):
        p(f"v_add_f32 v{Sm[j]}, v{X[j]}, v{X[j] + 1}")
    for r in range(2, 8):
        for j in range(2):
            p(f"v_add_f32 v{Sm[j]}, v{Sm[j]}, v{X[j] + r}")
    wave_sum(p, Sm, Tm)
    for j in range(2):
        p(f"v_mul_f32 v{Sm[j]}, {f2u(1.0 / 448)}, v{Sm[j]}")
        p(f"v_mov_b32 v{Q[j]}, 0")
    p(f"s_mov_b32 exec_hi, 0x00ffffff")
    for r in range(8):
        for j in range(2):
            p(f"v_sub_f32 v{D[j] + r}, v{X[j] + r}, v{Sm[j]}")
        for j in range(2):
            p(f"v_fmac_f32 v{Q[j]}, v{D[j] + r}, v{D[j] + r}")
    p(f"s_mov_b32 exec_hi, -1")
    wave_sum(p, Q, Tm)
    def rbf(r):
        p(f"v_cvt_pk_bf16_f32 v{r}, v{r}, v{r}")
        p(f"v_lshlrev_b32 v{r}, 16, v{r}")
    for j in range(2):
        rbf(Sm[j])
        p(f"v_mul_f32 v{Q[j]}, {f2u(1.0 / 448)}, v{Q[j]}")
        rbf(Q[j])
        p(f"v_add_f32 v{Q[j]}, {f2u(1e-5)}, v{Q[j]}")
        rbf(Q[j])
        p(f"v_sqrt_f32 v{Q[j]}, v{Q[j]}")
        rbf(Q[j])
        p(f"v_rcp_f32 v{Q[j]}, v{Q[j]}")
    for j in range(2):
        for r in range(8):
            p(f"v_sub_f32 v{D[j] + r}, v{X[j] + r}, v{Sm[j]}")
        for r in range(4):
            p(f"v_cvt_pk_bf16_f32 v{X[j] + r}, v{D[j] + 2 * r}, v{D[j] + 2 * r + 1}")
        for r in range(4):
            p(f"v_lshlrev_b32 v{D[j] + 2 * r}, 16, v{X[j] + r}")
            p(f"v_and_b32 v{D[j] + 2 * r + 1}, 0xffff0000, v{X[j] + r}")
        for r in range(8):
            p(f"v_mul_f32 v{D[j] + r}, v{D[j] + r}, v{Q[j]}")
        for r in range(4):
            p(f"v_cvt_pk_bf16_f32 v{R + 4 * j + r}, v{D[j] + 2 * r}, v{D[j] + 2 * r + 1}")
    srd_off(p, sx + 4, sws, WS_XN, XN_BYTES)
    p(f"s_lshr_b32 s{sx+3}, s{sx+2}, 4")
    p(f"s_mul_i32 s{sx+3}, s{sx+3}, 28672")
    p(f"s_and_b32 s{sx+2}, s{sx+2}, 15")
    p(f"s_lshl_b32 s{sx+2}, s{sx+2}, 5")
    p(f"s_add_u32 s{sx+3}, s{sx+3}, s{sx+2}")
    p(f"v_lshlrev_b32 v{R + 8}, 9, v{vLane}")
    p(f"s_mov_b32 exec_hi, 0x00ffffff")
    p(f"buffer_store_dwordx4 {v(R, 4)}, v{R + 8}, s[{sx+4}:{sx+7}], s{sx+3} offen")
    p(f"buffer_store_dwordx4 {v(R + 4, 4)}, v{R + 8}, s[{sx+4}:{sx+7}], s{sx+3} offen offset:16")
    p(f"s_mov_b32 exec_hi, -1")


def gen_k1(name="kvproj_kernel", NW=4, dma_pos=None, rd_pos=None, stamp=False, ln=True):
    p = Prog(name)
    assert NW in (4, 8)
    CB = 4
    WB = 4 if NW == 4 else 2
    NP = 64 // NW // 2
    NM = CB * WB
    vLane = 1
    vT = [2, 3, 4, 5, 6, 7]
    vA = [8, 9, 10, 11]
    vB = [12, 13]
    vDA = list(range(16, 16 + NP))
    vDB = list(range(24, 24 + NP))
    vSt = 14
    FR = 32
    fsz = (CB + WB) * 4
    def fC(st, i): return FR + st * fsz + i * 4
    def fW(st, j): return FR + st * fsz + CB * 4 + j * 4
    vE = FR + 2 * fsz
    def acc(ci, wi): return (ci * WB + wi) * 16
    sW, sWr, sWc, sRb, sHead, sIsV = 20, 21, 22, 23, 24, 25
    sA, sB, sM0, sKt, sT, sT2, sOut = 26, 27, 28, 29, 30, 31, 32
    sNA, sNB = 33, 34

    done = p.newlabel('done')
    p(f"s_cmp_ge_u32 s2, 256")
    p(f"s_cbranch_scc1 {done}")
    p("s_load_dwordx2 s[4:5], s[0:1], 8")
    p("s_load_dwordx4 s[36:39], s[0:1], 24")
    p("s_load_dwordx2 s[6:7], s[0:1], 96")
    p("s_load_dwordx2 s[60:61], s[0:1], 0")
    p("s_load_dwordx2 s[58:59], s[0:1], 96")
    if stamp:
        p("s_load_dwordx2 s[44:45], s[0:1], 88")
        p("s_memtime s[40:41]")
        p("s_memrealtime s[52:53]")
    p(f"v_and_b32 v{vLane}, 63, v0")
    p(f"v_lshrrev_b32 v{vT[0]}, 6, v0")
    p(f"v_readfirstlane_b32 s{sW}, v{vT[0]}")
    p(f"s_lshr_b32 s{sRb}, s2, 5")
    p(f"s_lshr_b32 s{sT}, s2, 3")
    p(f"s_and_b32 s{sT2}, s{sT}, 1")
    p(f"s_lshr_b32 s{sIsV}, s{sT}, 1")
    p(f"s_and_b32 s{sIsV}, s{sIsV}, 1")
    p(f"s_and_b32 s{sHead}, s2, 7")
    p(f"s_lshl_b32 s{sHead}, s{sHead}, 1")
    p(f"s_add_u32 s{sHead}, s{sHead}, s{sT2}")
    if NW == 4:
        p(f"s_lshr_b32 s{sWr}, s{sW}, 1")
        p(f"s_and_b32 s{sWc}, s{sW}, 1")
    else:
        p(f"s_lshr_b32 s{sWr}, s{sW}, 2")
        p(f"s_and_b32 s{sWc}, s{sW}, 3")
    i3, i7, i4 = vT[0], vT[1], vT[2]
    p(f"v_lshrrev_b32 v{i3}, 3, v{vLane}")
    p(f"v_and_b32 v{i7}, 7, v{vLane}")
    p(f"v_lshrrev_b32 v{i4}, 4, v{vLane}")
    p(f"s_lshl_b32 s{sT}, s{sW}, {14 + (3 if NP == 8 else 2)}")
    for q in range(NP):
        t = vT[3]
        p(f"v_add_u32 v{t}, {4 * (q & 1)}, v{i4}")
        p(f"v_xor_b32 v{t}, v{t}, v{i7}")
        p(f"v_lshlrev_b32 v{t}, 4, v{t}")
        p(f"v_lshl_add_u32 v{t}, v{i3}, 11, v{t}")
        p(f"v_add_u32 v{t}, s{sT}, v{t}")
        p(f"v_add_u32 v{vDA[q]}, {q * 16384 - (q & 3) * 1024}, v{t}")
    t, t2 = vT[3], vT[4]
    p(f"v_and_b32 v{t}, 2, v{i3}")
    p(f"v_lshlrev_b32 v{t}, 1, v{t}")
    p(f"v_xor_b32 v{t}, v{t}, v{i7}")
    p(f"v_lshlrev_b32 v{t}, 4, v{t}")
    p(f"v_lshl_add_u32 v{t}, v{i3}, 13, v{t}")
    if NW == 4:
        p(f"s_lshl_b32 s{sT}, s{sW}, 7")
    else:
        p(f"s_lshr_b32 s{sT}, s{sW}, 1")
        p(f"s_lshl_b32 s{sT}, s{sT}, 7")
        p(f"s_and_b32 s{sT2}, s{sW}, 1")
        p(f"s_lshl_b32 s{sT2}, s{sT2}, 18")
        p(f"s_add_u32 s{sT}, s{sT}, s{sT2}")
    p(f"v_add_u32 v{t}, s{sT}, v{t}")
    for q in range(NP):
        p(f"v_add_u32 v{vDB[q]}, {q * 65536 - (q & 3) * 1024}, v{t}")
    r, hf, f = vT[0], vT[1], vT[2]
    p(f"v_and_b32 v{r}, 31, v{vLane}")
    p(f"v_lshrrev_b32 v{hf}, 5, v{vLane}")
    p(f"v_bfe_u32 v{f}, v{vLane}, 1, 3")
    p(f"s_lshl_b32 s{sT}, s{sWr}, 14")
    for ks in range(4):
        t = vT[3]
        p(f"v_add_u32 v{t}, {2 * ks}, v{hf}")
        p(f"v_xor_b32 v{t}, v{t}, v{f}")
        p(f"v_lshlrev_b32 v{t}, 4, v{t}")
        p(f"v_lshl_add_u32 v{t}, v{r}, 7, v{t}")
        p(f"v_add_u32 v{vA[ks]}, s{sT}, v{t}")
    r4, g1, c = vT[0], vT[2], vT[3]
    p(f"v_bfe_u32 v{r4}, v{vLane}, 2, 2")
    p(f"v_bfe_u32 v{g1}, v{vLane}, 4, 1")
    p(f"v_and_b32 v{c}, 3, v{vLane}")
    t, t2 = vT[4], vT[5]
    p(f"v_lshl_add_u32 v{t}, v{hf}, 3, v{r4}")
    p(f"v_lshlrev_b32 v{t}, 7, v{t}")
    p(f"v_lshl_add_u32 v{t}, v{g1}, 5, v{t}")
    p(f"v_lshl_add_u32 v{t}, v{c}, 3, v{t}")
    p(f"s_lshl_b32 s{sT}, s{sWc}, {14 if NW == 4 else 13}")
    p(f"s_add_u32 s{sT}, s{sT}, 32768")
    p(f"v_add_u32 v{t}, s{sT}, v{t}")
    p(f"v_lshrrev_b32 v{t2}, 1, v{r4}")
    p(f"v_lshl_add_u32 v{vB[0]}, v{t2}, 6, v{t}")
    p(f"v_xor_b32 v{t2}, 1, v{t2}")
    p(f"v_lshl_add_u32 v{vB[1]}, v{t2}, 6, v{t}")
    p(f"v_lshlrev_b32 v{vSt}, 4, v{vLane}")
    if ln:
        assert NW == 4
        ln_load(p, vLane, sW, vE)
    srd(p, 8, 4, 4194304)
    p(f"s_cmp_eq_u32 s{sIsV}, 0")
    p(f"s_cselect_b32 s36, s36, s38")
    p(f"s_cselect_b32 s37, s37, s39")
    srd(p, 12, 36, 8388608)
    p(f"s_lshl_b32 s{sT}, s{sIsV}, 24")
    p(f"s_add_u32 s6, s6, s{sT}")
    p(f"s_addc_u32 s7, s7, 0")
    srd(p, 16, 6, KV_BYTES)
    p(f"s_lshl_b32 s{sA}, s{sRb}, 19")
    p(f"s_lshl_b32 s{sB}, s{sHead}, 9")
    p(f"s_lshl_b32 s{sM0}, s{sW}, {13 if NW == 4 else 12}")

    def dma_list(tag):
        L = []
        for op, vD, soff, srdn, reg in (('B', vDB, sB, 12, 32768), ('A', vDA, sA, 8, 0)):
            for q in range(NP):
                it = []
                if q % 4 == 0:
                    it.append(parse(f"s_add_u32 m0, s{sM0}, {reg + q * 1024}"))
                it.append(parse(f"buffer_load_dwordx4 v{vD[q]}, s[{srdn}:{srdn+3}], s{soff} offen "
                                f"offset:{(q & 3) * 1024} lds", tags=(tag,)))
                L.append(it)
        return L

    def next_tile():
        return [parse(f"s_add_u32 s{sA}, s{sA}, 128"), parse(f"s_add_u32 s{sB}, s{sB}, 524288"),
                parse(f"s_xor_b32 s{sM0}, s{sM0}, 0x10000")]

    def reads(st, ks):
        L = []
        cr = [parse(f"ds_read_b128 {v(fC(st, i), 4)}, v{vA[ks]} offset:{i * 4096}") for i in range(CB)]
        wr = []
        for j in range(WB):
            off = (j >> 1) * 8192 + ks * 2048
            wr.append([parse(f"ds_read_b64_tr_b16 {v(fW(st, j), 2)}, v{vB[j & 1]} offset:{off}"),
                       parse(f"ds_read_b64_tr_b16 {v(fW(st, j) + 2, 2)}, v{vB[j & 1]} offset:{off + 512}")])
        L.append(cr[0])
        for j in range(WB):
            L += wr[j]
        L += cr[1:]
        return L

    def toggle():
        return [parse(f"v_xor_b32 v{x}, 0x10000, v{x}") for x in vA + vB]

    ND = 2 * NP
    TOT = 4 * NM
    BAR = 3 * NM
    if dma_pos is None:
        dma_pos = [BAR + d * NM // ND for d in range(ND)]
    nlate = sum(1 for x in dma_pos if x >= BAR)
    for it in dma_list('t0'):
        p.add(it)
    p.add(next_tile())
    for it in dma_list('t1')[:nlate]:
        p.add(it)
    for i in range(NM * 16):
        p(f"v_accvgpr_write_b32 a{i}, 0")
    p(f"s_mov_b32 s{sKt}, 0")
    if ln:
        ln_compute(p, vLane, vE, 58)
    p.wait_tags('t0')
    p("s_barrier")
    if stamp:
        p("s_memtime s[54:55]")
        p("s_waitcnt lgkmcnt(0)")
    p.add(reads(0, 0))
    lV = p.newlabel('vpath')
    lEp = p.newlabel('epi')
    p(f"s_cmp_lg_u32 s{sIsV}, 0")
    p(f"s_cbranch_scc1 {lV}")

    def loop(isV):
        lab = p.newlabel('loop')
        p.raw(".p2align 6")
        p.label(lab)
        mf = []
        for ks in range(4):
            st = ks & 1
            for i in range(CB):
                for j in range(WB):
                    c_, w_ = v(fC(st, i), 4), v(fW(st, j), 4)
                    x, y = (c_, w_) if isV else (w_, c_)
                    mf.append(parse(f"v_mfma_f32_32x32x16_bf16 {a(acc(i, j), 16)}, {x}, {y}, {a(acc(i, j), 16)}"))
        fill = []
        nr = CB + 2 * WB
        for ks in range(4):
            rl = reads((ks + 1) & 1, (ks + 1) & 3)
            for n, it in enumerate(rl):
                pos = ks * NM + (rd_pos[n] if rd_pos else (n * (NM - NM // 4)) // nr)
                if ks == 3 and n == 0:
                    pass
                fill.append((pos, it))
        pre = [WaitTag(('t1',)), parse("s_waitcnt lgkmcnt(0)"), parse("s_barrier")] + toggle() + next_tile()
        pre += [parse(f"s_cmp_lt_u32 s{sKt}, 14"), parse(f"s_cselect_b32 s10, s10, 0"),
                parse(f"s_cselect_b32 s14, s14, 0")]
        fill = [(BAR - 1, it) for it in pre] + fill
        dl = dma_list('t1')
        for d in range(ND):
            fill.append((dma_pos[d] % TOT, dl[d]))
        fill.sort(key=lambda x: x[0])
        p.add(interleave(mf, fill))
        p(f"s_add_u32 s{sKt}, s{sKt}, 1")
        p(f"s_cmp_lt_u32 s{sKt}, 16")
        p(f"s_cbranch_scc1 {lab}")

    def epilogue(isV):
        p(f"s_lshl_b32 s{sT}, s{sHead}, 6")
        p(f"s_lshl_b32 s{sT2}, s{sRb}, 3")
        p(f"s_add_u32 s{sT}, s{sT}, s{sT2}")
        p(f"s_lshl_b32 s{sT2}, s{sWr}, 2")
        p(f"s_add_u32 s{sT}, s{sT}, s{sT2}")
        p(f"s_lshl_b32 s{sOut}, s{sT}, 14")
        p(f"s_mul_i32 s{sT2}, s{sWc}, {WB * (1024 if isV else 2048)}")
        p(f"s_add_u32 s{sOut}, s{sOut}, s{sT2}")
        n = 0
        for ci in range(CB):
            for wi in range(WB):
                for half in range(2):
                    e = vE + (n % 4) * 12
                    n += 1
                    for r in range(8):
                        p(f"v_accvgpr_read_b32 v{e + 4 + r}, a{acc(ci, wi) + half * 8 + r}")
                    for r in range(4):
                        p(f"v_cvt_pk_bf16_f32 v{e + r}, v{e + 4 + 2 * r}, v{e + 5 + 2 * r}")
                    off = ci * 16384 + ((half * 8 + wi) * 1024 if isV else (2 * wi + half) * 1024)
                    p(f"s_add_u32 s{sT}, s{sOut}, {off & ~4095}")
                    p(f"buffer_store_dwordx4 {v(e, 4)}, v{vSt}, s[16:19], s{sT} offen offset:{off & 4095}")

    loop(False)
    if stamp:
        p("s_memtime s[42:43]")
    epilogue(False)
    p(f"s_branch {lEp}")
    p.label(lV)
    loop(True)
    if stamp:
        p("s_memtime s[42:43]")
    epilogue(True)
    p.label(lEp)
    if stamp:
        p("s_waitcnt vmcnt(0)")
        p("s_memtime s[46:47]")
        p("s_memrealtime s[56:57]")
        p("s_waitcnt lgkmcnt(0)")
        p(f"s_cmp_ge_u32 s2, 16")
        p(f"s_cbranch_scc1 {done}")
        p(f"s_cmp_lg_u32 s{sW}, 0")
        p(f"s_cbranch_scc1 {done}")
        srd(p, 48, 44, 256)
        p("s_sub_u32 s42, s42, s40")
        p("s_sub_u32 s46, s46, s40")
        p("s_sub_u32 s54, s54, s40")
        p("s_sub_u32 s56, s56, s52")
        p("v_mov_b32 v4, s54")
        p("v_mov_b32 v5, s42")
        p("v_mov_b32 v6, s46")
        p("v_mov_b32 v7, s56")
        p("s_lshl_b32 s3, s2, 4")
        p("v_mov_b32 v2, s3")
        p("buffer_store_dwordx4 v[4:7], v2, s[48:51], 0 offen")
    p.label(done)
    p("s_endpgm")
    return p


if __name__ == '__main__':
    import sys
    def mk(tag, NW, **kw):
        p = gen_k1(NW=NW, stamp=True, **kw)
        build_file(["; test K1"], [("kvproj_kernel", 256, 64 * NW, 131072)], [p], f"k1_{tag}.s")
    mk('4a', 4)
    mk('4b', 4, dma_pos=[48 + 2 * d for d in range(8)] + [2 * d for d in range(8)])
    mk('4c', 4, dma_pos=[48 + 3 * d for d in range(6)] + [2 + 3 * d for d in range(10)])
    mk('8a', 8)
    mk('8b', 8, dma_pos=[24 + 2 * d for d in range(4)] + [2 * d for d in range(4)])
```

```python
from common import *

MF = "v_mfma_f32_32x32x16_bf16"
NEG_BIG = f2u(-1.0e30)
THRESH = f2u(2.0 ** 24)


def gen_k2(name="attn_kernel", stamp=False, LA=8, stamp_wave=3, stamp_sel='s2', nwg=480):
    p = Prog(name)
    st = Stamps(p, stamp)
    vLane, vL16, vL16h = 1, 2, 3
    vB = [[4, 5], [6, 7], [8, 9]]
    vDW = [10, 11, 12, 13]
    vDK = 14
    vRW, vNegM, vBig, vLs, vPs0, vPs1, vMx, vMx2, vRWu = 15, 16, 17, 18, 20, 21, 22, 23, 19
    vT = list(range(24, 56))
    vP, vC, vE, vS, vO = 56, 64, 80, [96, 112], 128
    aQ, aR, aX = 0, 64, 128
    def O(db): return vO + 16 * db
    def ring(n): return aR + 4 * (n % 16)
    sW, sIsF, sHead, sRb, sRem, sT, sT2, sT3 = 3, 36, 37, 38, 39, 40, 41, 42
    sWo, sCst, sWb, sKo, sVo, sXo, sOut = 43, 44, 45, 46, 47, 48, 49
    sSc = 50
    sMk = [52, 54, 56, 58]
    sStr = 60
    SW, SK, SV, SX, SO = 8, 12, 16, 20, 24
    rare_blocks = []

    done = p.newlabel('done')
    p(f"s_cmp_ge_u32 s2, {nwg}")
    p(f"s_cbranch_scc1 {done}")
    p("s_load_dwordx2 s[28:29], s[0:1], 16")
    p("s_load_dwordx4 s[32:35], s[0:1], 56")
    p("s_load_dwordx2 s[30:31], s[0:1], 96")
    st.start()
    p(f"v_and_b32 v{vLane}, 63, v0")
    p(f"v_lshrrev_b32 v{vT[0]}, 6, v0")
    p(f"v_readfirstlane_b32 s{sW}, v{vT[0]}")
    p(f"v_lshlrev_b32 v{vL16}, 4, v{vLane}")
    p(f"v_add_u32 v{vL16h}, 0x10000, v{vL16}")
    p(f"s_lshl_b32 s{sWb}, s{sW}, 12")
    p(f"v_add_u32 v{vDK}, s{sWb}, v{vL16}")
    lF, lJ = p.newlabel('decf'), p.newlabel('decj')
    p(f"s_cmp_ge_u32 s2, 256")
    p(f"s_cselect_b32 s{sIsF}, 1, 0")
    p(f"s_cbranch_scc1 {lF}")
    p(f"s_lshr_b32 s{sT}, s2, 3")
    p(f"s_and_b32 s{sT2}, s{sT}, 1")
    p(f"s_and_b32 s{sHead}, s2, 7")
    p(f"s_lshl_b32 s{sHead}, s{sHead}, 1")
    p(f"s_add_u32 s{sHead}, s{sHead}, s{sT2}")
    p(f"s_lshr_b32 s{sT}, s{sT}, 1")
    p(f"s_sub_u32 s{sRem}, 15, s{sT}")
    p(f"s_lshl_b32 s{sRb}, s{sRem}, 2")
    p(f"s_add_u32 s{sT3}, s{sRb}, 4")
    p(f"s_lshl_b32 s{sT3}, s{sT3}, 14")
    p(f"s_add_u32 s{sRb}, s{sRb}, s{sW}")
    p(f"s_lshl_b32 s{sT}, s{sHead}, 9")
    p(f"s_lshl_b32 s{sT2}, s{sW}, 7")
    p(f"s_add_u32 s{sT}, s{sT}, s{sT2}")
    p(f"s_mov_b32 s{sStr}, 8192")
    p(f"s_mov_b32 s{SW+2}, {448*8192}")
    p(f"s_branch {lJ}")
    p.label(lF)
    p(f"s_sub_u32 s{sT}, s2, 256")
    p(f"s_and_b32 s{sRb}, s{sT}, 15")
    p(f"s_lshl_b32 s{sRb}, s{sRb}, 2")
    p(f"s_add_u32 s{sRb}, s{sRb}, s{sW}")
    p(f"s_lshr_b32 s{sHead}, s{sT}, 4")
    p(f"s_lshl_b32 s{sT}, s{sHead}, 8")
    p(f"s_and_b32 s{sT2}, s{sW}, 1")
    p(f"s_lshl_b32 s{sT2}, s{sT2}, 7")
    p(f"s_add_u32 s{sT}, s{sT}, s{sT2}")
    p(f"s_mov_b32 s{sStr}, 3584")
    p(f"s_mov_b32 s{SW+2}, {448*3584}")
    p(f"s_mov_b32 s{sT3}, 0")
    p(f"s_mov_b32 s{sRem}, 0")
    p(f"s_cmp_lt_u32 s{sW}, 2")
    p(f"s_cselect_b32 s28, s32, s34")
    p(f"s_cselect_b32 s29, s33, s35")
    p.label(lJ)
    p(f"s_mov_b32 s{SW}, s28")
    p(f"s_and_b32 s{SW+1}, s29, 0xffff")
    p(f"s_mov_b32 s{SW+3}, 0x00020000")
    srd_off(p, SX, 30, WS_XN, XN_BYTES)
    p(f"s_mul_i32 s{sXo}, s{sRb}, {28*1024}")
    i3, i7, t = vT[0], vT[1], vT[2]
    p(f"v_lshrrev_b32 v{i3}, 3, v{vLane}")
    p(f"v_and_b32 v{i7}, 7, v{vLane}")
    p(f"v_and_b32 v{t}, 2, v{i3}")
    p(f"v_lshlrev_b32 v{t}, 1, v{t}")
    p(f"v_xor_b32 v{t}, v{t}, v{i7}")
    p(f"v_lshlrev_b32 v{t}, 4, v{t}")
    p(f"v_add_u32 v{t}, s{sT}, v{t}")
    p(f"v_mad_u32_u24 v{vDW[0]}, v{i3}, s{sStr}, v{t}")
    p(f"s_lshl_b32 s{sT2}, s{sStr}, 3")
    p(f"s_sub_u32 s{sT2}, s{sT2}, 1024")
    for q in range(1, 4):
        p(f"v_add_u32 v{vDW[q]}, s{sT2}, v{vDW[q-1]}")
    p(f"s_lshl_b32 s{sCst}, s{sStr}, 5")
    p(f"s_mov_b32 s{sWo}, 0")

    def xn_load(ks):
        L = []
        if ks % 4 == 0 and ks > 0:
            L.append(P(f"s_add_u32 s{sXo}, s{sXo}, 4096"))
        L.append(P(f"buffer_load_dwordx4 {a(aX + 4 * ks, 4)}, v{vL16}, s[{SX}:{SX+3}], s{sXo} offen offset:{(ks & 3) * 1024}"))
        return L

    def w_dma(slot):
        L = []
        for q in range(4):
            it = []
            if q == 0:
                it.append(P(f"s_add_u32 m0, s{sWb}, {slot * 16384}"))
            it.append(P(f"buffer_load_dwordx4 v{vDW[q]}, s[{SW}:{SW+3}], s{sWo} offen offset:{q * 1024} lds",
                        tags=(f"L{slot}",)))
            if q == 3:
                it.append(P(f"s_add_u32 s{sWo}, s{sWo}, s{sCst}"))
            L.append(it)
        return L

    def kv_dma(isV, tile):
        slot = (4 if isV else 0) + tile % 4
        so, sr = (sVo, SV) if isV else (sKo, SK)
        L = []
        for q in range(4):
            it = []
            if q == 0:
                it.append(P(f"s_add_u32 m0, s{sWb}, {slot * 16384}"))
            it.append(P(f"buffer_load_dwordx4 v{vDK}, s[{sr}:{sr+3}], s{so} offen offset:{q * 1024} lds",
                        tags=(f"L{slot}",)))
            if q == 3:
                it.append(P(f"s_add_u32 s{so}, s{so}, 16384"))
            L.append(it)
        return L

    PAIRS = [(6, 7), (8, 9), (0, 1), (4, 2), (5, 3), (6, 7), (8, 9)]
    for ks in range(4):
        p.add(xn_load(ks))
    p.add(w_dma(6))
    p.add(w_dma(7))
    for ks in range(4, 8):
        p.add(xn_load(ks))
    p.add(w_dma(8))
    p.add(w_dma(9))
    for s_ in range(2, 5):
        for ks in range(4 * s_, 4 * s_ + 4):
            p.add(xn_load(ks))
        p.add(w_dma(PAIRS[s_][0]))
        p.add(w_dma(PAIRS[s_][1]))
    p(f"s_lshl_b32 s{sT}, s{sHead}, 20")
    srd_off(p, SK, 30, f"s{sT}", f"s{sT3}")
    p(f"s_add_u32 s{sT}, s{sT}, {WS_V}")
    srd_off(p, SV, 30, f"s{sT}", f"s{sT3}")
    p(f"s_mov_b32 s{sKo}, 0")
    p(f"s_mov_b32 s{sVo}, 0")
    hf, r4, g1, c, t2 = vT[0], vT[1], vT[3], vT[4], vT[5]
    p(f"v_lshrrev_b32 v{hf}, 5, v{vLane}")
    p(f"v_bfe_u32 v{r4}, v{vLane}, 2, 2")
    p(f"v_bfe_u32 v{g1}, v{vLane}, 4, 1")
    p(f"v_and_b32 v{c}, 3, v{vLane}")
    p(f"v_lshl_add_u32 v{t}, v{hf}, 3, v{r4}")
    p(f"v_lshlrev_b32 v{t}, 7, v{t}")
    p(f"v_lshl_add_u32 v{t}, v{g1}, 5, v{t}")
    p(f"v_lshl_add_u32 v{t}, v{c}, 3, v{t}")
    p(f"v_lshrrev_b32 v{t2}, 1, v{r4}")
    p(f"v_lshl_add_u32 v{vB[0][0]}, v{t2}, 6, v{t}")
    p(f"v_xor_b32 v{t2}, 1, v{t2}")
    p(f"v_lshl_add_u32 v{vB[0][1]}, v{t2}, 6, v{t}")
    for b in (1, 2):
        for n in (0, 1):
            p(f"v_add_u32 v{vB[b][n]}, {b * 65536}, v{vB[0][n]}")
    p(f"v_and_b32 v{t}, 31, v{vLane}")
    p(f"v_lshlrev_b32 v{t2}, 2, v{hf}")
    p(f"v_sub_u32 v{t}, v{t}, v{t2}")
    p(f"s_lshl_b32 s{sT}, s{sW}, 5")
    p(f"v_add_u32 v{vRW}, s{sT}, v{t}")
    p(f"v_mov_b32 v{vNegM}, 0")
    p(f"v_mov_b32 v{vBig}, {NEG_BIG}")
    p(f"v_mov_b32 v{vLs}, 0")
    for r in range(16):
        p(f"v_mov_b32 v{vC + r}, 0")
    p(f"s_mov_b32 s{sSc}, {f2u(LOG2E / 16)}")
    p(f"s_mov_b32 s{sSc+1}, {f2u(LOG2E / 16)}")

    DBO = [0, 4, 1, 5, 2, 6, 3, 7]

    def proj_step(s_):
        L = []
        order = [(ks, db) for ks in range(4) for db in range(8)] if s_ < 6 else \
                [(ks, db) for db in DBO for ks in range(4)]
        for n, (ks, db) in enumerate(order):
            slot = PAIRS[s_][ks >> 1]
            off = (slot % 4) * 16384 + (db >> 1) * 4096 + (ks & 1) * 2048
            ad = vB[slot // 4][db & 1]
            rd = [P(f"ds_read_b64_tr_b16 {a(ring(n), 2)}, v{ad} offset:{off}"),
                  P(f"ds_read_b64_tr_b16 {a(ring(n) + 2, 2)}, v{ad} offset:{off + 512}")]
            gk = 4 * s_ + ks
            cin = "0" if gk == 0 else v(O(db), 16)
            L.append((P(f"{MF} {v(O(db), 16)}, {a(ring(n), 4)}, {a(aX + 4 * gk, 4)}, {cin}"), rd))
        return L

    def qk(tile, n0, order=None):
        L = []
        S = vS[tile % 2]
        for n, ds in enumerate(order or range(16)):
            rd = [P(f"ds_read_b128 {a(ring(n0 + n), 4)}, v{vL16} offset:{(tile % 4) * 16384 + ds * 1024}")]
            cin = v(vC, 16) if n == 0 else v(S, 16)
            L.append((P(f"{MF} {v(S, 16)}, {a(ring(n0 + n), 4)}, {a(aQ + 4 * ds, 4)}, {cin}"), rd))
        return L

    def pv(tile, first=False):
        L = []
        n = 0
        for db in range(8):
            for h in range(2):
                rd = [P(f"ds_read_b128 {a(ring(n), 4)}, v{vL16h} offset:{(tile % 4) * 16384 + (h * 8 + db) * 1024}")]
                cin = "0" if (first and h == 0) else v(O(db), 16)
                L.append((P(f"{MF} {v(O(db), 16)}, {a(ring(n), 4)}, {v(vP + 4 * h, 4)}, {cin}"), rd))
                n += 1
        return L

    def emit(seg, nxt, bar_tags, fills):
        N = len(seg)
        f = []
        for n in range(LA, N):
            f.append((n - LA, seg[n][1]))
        if nxt is not None:
            if bar_tags is not None:
                f.append((N - LA, [WaitTag(tuple(bar_tags)), P("s_barrier")]))
            for n in range(LA):
                f.append((N - LA + n, nxt[n][1]))
        p.add(merge([m for m, _ in seg], f, fills))

    def qpack(db):
        L = []
        for h in range(2):
            tb = vT[(2 * (db & 1) + h) * 4]
            o = O(db) + 8 * h
            for r in range(4):
                L.append(P(f"v_pk_mul_f32 {v(o + 2 * r, 2)}, {v(o + 2 * r, 2)}, s[{sSc}:{sSc+1}]"))
            for r in range(4):
                L.append(P(f"v_cvt_pk_bf16_f32 v{tb + r}, v{o + 2 * r}, v{o + 2 * r + 1}"))
            for r in range(4):
                L.append(P(f"v_accvgpr_write_b32 a{aQ + 4 * (2 * db + h) + r}, v{tb + r}"))
        return L

    def maskchk(u):
        lm, lr = p.newlabel('mask'), p.newlabel('maskr')
        blk = [Label(lm), P(f"v_subrev_u32 v{vRWu}, {32 * u}, v{vRW}")]
        for r0 in range(0, 16, 4):
            for r in range(r0, r0 + 4):
                blk.append(P(f"v_cmp_gt_i32 s[{sMk[r % 4]}:{sMk[r % 4]+1}], {(r & 3) + 8 * (r >> 2)}, v{vRWu}"))
            for r in range(r0, r0 + 4):
                blk.append(P(f"v_cndmask_b32 v{vC + r}, v{vNegM}, v{vBig}, s[{sMk[r % 4]}:{sMk[r % 4]+1}]"))
        blk.append(P(f"s_branch {lr}"))
        rare_blocks.append(blk)
        return [P(f"s_cmp_eq_u32 s{sRem}, 0"), P(f"s_cbranch_scc1 {lm}"), Label(lr)]

    def rowmax(S):
        L = [P(f"v_max3_f32 v{vMx}, v{S}, v{S+1}, v{S+2}"), P(f"v_max3_f32 v{vMx2}, v{S+3}, v{S+4}, v{S+5}")]
        for k in range(6, 14, 4):
            L.append(P(f"v_max3_f32 v{vMx}, v{vMx}, v{S+k}, v{S+k+1}"))
            L.append(P(f"v_max3_f32 v{vMx2}, v{vMx2}, v{S+k+2}, v{S+k+3}"))
        L.append(P(f"v_max3_f32 v{vMx}, v{vMx}, v{S+14}, v{S+15}"))
        L.append(P(f"v_max_f32 v{vMx}, v{vMx}, v{vMx2}"))
        L.append(P(f"v_mov_b32 v{vMx2}, v{vMx}"))
        L.append(P(f"v_permlane32_swap_b32 v{vMx}, v{vMx2}"))
        L.append(P(f"v_max_f32 v{vMx}, v{vMx}, v{vMx2}"))
        return L

    def exps(S, sub=False):
        G = []
        for r in range(16):
            g = []
            if sub:
                g.append(P(f"v_sub_f32 v{vE + r}, v{S + r}, v{vMx}"))
                g.append(P(f"v_exp_f32 v{vE + r}, v{vE + r}"))
            else:
                g.append(P(f"v_exp_f32 v{vE + r}, v{S + r}"))
            if r == 3:
                g.append(P(f"v_add_f32 v{vPs0}, v{vE}, v{vE + 1}"))
            elif r == 4:
                g.append(P(f"v_add_f32 v{vPs1}, v{vE + 2}, v{vE + 3}"))
            elif r > 4:
                g.append(P(f"v_add_f32 v{vPs0 + (r & 1)}, v{vPs0 + (r & 1)}, v{vE + r - 1}"))
            G.append(g)
        G.append([P(f"v_add_f32 v{vPs0}, v{vPs0}, v{vE + 15}"), P(f"v_add_f32 v{vPs0}, v{vPs0}, v{vPs1}")])
        return G

    def cvts():
        return [P(f"v_cvt_pk_bf16_f32 v{vP + r}, v{vE + 2 * r}, v{vE + 2 * r + 1}") for r in range(8)]

    def check(tile, has_qk):
        lm, lr = p.newlabel('rare'), p.newlabel('rarer')
        S, Sn = vS[tile % 2], vS[(tile + 1) % 2]
        blk = [Label(lm)] + rowmax(S)
        blk.append(P(f"v_max_f32 v{vMx}, 0, v{vMx}"))
        blk.append(P(f"v_exp_f32 v{vMx2}, -v{vMx}"))
        blk.append(P(f"v_sub_f32 v{vNegM}, v{vNegM}, v{vMx}"))
        blk.append(P(f"v_mul_f32 v{vLs}, v{vLs}, v{vMx2}"))
        for r in range(128):
            blk.append(P(f"v_mul_f32 v{vO + r}, v{vO + r}, v{vMx2}"))
        for r in range(16):
            blk.append(P(f"v_sub_f32 v{vC + r}, v{vC + r}, v{vMx}"))
            if has_qk:
                blk.append(P(f"v_sub_f32 v{Sn + r}, v{Sn + r}, v{vMx}"))
        for g in exps(S, sub=True):
            blk += g
        blk.append(P(f"s_branch {lr}"))
        rare_blocks.append(blk)
        return [P(f"v_cmp_nge_f32 vcc, {THRESH}, v{vPs0}"), P(f"s_cbranch_vccnz {lm}"), Label(lr),
                P(f"v_add_f32 v{vLs}, v{vLs}, v{vPs0}")]

    steps = [proj_step(s_) for s_ in range(7)]
    p.wait_tags("L6", "L7")
    p("s_barrier")
    st.mark(0)
    for n in range(LA):
        p.add(steps[0][n][1])
    W5 = w_dma(6) + w_dma(7)
    W6 = w_dma(8) + w_dma(9)
    win = {2: W5, 3: W6, 4: kv_dma(0, 0) + kv_dma(0, 1), 5: kv_dma(1, 0) + kv_dma(0, 2),
           6: kv_dma(1, 1) + kv_dma(0, 3), 7: kv_dma(1, 2) + kv_dma(1, 3)}
    late = [25, 28, 31]
    early = [2, 6, 10, 14, 18]

    def win_fill(s_):
        f = []
        if s_ in win:
            f += list(zip(early, win[s_][3:]))
        if s_ + 1 in win:
            f += list(zip(late, win[s_ + 1][:3]))
        return f

    for s_ in range(6):
        f = win_fill(s_)
        if s_ in (0, 1):
            f += [(4 * k + 1, xn_load(20 + 4 * s_ + k)) for k in range(4)]
        emit(steps[s_], steps[s_ + 1], [f"L{x}" for x in PAIRS[s_ + 1]], f)
    lFFN = p.newlabel('ffn')
    p(f"s_cmp_lg_u32 s{sIsF}, 0")
    p(f"s_cbranch_scc1 {lFFN}")
    dso = [2 * db + h for db in DBO for h in range(2)]
    phA = qk(0, 0, dso)
    f = win_fill(6)
    for k in range(6):
        f += spread(qpack(DBO[k]), 4 * k + 7, 4 * k + 10)
    f += [(27, maskchk(0))]
    emit(steps[6], phA, ["L0"], f)
    st.mark(1)
    ph0 = qk(1, 0)
    f = spread(qpack(DBO[6]), 0, 3) + spread(qpack(DBO[7]), 4, 8) + list(zip([1, 4, 7, 10, 13], win[7][3:]))
    emit(phA, ph0, ["L1"], f)
    def full(t, first=False):
        return pv(t - 1, first) + qk(t + 1, 16)
    p.add(rowmax(vS[0]))
    p(f"v_sub_f32 v{vNegM}, 0, v{vMx}")
    for r in range(16):
        p(f"v_mov_b32 v{vC + r}, v{vNegM}")
    p.add(maskchk(1))
    ph1 = full(1, True)
    f = spread(exps(vS[0], sub=True), 0, 9) + [(10, P(f"v_add_f32 v{vLs}, v{vLs}, v{vPs0}"))] + \
        spread(cvts(), 10, 13) + list(zip([9, 11, 13, 15], kv_dma(0, 4)))
    emit(ph0, ph1, ["L4", "L2"], f)

    def std_fill(t, has_qk=True, vdma=True, kdma=True):
        f = spread(exps(vS[t % 2]), 3, 14)
        if has_qk:
            f += [(15, maskchk((t + 1) % 4))]
            f += [(16, check(t, True))]
            f += spread(cvts(), 18, 26)
            if vdma:
                f += list(zip([17, 19, 21, 23], kv_dma(1, t + 2)))
            if kdma:
                f += list(zip([25, 27, 29, 31], kv_dma(0, t + 4)))
        return f

    def btags(t):
        return [f"L{4 + (t - 1) % 4}", f"L{(t + 1) % 4}"]

    emit(ph1, full(2), btags(2), std_fill(1, vdma=False))
    emit(full(2), full(3), btags(3), std_fill(2))
    st.mark(2)
    lTail, lLoop = p.newlabel('tail'), p.newlabel('loop')
    p(f"s_cmp_eq_u32 s{sRem}, 0")
    p(f"s_cbranch_scc1 {lTail}")
    p.raw(".p2align 6")
    p.label(lLoop)
    p(f"s_sub_u32 s{sRem}, s{sRem}, 1")
    for t in (3, 4, 5, 6):
        emit(full(t), full(t + 1), btags(t + 1), std_fill(t))
    p(f"s_cmp_lg_u32 s{sRem}, 0")
    p(f"s_cbranch_scc1 {lLoop}")
    p.label(lTail)
    st.mark(3)
    phD, phE = pv(2), pv(3)
    srd_off(p, SO, 30, WS_CTX, 16 * MB)
    p(f"s_lshl_b32 s{sOut}, s{sRb}, 18")
    p(f"s_lshl_b32 s{sT}, s{sHead}, 14")
    p(f"s_add_u32 s{sOut}, s{sOut}, s{sT}")
    f = spread(exps(vS[1]), 3, 14) + [(15, check(3, False))] + [(15, cvts())]
    emit(phD, phE, ["L7"], f)
    vInv = vMx
    pre = [P(f"v_mov_b32 v{vMx2}, v{vLs}"), P(f"v_permlane32_swap_b32 v{vLs}, v{vMx2}"),
           P(f"v_add_f32 v{vLs}, v{vLs}, v{vMx2}"), P(f"v_rcp_f32 v{vInv}, v{vLs}"),
           P(f"v_mov_b32 v{vInv + 1}, v{vInv}")]

    def opack(db):
        L = []
        for h in range(2):
            tb = vT[(2 * (db & 3) + h) * 4]
            o = O(db) + 8 * h
            for r in range(4):
                L.append(P(f"v_pk_mul_f32 {v(o + 2 * r, 2)}, {v(o + 2 * r, 2)}, {v(vInv, 2)}"))
            for r in range(4):
                L.append(P(f"v_cvt_pk_bf16_f32 v{tb + r}, v{o + 2 * r}, v{o + 2 * r + 1}"))
            ds = 2 * db + h
            L.append(P(f"buffer_store_dwordx4 {v(tb, 4)}, v{vL16}, s[{SO}:{SO+3}], s{sOut} offen offset:{(ds & 3) * 1024}"))
            if ds & 3 == 3:
                L.append(P(f"s_add_u32 s{sOut}, s{sOut}, 4096"))
        return L
    f = spread(pre, 0, 3)
    for db in range(5):
        f += spread(opack(db), 2 * db + 5, 2 * db + 6)
    emit(phE, None, None, f)
    for db in range(5, 8):
        p.add(opack(db))
    lEnd = p.newlabel('end')
    p(f"s_branch {lEnd}")

    p.label(lFFN)
    srd_off(p, SO, 30, WS_H, H_BYTES)
    p(f"s_mul_i32 s{sOut}, s{sRb}, {112*1024}")
    p(f"s_lshl_b32 s{sT}, s{sHead}, 13")
    p(f"s_add_u32 s{sOut}, s{sOut}, s{sT}")

    def hpack(j):
        L = []
        g, u = O(j), O(j + 4)
        for h in range(2):
            tb = vT[(2 * (j & 1) + h) * 4]
            e = vE + 8 * h
            for r in range(8):
                L.append(P(f"v_mul_f32 v{e + r}, {f2u(-LOG2E)}, v{g + 8 * h + r}"))
            for r in range(8):
                L.append(P(f"v_exp_f32 v{e + r}, v{e + r}"))
            for r in range(8):
                L.append(P(f"v_add_f32 v{e + r}, 1.0, v{e + r}"))
            for r in range(8):
                L.append(P(f"v_rcp_f32 v{e + r}, v{e + r}"))
            for r in range(4):
                L.append(P(f"v_pk_mul_f32 {v(g + 8 * h + 2 * r, 2)}, {v(g + 8 * h + 2 * r, 2)}, {v(u + 8 * h + 2 * r, 2)}"))
            for r in range(4):
                L.append(P(f"v_pk_mul_f32 {v(e + 2 * r, 2)}, {v(e + 2 * r, 2)}, {v(g + 8 * h + 2 * r, 2)}"))
            for r in range(4):
                L.append(P(f"v_cvt_pk_bf16_f32 v{tb + r}, v{e + 2 * r}, v{e + 2 * r + 1}"))
            ks = 2 * j + h
            L.append(P(f"buffer_store_dwordx4 {v(tb, 4)}, v{vL16}, s[{SO}:{SO+3}], s{sOut} offen offset:{(ks & 3) * 1024}"))
            if ks & 3 == 3:
                L.append(P(f"s_add_u32 s{sOut}, s{sOut}, 4096"))
        return L
    f = spread(hpack(0), 10, 20) + spread(hpack(1), 21, 31)
    emit(proj_step(6), None, None, f)
    p.add(hpack(2))
    p.add(hpack(3))
    p.label(lEnd)
    p.wait_tags(*[f"L{x}" for x in range(10)])
    st.finish(sW, done, stamp_wave, 4, sel=stamp_sel)
    p.label(done)
    p("s_endpgm")
    for blk in rare_blocks:
        p.add(blk)
    return p


if __name__ == '__main__':
    p = gen_k2(stamp=True)
    build_file(["; test K2"], [("attn_kernel", 480, 256, 163840)], [p], "k2_t.s")
```

```python
from common import *

MF = "v_mfma_f32_32x32x16_bf16"


def gen_k3(name="final_kernel", stamp=False, D=14):
    p = Prog(name)
    st = Stamps(p, stamp)
    vLane, vL16 = 1, 2
    vB = [4, 5]
    vDW = [6, 7]
    vX = 8
    vXo, vWa, vRa = 16, 17, 18
    vT = list(range(20, 32))
    vW = 32
    vA = 48
    RS = 272
    REG = 2 * 64 * RS
    sW, sT, sT2, sRb, sCt, sM, sAo, sWo = 3, 36, 37, 38, 39, 40, 41, 42
    sAo2 = 43
    SC, SH, SWO, SWD, SX, SO = 8, 12, 16, 20, 24, 44
    done = p.newlabel('done')
    p(f"s_cmp_ge_u32 s2, 224")
    p(f"s_cbranch_scc1 {done}")
    p("s_load_dwordx2 s[28:29], s[0:1], 40")
    p("s_load_dwordx4 s[32:35], s[0:1], 72")
    p("s_load_dwordx2 s[30:31], s[0:1], 96")
    p("s_load_dwordx2 s[4:5], s[0:1], 0")
    st.start()
    p(f"v_and_b32 v{vLane}, 63, v0")
    p(f"v_lshrrev_b32 v{vT[0]}, 6, v0")
    p(f"v_readfirstlane_b32 s{sW}, v{vT[0]}")
    p(f"v_lshlrev_b32 v{vL16}, 4, v{vLane}")
    p(f"s_and_b32 s{sRb}, s2, 7")
    p(f"s_lshl_b32 s{sRb}, s{sRb}, 2")
    p(f"s_lshr_b32 s{sT}, s2, 3")
    p(f"s_and_b32 s{sT2}, s{sT}, 3")
    p(f"s_add_u32 s{sRb}, s{sRb}, s{sT2}")
    p(f"s_lshr_b32 s{sCt}, s{sT}, 2")
    p(f"s_lshl_b32 s{sCt}, s{sCt}, 7")
    p(f"s_mul_i32 s{sM}, s{sW}, {REG}")
    i3, i7, t, t2 = vT[0], vT[1], vT[2], vT[5]
    p(f"v_lshrrev_b32 v{i3}, 3, v{vLane}")
    p(f"v_and_b32 v{i7}, 7, v{vLane}")
    p(f"v_and_b32 v{t}, 2, v{i3}")
    p(f"v_lshlrev_b32 v{t}, 1, v{t}")
    p(f"v_xor_b32 v{t}, v{t}, v{i7}")
    p(f"v_lshlrev_b32 v{t}, 4, v{t}")
    p(f"v_add_u32 v{t}, s{sCt}, v{t}")
    p(f"v_mul_u32_u24 v{t2}, 896, v{i3}")
    p(f"v_add_u32 v{vDW[0]}, v{t2}, v{t}")
    p(f"v_add_u32 v{vDW[1]}, {8 * 896 - 1024}, v{vDW[0]}")
    p(f"v_lshl_add_u32 v{vXo}, v{i7}, 4, v{t2}")
    p(f"s_lshl_b32 s{sT}, s{sRb}, 2")
    p(f"s_add_u32 s{sT}, s{sT}, s{sW}")
    p(f"s_mul_i32 s{sT}, s{sT}, {16 * 896}")
    p(f"s_add_u32 s{sT}, s{sT}, s{sCt}")
    p(f"v_add_u32 v{vXo}, s{sT}, v{vXo}")
    p(f"v_mul_u32_u24 v{vRa}, {RS}, v{i3}")
    p(f"v_lshl_add_u32 v{vRa}, v{i7}, 5, v{vRa}")
    p(f"s_mul_i32 s{sT}, s{sW}, {16 * RS}")
    p(f"v_add_u32 v{vRa}, s{sT}, v{vRa}")
    srd_off(p, SC, 30, WS_CTX, 16 * MB)
    srd_off(p, SH, 30, WS_H, H_BYTES)
    srd(p, SWO, 28, 4096 * 896)
    srd(p, SWD, 32, 1792 * 896)
    srd(p, SX, 4, 2048 * 896)
    srd(p, SO, 34, 2048 * 896)
    NS, NF = 64, 28
    N = NS + NF

    def setup(kind):
        L = []
        if kind == 0:
            L.append(P(f"s_lshl_b32 s{sAo}, s{sRb}, 19"))
            L.append(P(f"s_lshl_b32 s{sT}, s{sW}, 16"))
            L.append(P(f"s_add_u32 s{sAo}, s{sAo}, s{sT}"))
            L.append(P(f"s_add_u32 s{sAo2}, s{sAo}, {256 * 1024}"))
            L.append(P(f"s_mul_i32 s{sWo}, s{sW}, {1024 * 896}"))
        else:
            L.append(P(f"s_mul_i32 s{sAo}, s{sRb}, {2 * 112 * 1024}"))
            L.append(P(f"s_mul_i32 s{sT}, s{sW}, {28 * 1024}"))
            L.append(P(f"s_add_u32 s{sAo}, s{sAo}, s{sT}"))
            L.append(P(f"s_add_u32 s{sAo2}, s{sAo}, {112 * 1024}"))
            L.append(P(f"s_mul_i32 s{sWo}, s{sW}, {448 * 896}"))
        return L

    def loads(n):
        kind = 0 if n < NS else 1
        k = n if kind == 0 else n - NS
        e = n % D
        sa, sw = (SC, SWO) if kind == 0 else (SH, SWD)
        g0 = setup(kind) if k == 0 else []
        g0 += [P(f"s_add_u32 m0, s{sM}, {e * 2048}"),
               P(f"buffer_load_dwordx4 v{vDW[0]}, s[{sw}:{sw+3}], s{sWo} offen lds", tags=(f"W{e}",))]
        g1 = [P(f"buffer_load_dwordx4 v{vDW[1]}, s[{sw}:{sw+3}], s{sWo} offen offset:1024 lds", tags=(f"W{e}",)),
              P(f"s_add_u32 s{sWo}, s{sWo}, {16 * 896}")]
        g2 = [P(f"buffer_load_dwordx4 {v(vA + 8 * e, 4)}, v{vL16}, s[{sa}:{sa+3}], s{sAo} offen offset:{(k & 3) * 1024}")]
        g3 = [P(f"buffer_load_dwordx4 {v(vA + 8 * e + 4, 4)}, v{vL16}, s[{sa}:{sa+3}], s{sAo2} offen offset:{(k & 3) * 1024}")]
        if k & 3 == 3:
            g3 += [P(f"s_add_u32 s{sAo}, s{sAo}, 4096"), P(f"s_add_u32 s{sAo2}, s{sAo2}, 4096")]
        return [g0, g1, g2, g3]

    for n in range(D - 1):
        p.add(loads(n))
    hf, r4, g1, c = vT[0], vT[1], vT[3], vT[4]
    p(f"v_lshrrev_b32 v{hf}, 5, v{vLane}")
    p(f"v_bfe_u32 v{r4}, v{vLane}, 2, 2")
    p(f"v_bfe_u32 v{g1}, v{vLane}, 4, 1")
    p(f"v_and_b32 v{c}, 3, v{vLane}")
    p(f"v_lshl_add_u32 v{t}, v{hf}, 2, v{r4}")
    p(f"v_lshlrev_b32 v{t}, 7, v{t}")
    p(f"v_lshl_add_u32 v{t}, v{g1}, 5, v{t}")
    p(f"v_lshl_add_u32 v{t}, v{c}, 3, v{t}")
    p(f"v_add_u32 v{t}, s{sM}, v{t}")
    p(f"v_lshrrev_b32 v{t2}, 1, v{r4}")
    p(f"v_lshl_add_u32 v{vB[0]}, v{t2}, 6, v{t}")
    p(f"v_xor_b32 v{t2}, 1, v{t2}")
    p(f"v_lshl_add_u32 v{vB[1]}, v{t2}, 6, v{t}")
    p(f"v_and_b32 v{t}, 31, v{vLane}")
    p(f"v_mul_u32_u24 v{t}, {RS}, v{t}")
    p(f"v_lshl_add_u32 v{t}, v{hf}, 4, v{t}")
    p(f"v_add_u32 v{vWa}, s{sM}, v{t}")

    def reads(n):
        e = n % D
        L = [WaitTag((f"W{e}",))]
        for cb in range(2):
            w = vW + 8 * (n & 1) + 4 * cb
            L.append(P(f"ds_read_b64_tr_b16 {v(w, 2)}, v{vB[cb]} offset:{e * 2048}"))
            L.append(P(f"ds_read_b64_tr_b16 {v(w + 2, 2)}, v{vB[cb]} offset:{e * 2048 + 1024}"))
        return L

    def acc(kind, rb, cb): return kind * 64 + (rb * 2 + cb) * 16
    p.add(reads(0))
    st.mark(0)
    for n in range(N):
        kind = 0 if n < NS else 1
        first = n in (0, NS)
        e = n % D
        mf = []
        for rb in range(2):
            for cb in range(2):
                ac = a(acc(kind, rb, cb), 16)
                mf.append(P(f"{MF} {ac}, {v(vW + 8 * (n & 1) + 4 * cb, 4)}, {v(vA + 8 * e + 4 * rb, 4)}, {'0' if first else ac}"))
        f = []
        if n + D - 1 < N:
            f += list(zip([-1, 0, 1, 2], loads(n + D - 1)))
        if n + 1 < N:
            f.append((0, reads(n + 1)))
        if n == N - D + 1:
            f.append((1, [P(f"buffer_load_dwordx4 {v(vX, 4)}, v{vXo}, s[{SX}:{SX+3}], 0 offen"),
                          P(f"v_add_u32 v{vT[6]}, {8 * 896}, v{vXo}"),
                          P(f"buffer_load_dwordx4 {v(vX + 4, 4)}, v{vT[6]}, s[{SX}:{SX+3}], 0 offen")]))
        p.add(merge(mf, f))
    st.mark(1)
    for kind in range(2):
        for rb in range(2):
            for cb in range(2):
                for q in range(4):
                    off = kind * 64 * RS + rb * 32 * RS + (cb * 32 + 8 * q) * 4
                    p(f"ds_write_b128 v{vWa}, {a(acc(kind, rb, cb) + 4 * q, 4)} offset:{off}")
    p("s_waitcnt lgkmcnt(0)")
    p("s_barrier")
    st.mark(2)
    vR = 32
    p(f"v_add_u32 v{vT[7]}, {2 * REG}, v{vRa}")
    def rr(ps, kind, sw): return vR + ((ps * 2 + kind) * 4 + sw) * 8
    for ps in range(2):
        for kind in range(2):
            for sw in range(4):
                ad = vRa if sw < 2 else vT[7]
                off = (sw & 1) * REG + kind * 64 * RS + ps * 8 * RS
                p(f"ds_read_b128 {v(rr(ps, kind, sw), 4)}, v{ad} offset:{off}")
                p(f"ds_read_b128 {v(rr(ps, kind, sw) + 4, 4)}, v{ad} offset:{off + 16}")
    for ps in range(2):
        for kind in range(2):
            b = rr(ps, kind, 0)
            for r in range(0, 8, 2):
                p(f"v_pk_add_f32 {v(b + r, 2)}, {v(b + r, 2)}, {v(b + 8 + r, 2)}")
                p(f"v_pk_add_f32 {v(b + 16 + r, 2)}, {v(b + 16 + r, 2)}, {v(b + 24 + r, 2)}")
            for r in range(0, 8, 2):
                p(f"v_pk_add_f32 {v(b + r, 2)}, {v(b + r, 2)}, {v(b + 16 + r, 2)}")
        s_, f_ = rr(ps, 0, 0), rr(ps, 1, 0)
        e = f_ + 8
        for r in range(8):
            p(f"v_mul_f32 v{e + r}, {f2u(-LOG2E)}, v{f_ + r}")
        for r in range(8):
            p(f"v_exp_f32 v{e + r}, v{e + r}")
        for r in range(8):
            p(f"v_add_f32 v{e + r}, 1.0, v{e + r}")
        for r in range(8):
            p(f"v_rcp_f32 v{e + r}, v{e + r}")
        for r in range(0, 8, 2):
            p(f"v_pk_mul_f32 {v(s_ + r, 2)}, {v(s_ + r, 2)}, {v(f_ + r, 2)}")
        xx = s_ + 8
        for r in range(4):
            p(f"v_lshlrev_b32 v{xx + 2 * r}, 16, v{vX + 4 * ps + r}")
            p(f"v_and_b32 v{xx + 2 * r + 1}, 0xffff0000, v{vX + 4 * ps + r}")
        for r in range(8):
            p(f"v_fmac_f32 v{xx + r}, v{s_ + r}, v{e + r}")
        for r in range(4):
            p(f"v_cvt_pk_bf16_f32 v{s_ + 16 + r}, v{xx + 2 * r}, v{xx + 2 * r + 1}")
        p(f"buffer_store_dwordx4 {v(s_ + 16, 4)}, v{vXo if ps == 0 else vT[6]}, s[{SO}:{SO+3}], 0 offen")
    st.finish(sW, done, 0, 3)
    p.label(done)
    p("s_endpgm")
    return p, 4 * REG
```

```python
import sys
from common import *
from k1 import gen_k1
from k2 import gen_k2
from k3 import gen_k3
NAME = "recurrent_scan__compressed_kv_cla__swiglu_ffn__prompt"
def header():
    H = []
    for l in open(f"cdna_kernels/{NAME}.s.ref"):
        if l.startswith("; @launch"): break
        H.append(l.rstrip("\n"))
    return H
def build(path, stamp=False, k1kw={}, k2kw={}, k3kw={}):
    kw = dict(dma_pos=[48 + 3 * d for d in range(6)] + [2 + 3 * d for d in range(10)])
    kw.update(k1kw)
    p1 = gen_k1(name="kvproj_kernel", NW=4, stamp=stamp, **kw)
    p2 = gen_k2(name="attn_kernel", stamp=stamp, **k2kw)
    p3, l3 = gen_k3(name="final_kernel", stamp=stamp, **k3kw)
    build_file(header(), [("kvproj_kernel", 256, 256, 131072), ("attn_kernel", 480, 256, 163840),
                          ("final_kernel", 224, 256, l3)], [p1, p2, p3], path)
if __name__ == "__main__":
    build("all_t.s", stamp=True)
    build(f"cdna_kernels/{NAME}.s")
```

```python
import sys
from common import *
from k1d import gen_k1d
from k2n import gen_k2n
from k3n import gen_k3n
NAME = "recurrent_scan__compressed_kv_cla__swiglu_ffn__prompt"
def header():
    H = []
    for l in open(f"cdna_kernels/{NAME}.s.ref"):
        if l.startswith("; @launch"): break
        H.append(l.rstrip("\n"))
    return H
def build(path, stamp=False, k1kw={}, k2kw={}, k3kw={}, n=3):
    p1 = gen_k1d(name="kvproj_kernel", stamp=stamp, **k1kw)
    p2 = gen_k2n(name="attn_kernel", stamp=stamp, **k2kw)
    p3, l3 = gen_k3n(name="final_kernel", stamp=stamp, **k3kw)
    build_file(header(), [("kvproj_kernel", 256, 256, 163840), ("attn_kernel", 256, 256, 131072),
                          ("final_kernel", 224, 256, l3)][:n], [p1, p2, p3][:n], path)
if __name__ == "__main__":
    build("n_t.s", stamp=True)
```

```python
import sys
from common import *
from kj import gen_kj
from build2 import header
def build(path, stamp=False, kw={}):
    p1 = gen_kj(name="main_kernel", stamp=stamp, **kw)
    build_file(header(), [("main_kernel", 256, 256, 163840)], [p1], path)
if __name__ == "__main__":
    build("j_t.s", stamp=True, kw=dict(marks=('t2', 'att', 'wo', 'end', 'e0')))
```

```python
from asmlib import *

MB = 1024 * 1024
WS_K = 0
WS_V = 16 * MB
WS_CTX = 32 * MB
WS_XN = 36 * MB
WS_H = 52 * MB
WS_Q = 112 * MB
WS_S = 64 * MB
WS_PO = 96 * MB
WS_ML = 104 * MB
WS_WOE = 48 * MB
WS_WOO = 32 * MB
KV_BYTES = 16 * MB
XN_BYTES = 64 * 28 * 1024
H_BYTES = 64 * 112 * 1024
LOG2E = 1.4426950408889634


def f2u(x):
    import struct
    return struct.unpack('<I', struct.pack('<f', x))[0]


def srd(p, d, base, nbytes):
    p(f"s_mov_b32 s{d}, s{base}")
    p(f"s_and_b32 s{d+1}, s{base+1}, 0xffff")
    p(f"s_mov_b32 s{d+2}, {nbytes}")
    p(f"s_mov_b32 s{d+3}, 0x00020000")


def srd_off(p, d, base, off, nbytes):
    p(f"s_add_u32 s{d}, s{base}, {off}")
    p(f"s_addc_u32 s{d+1}, s{base+1}, 0")
    p(f"s_and_b32 s{d+1}, s{d+1}, 0xffff")
    p(f"s_mov_b32 s{d+2}, {nbytes}")
    p(f"s_mov_b32 s{d+3}, 0x00020000")


def spread(items, lo, hi):
    n = len(items)
    out = []
    for k, it in enumerate(items):
        out.append((lo + (k * (hi - lo + 1)) // n, it))
    return out


def P(text, tags=()):
    return parse(text, tags)


def NT(text, tags=()):
    i = parse(text, tags)
    i.wr = []
    return i


def merge(main, *fills):
    f = []
    for x in fills:
        f += x
    f.sort(key=lambda t: t[0])
    return interleave(main, f)


class Stamps:
    def __init__(self, p, enable, kid=0, sbase=80):
        self.p = p
        self.en = enable
        self.sb = sbase
        self.kid = kid
        self.op = "s_memrealtime" if enable == 'rt' else "s_memtime"

    def start(self):
        if not self.en:
            return
        p, sb = self.p, self.sb
        p(f"s_load_dwordx2 s[{sb}:{sb+1}], s[0:1], 96")
        p(f"s_memrealtime s[{sb+2}:{sb+3}]")
        p(f"s_memtime s[{sb+4}:{sb+5}]")
        self.sWc = sb - 1
        p(f"v_lshrrev_b32 v1, 6, v0")
        p(f"v_readfirstlane_b32 s{self.sWc}, v1")
        for k in range(5):
            p(f"s_mov_b32 s{sb + 6 + 2 * k}, 0")

    def mark(self, k):
        if not self.en:
            return
        r = self.sb + 6 + 2 * k
        self.p(f"{self.op} s[{r}:{r+1}]")
        self.p("s_waitcnt lgkmcnt(0)")

    def finish(self):
        if not self.en:
            return
        p, sb = self.p, self.sb
        p("s_waitcnt vmcnt(0)")
        p(f"s_memtime s[{sb+16}:{sb+17}]")
        p(f"s_memrealtime s[{sb+18}:{sb+19}]")
        p("s_waitcnt lgkmcnt(0)")
        srd_off(p, 4, sb, 200 * MB + self.kid * MB, MB)
        p("s_mov_b64 exec, 1")
        p(f"s_lshl_b32 s3, s2, 3")
        p(f"s_add_u32 s3, s3, s{self.sWc}")
        p(f"s_lshl_b32 s3, s3, 5")
        p("v_mov_b32 v2, s3")
        for k in range(6):
            p(f"s_sub_u32 s3, s{sb + 6 + 2 * k}, s{sb+4}" if k == 5 or self.en != 'rt' else f"s_mov_b32 s3, s{sb + 6 + 2 * k}")
            p(f"v_mov_b32 v{4+k}, s3")
        p(f"v_mov_b32 v10, s{sb+2}")
        p(f"v_mov_b32 v11, s{sb+18}")
        p("buffer_store_dwordx4 v[4:7], v2, s[4:7], 0 offen")
        p("buffer_store_dwordx4 v[8:11], v2, s[4:7], 0 offen offset:16")
```

```python
from common import *


def ln_load(p, vLane, sW, R, sx=60, sid=2):
    srd(p, sx + 4, sx, 2048 * 896)
    p(f"s_lshl_b32 s{sx+2}, s{sid}, 2")
    p(f"s_add_u32 s{sx+2}, s{sx+2}, s{sW}")
    p(f"s_mul_i32 s{sx+3}, s{sx+2}, 1792")
    for r in range(8):
        p(f"v_mov_b32 v{R + r}, 0")
    p(f"v_lshlrev_b32 v{R + 8}, 4, v{vLane}")
    p(f"s_mov_b32 exec_hi, 0x00ffffff")
    p(f"buffer_load_dwordx4 {v(R, 4)}, v{R + 8}, s[{sx+4}:{sx+7}], s{sx+3} offen")
    p(f"buffer_load_dwordx4 {v(R + 4, 4)}, v{R + 8}, s[{sx+4}:{sx+7}], s{sx+3} offen offset:896")
    p(f"s_mov_b32 exec_hi, -1")


def wave_sum(p, regs, tmp):
    for mod in ("quad_perm:[1,0,3,2]", "quad_perm:[2,3,0,1]", "row_half_mirror", "row_mirror"):
        for r in regs:
            p(f"v_add_f32_dpp v{r}, v{r}, v{r} {mod} row_mask:0xf bank_mask:0xf")
    for op in ("v_permlane16_swap_b32", "v_permlane32_swap_b32"):
        for r, t in zip(regs, tmp):
            p(f"v_mov_b32 v{t}, v{r}")
        for r, t in zip(regs, tmp):
            p(f"{op} v{r}, v{t}")
        for r, t in zip(regs, tmp):
            p(f"v_add_f32 v{r}, v{r}, v{t}")


def ln_compute(p, vLane, R, sws, sx=60, rowmajor=False):
    X = [R + 10, R + 18]
    Sm = [R + 26, R + 27]
    Tm = [R + 28, R + 29]
    D = [R + 30, R + 38]
    Q = [R + 46, R + 47]
    for j in range(2):
        for r in range(4):
            p(f"v_lshlrev_b32 v{X[j] + 2 * r}, 16, v{R + 4 * j + r}")
            p(f"v_and_b32 v{X[j] + 2 * r + 1}, 0xffff0000, v{R + 4 * j + r}")
    for j in range(2):
        p(f"v_add_f32 v{Sm[j]}, v{X[j]}, v{X[j] + 1}")
    for r in range(2, 8):
        for j in range(2):
            p(f"v_add_f32 v{Sm[j]}, v{Sm[j]}, v{X[j] + r}")
    wave_sum(p, Sm, Tm)
    for j in range(2):
        p(f"v_mul_f32 v{Sm[j]}, {f2u(1.0 / 448)}, v{Sm[j]}")
        p(f"v_mov_b32 v{Q[j]}, 0")
    p(f"s_mov_b32 exec_hi, 0x00ffffff")
    for r in range(8):
        for j in range(2):
            p(f"v_sub_f32 v{D[j] + r}, v{X[j] + r}, v{Sm[j]}")
        for j in range(2):
            p(f"v_fmac_f32 v{Q[j]}, v{D[j] + r}, v{D[j] + r}")
    p(f"s_mov_b32 exec_hi, -1")
    wave_sum(p, Q, Tm)
    def rbf(r):
        p(f"v_cvt_pk_bf16_f32 v{r}, v{r}, v{r}")
        p(f"v_lshlrev_b32 v{r}, 16, v{r}")
    for j in range(2):
        rbf(Sm[j])
        p(f"v_mul_f32 v{Q[j]}, {f2u(1.0 / 448)}, v{Q[j]}")
        rbf(Q[j])
        p(f"v_add_f32 v{Q[j]}, {f2u(1e-5)}, v{Q[j]}")
        rbf(Q[j])
        p(f"v_sqrt_f32 v{Q[j]}, v{Q[j]}")
        rbf(Q[j])
        p(f"v_rcp_f32 v{Q[j]}, v{Q[j]}")
    for j in range(2):
        for r in range(8):
            p(f"v_sub_f32 v{D[j] + r}, v{X[j] + r}, v{Sm[j]}")
        for r in range(4):
            p(f"v_cvt_pk_bf16_f32 v{X[j] + r}, v{D[j] + 2 * r}, v{D[j] + 2 * r + 1}")
        for r in range(4):
            p(f"v_lshlrev_b32 v{D[j] + 2 * r}, 16, v{X[j] + r}")
            p(f"v_and_b32 v{D[j] + 2 * r + 1}, 0xffff0000, v{X[j] + r}")
        for r in range(8):
            p(f"v_mul_f32 v{D[j] + r}, v{D[j] + r}, v{Q[j]}")
        for r in range(4):
            p(f"v_cvt_pk_bf16_f32 v{R + 4 * j + r}, v{D[j] + 2 * r}, v{D[j] + 2 * r + 1}")
    srd_off(p, sx + 4, sws, WS_XN, XN_BYTES)
    if rowmajor:
        p(f"s_mov_b32 exec_hi, 0x00ffffff")
        p(f"buffer_store_dwordx4 {v(R, 4)}, v{R + 8}, s[{sx+4}:{sx+7}], s{sx+3} offen sc1")
        p(f"buffer_store_dwordx4 {v(R + 4, 4)}, v{R + 8}, s[{sx+4}:{sx+7}], s{sx+3} offen offset:896 sc1")
        p(f"s_mov_b32 exec_hi, -1")
        return
    p(f"s_lshr_b32 s{sx+3}, s{sx+2}, 4")
    p(f"s_mul_i32 s{sx+3}, s{sx+3}, 28672")
    p(f"s_and_b32 s{sx+2}, s{sx+2}, 15")
    p(f"s_lshl_b32 s{sx+2}, s{sx+2}, 5")
    p(f"s_add_u32 s{sx+3}, s{sx+3}, s{sx+2}")
    p(f"v_lshlrev_b32 v{R + 8}, 9, v{vLane}")
    p(f"s_mov_b32 exec_hi, 0x00ffffff")
    p(f"buffer_store_dwordx4 {v(R, 4)}, v{R + 8}, s[{sx+4}:{sx+7}], s{sx+3} offen")
    p(f"buffer_store_dwordx4 {v(R + 4, 4)}, v{R + 8}, s[{sx+4}:{sx+7}], s{sx+3} offen offset:16")
    p(f"s_mov_b32 exec_hi, -1")


def gen_k1(name="kvproj_kernel", NW=4, dma_pos=None, rd_pos=None, stamp=False, ln=True, touch=0, stmod=""):
    p = Prog(name)
    assert NW in (4, 8)
    CB = 4
    WB = 4 if NW == 4 else 2
    NP = 64 // NW // 2
    NM = CB * WB
    vLane = 1
    vT = [2, 3, 4, 5, 6, 7]
    vA = [8, 9, 10, 11]
    vB = [12, 13]
    vDA = list(range(16, 16 + NP))
    vDB = list(range(24, 24 + NP))
    vSt = 14
    FR = 32
    fsz = (CB + WB) * 4
    def fC(st, i): return FR + st * fsz + i * 4
    def fW(st, j): return FR + st * fsz + CB * 4 + j * 4
    vE = FR + 2 * fsz
    def acc(ci, wi): return (ci * WB + wi) * 16
    sW, sWr, sWc, sRb, sHead, sIsV = 20, 21, 22, 23, 24, 25
    sA, sB, sM0, sKt, sT, sT2, sOut = 26, 27, 28, 29, 30, 31, 32
    sNA, sNB = 33, 34

    done = p.newlabel('done')
    p(f"s_cmp_ge_u32 s2, 256")
    p(f"s_cbranch_scc1 {done}")
    p("s_load_dwordx2 s[4:5], s[0:1], 8")
    p("s_load_dwordx4 s[36:39], s[0:1], 24")
    p("s_load_dwordx2 s[6:7], s[0:1], 96")
    p("s_load_dwordx2 s[60:61], s[0:1], 0")
    p("s_load_dwordx2 s[58:59], s[0:1], 96")
    stp = Stamps(p, stamp, 0)
    stp.start()
    p(f"v_and_b32 v{vLane}, 63, v0")
    p(f"v_lshrrev_b32 v{vT[0]}, 6, v0")
    p(f"v_readfirstlane_b32 s{sW}, v{vT[0]}")
    p(f"s_lshr_b32 s{sRb}, s2, 5")
    p(f"s_lshr_b32 s{sT}, s2, 3")
    p(f"s_and_b32 s{sT2}, s{sT}, 1")
    p(f"s_lshr_b32 s{sIsV}, s{sT}, 1")
    p(f"s_and_b32 s{sIsV}, s{sIsV}, 1")
    p(f"s_and_b32 s{sHead}, s2, 7")
    p(f"s_lshl_b32 s{sHead}, s{sHead}, 1")
    p(f"s_add_u32 s{sHead}, s{sHead}, s{sT2}")
    if NW == 4:
        p(f"s_lshr_b32 s{sWr}, s{sW}, 1")
        p(f"s_and_b32 s{sWc}, s{sW}, 1")
    else:
        p(f"s_lshr_b32 s{sWr}, s{sW}, 2")
        p(f"s_and_b32 s{sWc}, s{sW}, 3")
    i3, i7, i4 = vT[0], vT[1], vT[2]
    p(f"v_lshrrev_b32 v{i3}, 3, v{vLane}")
    p(f"v_and_b32 v{i7}, 7, v{vLane}")
    p(f"v_lshrrev_b32 v{i4}, 4, v{vLane}")
    p(f"s_lshl_b32 s{sT}, s{sW}, {14 + (3 if NP == 8 else 2)}")
    for q in range(NP):
        t = vT[3]
        p(f"v_add_u32 v{t}, {4 * (q & 1)}, v{i4}")
        p(f"v_xor_b32 v{t}, v{t}, v{i7}")
        p(f"v_lshlrev_b32 v{t}, 4, v{t}")
        p(f"v_lshl_add_u32 v{t}, v{i3}, 11, v{t}")
        p(f"v_add_u32 v{t}, s{sT}, v{t}")
        p(f"v_add_u32 v{vDA[q]}, {q * 16384 - (q & 3) * 1024}, v{t}")
    t, t2 = vT[3], vT[4]
    p(f"v_and_b32 v{t}, 2, v{i3}")
    p(f"v_lshlrev_b32 v{t}, 1, v{t}")
    p(f"v_xor_b32 v{t}, v{t}, v{i7}")
    p(f"v_lshlrev_b32 v{t}, 4, v{t}")
    p(f"v_lshl_add_u32 v{t}, v{i3}, 13, v{t}")
    if NW == 4:
        p(f"s_lshl_b32 s{sT}, s{sW}, 7")
    else:
        p(f"s_lshr_b32 s{sT}, s{sW}, 1")
        p(f"s_lshl_b32 s{sT}, s{sT}, 7")
        p(f"s_and_b32 s{sT2}, s{sW}, 1")
        p(f"s_lshl_b32 s{sT2}, s{sT2}, 18")
        p(f"s_add_u32 s{sT}, s{sT}, s{sT2}")
    p(f"v_add_u32 v{t}, s{sT}, v{t}")
    for q in range(NP):
        p(f"v_add_u32 v{vDB[q]}, {q * 65536 - (q & 3) * 1024}, v{t}")
    r, hf, f = vT[0], vT[1], vT[2]
    p(f"v_and_b32 v{r}, 31, v{vLane}")
    p(f"v_lshrrev_b32 v{hf}, 5, v{vLane}")
    p(f"v_bfe_u32 v{f}, v{vLane}, 1, 3")
    p(f"s_lshl_b32 s{sT}, s{sWr}, 14")
    for ks in range(4):
        t = vT[3]
        p(f"v_add_u32 v{t}, {2 * ks}, v{hf}")
        p(f"v_xor_b32 v{t}, v{t}, v{f}")
        p(f"v_lshlrev_b32 v{t}, 4, v{t}")
        p(f"v_lshl_add_u32 v{t}, v{r}, 7, v{t}")
        p(f"v_add_u32 v{vA[ks]}, s{sT}, v{t}")
    r4, g1, c = vT[0], vT[2], vT[3]
    p(f"v_bfe_u32 v{r4}, v{vLane}, 2, 2")
    p(f"v_bfe_u32 v{g1}, v{vLane}, 4, 1")
    p(f"v_and_b32 v{c}, 3, v{vLane}")
    t, t2 = vT[4], vT[5]
    p(f"v_lshl_add_u32 v{t}, v{hf}, 3, v{r4}")
    p(f"v_lshlrev_b32 v{t}, 7, v{t}")
    p(f"v_lshl_add_u32 v{t}, v{g1}, 5, v{t}")
    p(f"v_lshl_add_u32 v{t}, v{c}, 3, v{t}")
    p(f"s_lshl_b32 s{sT}, s{sWc}, {14 if NW == 4 else 13}")
    p(f"s_add_u32 s{sT}, s{sT}, 32768")
    p(f"v_add_u32 v{t}, s{sT}, v{t}")
    p(f"v_lshrrev_b32 v{t2}, 1, v{r4}")
    p(f"v_lshl_add_u32 v{vB[0]}, v{t2}, 6, v{t}")
    p(f"v_xor_b32 v{t2}, 1, v{t2}")
    p(f"v_lshl_add_u32 v{vB[1]}, v{t2}, 6, v{t}")
    p(f"v_lshlrev_b32 v{vSt}, 4, v{vLane}")
    if ln:
        assert NW == 4
        ln_load(p, vLane, sW, vE)
    srd(p, 8, 4, 4194304)
    p(f"s_cmp_eq_u32 s{sIsV}, 0")
    p(f"s_cselect_b32 s36, s36, s38")
    p(f"s_cselect_b32 s37, s37, s39")
    srd(p, 12, 36, 8388608)
    p(f"s_lshl_b32 s{sT}, s{sIsV}, 24")
    p(f"s_add_u32 s6, s6, s{sT}")
    p(f"s_addc_u32 s7, s7, 0")
    srd(p, 16, 6, KV_BYTES)
    p(f"s_lshl_b32 s{sA}, s{sRb}, 19")
    p(f"s_lshl_b32 s{sB}, s{sHead}, 9")
    p(f"s_lshl_b32 s{sM0}, s{sW}, {13 if NW == 4 else 12}")

    def dma_list(tag):
        L = []
        for op, vD, soff, srdn, reg in (('B', vDB, sB, 12, 32768), ('A', vDA, sA, 8, 0)):
            for q in range(NP):
                it = []
                if q % 4 == 0:
                    it.append(parse(f"s_add_u32 m0, s{sM0}, {reg + q * 1024}"))
                it.append(parse(f"buffer_load_dwordx4 v{vD[q]}, s[{srdn}:{srdn+3}], s{soff} offen "
                                f"offset:{(q & 3) * 1024} lds", tags=(tag,)))
                L.append(it)
        return L

    def next_tile():
        return [parse(f"s_add_u32 s{sA}, s{sA}, 128"), parse(f"s_add_u32 s{sB}, s{sB}, 524288"),
                parse(f"s_xor_b32 s{sM0}, s{sM0}, 0x10000")]

    def reads(st, ks):
        L = []
        cr = [parse(f"ds_read_b128 {v(fC(st, i), 4)}, v{vA[ks]} offset:{i * 4096}") for i in range(CB)]
        wr = []
        for j in range(WB):
            off = (j >> 1) * 8192 + ks * 2048
            wr.append([parse(f"ds_read_b64_tr_b16 {v(fW(st, j), 2)}, v{vB[j & 1]} offset:{off}"),
                       parse(f"ds_read_b64_tr_b16 {v(fW(st, j) + 2, 2)}, v{vB[j & 1]} offset:{off + 512}")])
        L.append(cr[0])
        for j in range(WB):
            L += wr[j]
        L += cr[1:]
        return L

    def toggle():
        return [parse(f"v_xor_b32 v{x}, 0x10000, v{x}") for x in vA + vB]

    ND = 2 * NP
    TOT = 4 * NM
    BAR = 3 * NM
    if dma_pos is None:
        dma_pos = [BAR + d * NM // ND for d in range(ND)]
    nlate = sum(1 for x in dma_pos if x >= BAR)
    for it in dma_list('t0'):
        p.add(it)
    p.add(next_tile())
    for it in dma_list('t1')[:nlate]:
        p.add(it)
    if touch:
        G = touch & 0xff
        p(f"s_lshl_b32 s{sT}, s2, 2")
        p(f"s_add_u32 s{sT}, s{sT}, s{sW}")
        p(f"v_lshlrev_b32 v{vT[0]}, {G}, v{vLane}")
        p(f"s_lshl_b32 s{sT2}, s{sT}, 12")
        n = max(1, 4096 >> (G + 6))
        if (4096 >> G) < 64:
            p(f"s_mov_b32 exec_hi, 0")
        for k in range(n):
            p(f"buffer_load_dword v{200 + k}, v{vT[0]}, s[8:11], s{sT2} offen")
            p(f"s_add_u32 s{sT2}, s{sT2}, {64 << G}")
        p(f"s_mov_b32 exec_hi, -1")
        if touch & 0x100:
            p(f"s_lshr_b32 s{sT2}, s2, 5")
            p(f"s_lshl_b32 s{sT2}, s{sT2}, 4")
            p(f"s_and_b32 s{sT}, s2, 15")
            p(f"s_add_u32 s{sT2}, s{sT2}, s{sT}")
            p(f"s_lshl_b32 s{sT2}, s{sT2}, 2")
            p(f"s_add_u32 s{sT2}, s{sT2}, s{sW}")
            p(f"s_lshl_b32 s{sT2}, s{sT2}, 14")
            for k in range(16384 >> (G + 6)):
                p(f"buffer_load_dword v{210 + k}, v{vT[0]}, s[12:15], s{sT2} offen")
                p(f"s_add_u32 s{sT2}, s{sT2}, {64 << G}")
    for i in range(NM * 16):
        p(f"v_accvgpr_write_b32 a{i}, 0")
    p(f"s_mov_b32 s{sKt}, 0")
    if ln:
        ln_compute(p, vLane, vE, 58)
    p.wait_tags('t0')
    p("s_barrier")
    stp.mark(0)
    p.add(reads(0, 0))
    lV = p.newlabel('vpath')
    lEp = p.newlabel('epi')
    p(f"s_cmp_lg_u32 s{sIsV}, 0")
    p(f"s_cbranch_scc1 {lV}")

    def loop(isV):
        lab = p.newlabel('loop')
        p.raw(".p2align 6")
        p.label(lab)
        mf = []
        for ks in range(4):
            st = ks & 1
            for i in range(CB):
                for j in range(WB):
                    c_, w_ = v(fC(st, i), 4), v(fW(st, j), 4)
                    x, y = (c_, w_) if isV else (w_, c_)
                    mf.append(parse(f"v_mfma_f32_32x32x16_bf16 {a(acc(i, j), 16)}, {x}, {y}, {a(acc(i, j), 16)}"))
        fill = []
        nr = CB + 2 * WB
        for ks in range(4):
            rl = reads((ks + 1) & 1, (ks + 1) & 3)
            for n, it in enumerate(rl):
                pos = ks * NM + (rd_pos[n] if rd_pos else (n * (NM - NM // 4)) // nr)
                if ks == 3 and n == 0:
                    pass
                fill.append((pos, it))
        pre = [WaitTag(('t1',)), parse("s_waitcnt lgkmcnt(0)"), parse("s_barrier")] + toggle() + next_tile()
        pre += [parse(f"s_cmp_lt_u32 s{sKt}, 14"), parse(f"s_cselect_b32 s10, s10, 0"),
                parse(f"s_cselect_b32 s14, s14, 0")]
        fill = [(BAR - 1, it) for it in pre] + fill
        dl = dma_list('t1')
        for d in range(ND):
            fill.append((dma_pos[d] % TOT, dl[d]))
        fill.sort(key=lambda x: x[0])
        p.add(interleave(mf, fill))
        p(f"s_add_u32 s{sKt}, s{sKt}, 1")
        p(f"s_cmp_lt_u32 s{sKt}, 16")
        p(f"s_cbranch_scc1 {lab}")

    def epilogue(isV):
        p(f"s_lshl_b32 s{sT}, s{sHead}, 6")
        p(f"s_lshl_b32 s{sT2}, s{sRb}, 3")
        p(f"s_add_u32 s{sT}, s{sT}, s{sT2}")
        p(f"s_lshl_b32 s{sT2}, s{sWr}, 2")
        p(f"s_add_u32 s{sT}, s{sT}, s{sT2}")
        p(f"s_lshl_b32 s{sOut}, s{sT}, 14")
        p(f"s_mul_i32 s{sT2}, s{sWc}, {WB * (1024 if isV else 2048)}")
        p(f"s_add_u32 s{sOut}, s{sOut}, s{sT2}")
        n = 0
        for ci in range(CB):
            for wi in range(WB):
                for half in range(2):
                    e = vE + (n % 4) * 12
                    n += 1
                    for r in range(8):
                        p(f"v_accvgpr_read_b32 v{e + 4 + r}, a{acc(ci, wi) + half * 8 + r}")
                    for r in range(4):
                        p(f"v_cvt_pk_bf16_f32 v{e + r}, v{e + 4 + 2 * r}, v{e + 5 + 2 * r}")
                    off = ci * 16384 + ((half * 8 + wi) * 1024 if isV else (2 * wi + half) * 1024)
                    p(f"s_add_u32 s{sT}, s{sOut}, {off & ~4095}")
                    p(f"buffer_store_dwordx4 {v(e, 4)}, v{vSt}, s[16:19], s{sT} offen offset:{off & 4095}{stmod}")

    loop(False)
    stp.mark(1)
    epilogue(False)
    p(f"s_branch {lEp}")
    p.label(lV)
    loop(True)
    stp.mark(1)
    epilogue(True)
    p.label(lEp)
    stp.finish()
    p.label(done)
    p("s_endpgm")
    return p


if __name__ == '__main__':
    import sys
    def mk(tag, NW, **kw):
        p = gen_k1(NW=NW, stamp=True, **kw)
        build_file(["; test K1"], [("kvproj_kernel", 256, 64 * NW, 131072)], [p], f"k1_{tag}.s")
    mk('4a', 4)
    mk('4b', 4, dma_pos=[48 + 2 * d for d in range(8)] + [2 * d for d in range(8)])
    mk('4c', 4, dma_pos=[48 + 3 * d for d in range(6)] + [2 + 3 * d for d in range(10)])
    mk('8a', 8)
    mk('8b', 8, dma_pos=[24 + 2 * d for d in range(4)] + [2 * d for d in range(4)])
```

```python
from common import *
from k1 import ln_load, wave_sum, ln_compute

MF16 = "v_mfma_f32_16x16x32_bf16"


class Col:
    def __init__(self): self.L = []
    def __call__(self, t, tags=()): self.L.append(P(t, tags))


def flat(x):
    if isinstance(x, (list, tuple)):
        return [z for y in x for z in flat(y)]
    return [x]


def glue(items):
    G = []
    for it in items:
        if isinstance(it, Ins) and it.op in ('s_addc_u32', 's_cselect_b32', 's_cselect_b64') and G:
            G[-1] = flat([G[-1], it])
        else:
            G.append(it)
    return G


def place(f, items, lo, hi, cap=2):
    load = {}
    for sl, it in f:
        load[sl] = load.get(sl, 0) + len(flat(it))
    items = glue(items)
    while True:
        out, sl, ld = [], lo, dict(load)
        for k, it in enumerate(items):
            n = len(flat(it))
            want = lo + (k * (hi - lo + 1)) // len(items)
            sl = max(sl, want)
            while sl <= hi and ld.get(sl, 0) + n > max(cap, n):
                sl += 1
            if sl > hi:
                break
            ld[sl] = ld.get(sl, 0) + n
            out.append((sl, it))
        else:
            return out
        cap += 1


def gen_k1d(name="kvproj_kernel", stamp=False, bar=1, wr0=2, wr_step=3, dma0=4, dma_step=7, stmod=" sc1", st2mod=" sc1",
            touch=True, wtouch=5, NIMM=5, st_first=33, st_last=44, nodma=False, nord=False, nobar=False, ckvmod=""):
    p = Prog(name)
    stp = Stamps(p, stamp, 0)
    vLane = 1
    vT = [2, 3, 4, 5, 6, 7]
    vA, vA0 = [8, 9], [28, 29]
    vB = [10, 11, 12, 13]
    vSt, vStQ = 14, 15
    vDA = list(range(16, 24))
    vDB = list(range(24, 28))
    vPoll, vI3 = 30, 31
    FR = 32
    def fC(st, i): return FR + i * 4 + (4 * st if i == 7 else 0)
    def fW(st, j): return FR + 36 + st * 32 + j * 4
    vR8 = [132, 140]
    vE = 148
    def hold(n): return vE + 4 * (n % 27)
    vSt1 = 0
    def acc(ci, wi): return (ci * 8 + wi) * 4
    sW, sWr, sWc, sRb, sHead, sIsV = 20, 21, 22, 23, 24, 25
    sA, sB, sMW, sKt, sT, sT2, sOut = 26, 27, 28, 29, 30, 31, 32
    sMA, sAr, sWA, sBst, sJ, sC2 = 33, 34, 35, 40, 41, 42
    sSc = 44
    sX, sZ, sTs, sEv, sTo = 76, 77, 6, 7, 78
    vTch = 250
    ST = 52
    SA, SB, SO, SD = 8, 12, 16, 48
    side = []
    done = p.newlabel('done')
    p(f"s_cmp_ge_u32 s2, 256")
    p(f"s_cbranch_scc1 {done}")
    p("s_load_dwordx4 s[60:63], s[0:1], 0")
    p("s_load_dwordx4 s[36:39], s[0:1], 24")
    p("s_load_dwordx4 s[56:59], s[0:1], 88")
    p("s_load_dwordx2 s[68:69], s[0:1], 16")
    p("s_load_dwordx4 s[72:75], s[0:1], 56")
    p("s_load_dwordx2 s[70:71], s[0:1], 40")
    p("s_load_dwordx2 s[4:5], s[0:1], 72")
    stp.start()
    p(f"v_and_b32 v{vLane}, 63, v0")
    p(f"v_lshrrev_b32 v{vT[0]}, 6, v0")
    p(f"v_readfirstlane_b32 s{sW}, v{vT[0]}")
    p(f"s_lshr_b32 s{sRb}, s2, 5")
    p(f"s_bfe_u32 s{sJ}, s2, 0x20003")
    p(f"s_and_b32 s{sT2}, s{sJ}, 1")
    p(f"s_lshr_b32 s{sIsV}, s{sJ}, 1")
    p(f"s_and_b32 s{sHead}, s2, 7")
    p(f"s_lshl_b32 s{sHead}, s{sHead}, 1")
    p(f"s_add_u32 s{sHead}, s{sHead}, s{sT2}")
    p(f"s_lshr_b32 s{sWr}, s{sW}, 1")
    p(f"s_and_b32 s{sWc}, s{sW}, 1")
    i7, i4 = vT[1], vT[2]

    def a_voffs(stride):
        L = [f"v_and_b32 v{i7}, 7, v{vLane}", f"v_lshrrev_b32 v{i4}, 4, v{vLane}",
             f"s_mul_i32 s{sT}, s{sW}, {64 * stride}",
             f"v_mul_u32_u24 v{vT[4]}, {stride}, v{vI3}", f"v_add_u32 v{vT[4]}, s{sT}, v{vT[4]}"]
        for par in range(2):
            t = vT[3]
            L += [f"v_add_u32 v{t}, {4 * par}, v{i4}", f"v_xor_b32 v{t}, v{t}, v{i7}",
                  f"v_lshl_add_u32 v{t}, v{t}, 4, v{vT[4]}"]
            for q in range(par, 8, 2):
                L.append(f"v_add_u32 v{vDA[q]}, {q * 8 * stride - (q & 3) * 1024}, v{t}")
        return [P(x) for x in L]

    def w_voffs(scol, sstr):
        L = [f"v_and_b32 v{i7}, 7, v{vLane}", f"v_mul_u32_u24 v{vT[4]}, s{sstr}, v{vI3}",
             f"v_add_u32 v{vT[4]}, s{scol}, v{vT[4]}", f"s_lshl_b32 s{sT}, s{sstr}, 3",
             f"s_sub_u32 s{sT}, s{sT}, 1024", f"s_lshl_b32 s{sT2}, s{sT}, 1",
             f"v_and_b32 v{vT[3]}, 2, v{vI3}", f"v_xor_b32 v{vT[3]}, v{vT[3]}, v{i7}",
             f"v_lshl_add_u32 v{vDB[0]}, v{vT[3]}, 4, v{vT[4]}",
             f"v_xor_b32 v{vT[3]}, 4, v{vT[3]}", f"v_lshl_add_u32 v{vDB[1]}, v{vT[3]}, 4, v{vT[4]}",
             f"v_add_u32 v{vDB[1]}, s{sT}, v{vDB[1]}",
             f"v_add_u32 v{vDB[2]}, s{sT2}, v{vDB[0]}", f"v_add_u32 v{vDB[3]}, s{sT2}, v{vDB[1]}",
             f"s_lshl_b32 s{sBst}, s{sstr}, 5"]
        return [P(x) for x in L]

    p(f"v_lshrrev_b32 v{vI3}, 3, v{vLane}")
    p.add(a_voffs(2048))
    p(f"s_lshl_b32 s{sC2}, s{sW}, 7")
    p(f"s_mov_b32 s{sOut}, 8192")
    p.add(w_voffs(sC2, sOut))
    srd(p, SA, 62, 4194304)
    p(f"s_cmp_eq_u32 s{sIsV}, 0")
    p(f"s_cselect_b32 s36, s36, s38")
    p(f"s_cselect_b32 s37, s37, s39")
    srd(p, SB, 36, 8388608)
    p(f"s_lshl_b32 s{sA}, s{sRb}, 19")
    p(f"s_lshl_b32 s{sB}, s{sHead}, 9")
    p(f"s_lshl_b32 s{sMW}, s{sW}, 12")
    p(f"s_lshl_b32 s{sWA}, s{sW}, 13")
    p(f"s_add_u32 s{sWA}, s{sWA}, 65536")
    p(f"s_mov_b32 s{sMA}, s{sWA}")
    amod = [ckvmod]

    def dmaW(add, tags=()):
        L = []
        for q in range(4):
            it = []
            if q == 0:
                it.append(P(f"s_add_u32 m0, s{sMW}, {add}"))
            it.append(P(f"buffer_load_dwordx4 v{vDB[q]}, s[{SB}:{SB+3}], s{sB} offen offset:{q * 1024} lds", tags))
            if q == 3:
                it.append(P(f"s_add_u32 s{sB}, s{sB}, s{sBst}"))
            L.append(it)
        return L

    def dmaA(half, tags=()):
        L = []
        for q in range(4):
            it = []
            if q == 0:
                it.append(P(f"s_add_u32 m0, s{sMA}, {half * 4096}"))
            it.append(P(f"buffer_load_dwordx4 v{vDA[4 * half + q]}, s[{SA}:{SA+3}], s{sA} offen offset:{q * 1024}{amod[0]} lds", tags))
            if q == 3 and half == 1:
                it.append(P(f"s_add_u32 s{sA}, s{sA}, 128"))
            L.append(it)
        return L

    p.add(dmaW(0, ('p0',)))
    p.add(dmaA(0, ('p0',)))
    p.add(dmaA(1, ('p0',)))
    ln_load(p, vLane, sW, vE)
    p.add(dmaW(16384))
    p(f"s_add_u32 s{sMA}, s{sMA}, 32768")
    p.add(dmaA(0))
    p.add(dmaA(1))
    p.add(dmaW(32768))
    p.add(dmaW(49152))
    p(f"s_add_u32 s{sMA}, s{sMA}, 32768")
    p.add(dmaA(0))
    if touch:
        p(f"s_lshl_b32 s{sT}, s2, 2")
        p(f"s_add_u32 s{sT}, s{sT}, s{sW}")
        p(f"v_lshlrev_b32 v{vT[0]}, 6, v{vLane}")
        p(f"s_lshl_b32 s{sT2}, s{sT}, 12")
        p.add(NT(f"buffer_load_dword v255, v{vT[0]}, s[{SA}:{SA+3}], s{sT2} offen"))
    r, g, f = vT[0], vT[1], vT[2]
    p(f"v_and_b32 v{r}, 15, v{vLane}")
    p(f"v_lshrrev_b32 v{g}, 4, v{vLane}")
    p(f"v_bfe_u32 v{f}, v{vLane}, 1, 3")
    p(f"s_lshl_b32 s{sT}, s{sWr}, 14")
    p(f"s_add_u32 s{sT}, s{sT}, 65536")
    for ks in range(2):
        t = vT[3]
        p(f"v_add_u32 v{t}, {4 * ks}, v{g}")
        p(f"v_xor_b32 v{t}, v{t}, v{f}")
        p(f"v_lshlrev_b32 v{t}, 4, v{t}")
        p(f"v_lshl_add_u32 v{t}, v{r}, 7, v{t}")
        p(f"v_add_u32 v{vA0[ks]}, s{sT}, v{t}")
        p(f"v_mov_b32 v{vA[ks]}, v{vA0[ks]}")
    t, t2 = vT[3], vT[4]
    p(f"v_and_b32 v{t}, 1, v{g}")
    p(f"v_lshlrev_b32 v{t}, 9, v{t}")
    p(f"v_lshrrev_b32 v{t2}, 1, v{g}")
    p(f"v_lshl_add_u32 v{vT[5]}, v{r}, 4, v{t}")
    p(f"v_lshl_add_u32 v{vStQ}, v{t2}, 10, v{vT[5]}")
    p(f"v_lshl_add_u32 v{vT[5]}, v{t2}, 13, v{vT[5]}")
    p(f"v_and_b32 v{t}, 8, v{vLane}")
    p(f"v_lshl_add_u32 v{vSt}, v{t}, 4, v{vStQ}")
    p(f"s_cmp_lg_u32 s{sIsV}, 0")
    p(f"s_cselect_b64 vcc, -1, 0")
    p(f"v_cndmask_b32 v{vSt}, v{vSt}, v{vT[5]}, vcc")
    r4, c = vT[0], vT[3]
    p(f"v_bfe_u32 v{r4}, v{vLane}, 2, 2")
    p(f"v_and_b32 v{c}, 3, v{vLane}")
    t, t2 = vT[4], vT[5]
    p(f"v_lshl_add_u32 v{t}, v{g}, 3, v{r4}")
    p(f"v_lshlrev_b32 v{t}, 7, v{t}")
    p(f"v_lshl_add_u32 v{t}, v{c}, 3, v{t}")
    p(f"s_lshl_b32 s{sT}, s{sWc}, 13")
    p(f"v_add_u32 v{t}, s{sT}, v{t}")
    p(f"v_lshrrev_b32 v{t2}, 1, v{r4}")
    p(f"v_and_b32 v{c}, 1, v{g}")
    p(f"v_lshl_add_u32 v{t2}, v{c}, 1, v{t2}")
    for nb in range(4):
        p(f"v_xor_b32 v{c}, {nb}, v{t2}")
        p(f"v_lshl_add_u32 v{vB[nb]}, v{c}, 5, v{t}")
    srd_off(p, SO, 58, WS_ML, 256 * 1024)
    p(f"v_lshlrev_b32 v{vT[0]}, 2, v0")
    p(f"v_mov_b32 v{vT[1]}, 0")
    p(f"s_lshl_b32 s{sT}, s2, 10")
    p(f"buffer_store_dword v{vT[1]}, v{vT[0]}, s[{SO}:{SO+3}], s{sT} offen")
    srd(p, SD, 56, 256)
    p(f"s_mov_b32 s{sAr}, 0")
    p(f"s_mov_b32 s{sKt}, 1")
    p(f"s_cmp_eq_u32 s{sW}, 0")
    p(f"s_cselect_b32 s{sEv}, 3, 0")
    p(f"s_lshl_b32 s{sT}, 128, s{sIsV}")
    p(f"s_lshr_b32 s{sX}, 2048, s{sIsV}")
    p(f"s_mul_i32 s{sZ}, s{sX}, 3")
    p(f"s_sub_u32 s{sZ}, 16384, s{sZ}")
    p(f"v_add_u32 v{vSt1}, s{sT}, v{vSt}")

    def ln_items():
        c = Col()
        ln_compute(c, vLane, vE, 58, rowmajor=True)
        G, cur = [], None
        for it in c.L:
            if it.text.startswith("s_mov_b32 exec_hi, 0x"):
                cur = []
            elif it.text.startswith("s_mov_b32 exec_hi, -1"):
                for k in range(0, len(cur), 4):
                    G.append([P("s_mov_b32 exec_hi, 0x00ffffff")] + cur[k:k + 4] + [P("s_mov_b32 exec_hi, -1")])
                cur = None
            elif cur is not None:
                cur.append(it)
            else:
                G.append(it)
        return G

    def cread(par, i):
        return P(f"ds_read_b128 {v(fC(par, i), 4)}, v{vA[par]} offset:{i * 2048}")

    def wreads(par):
        L = []
        for j in range(8):
            off = par * 16384 + (j >> 2) * 4096
            L += [P(f"ds_read_b64_tr_b16 {v(fW(par, j), 2)}, v{vB[j & 3]} offset:{off}"),
                  P(f"ds_read_b64_tr_b16 {v(fW(par, j) + 2, 2)}, v{vB[j & 3]} offset:{off + 512}")]
        return L

    def advance():
        L = [f"s_add_u32 s{sMA}, s{sWA}, s{sAr}", f"s_add_u32 s{sAr}, s{sAr}, 32768",
             f"s_cmp_eq_u32 s{sAr}, 98304", f"s_cselect_b32 s{sAr}, 0, s{sAr}"]
        L += [f"v_add_u32 v{vA[k]}, s{sAr}, v{vA0[k]}" for k in range(2)]
        L += [f"v_xor_b32 v{x}, 0x8000, v{x}" for x in vB]
        return [P(x) for x in L]

    def mf(par, isV, i, j, first=False):
        c_, w_ = v(fC(par, i), 4), v(fW(par, j), 4)
        x, y = (c_, w_) if isV else (w_, c_)
        return P(f"{MF16} {a(acc(i, j), 4)}, {x}, {y}, {'0' if first else a(acc(i, j), 4)}")

    def kfill(par, vm=16, dW=True, dA=True, rd=True, pre_extra=(), d0=None, dstep=None, cgran=8):
        d0 = dma0 if d0 is None else d0
        dstep = dma_step if dstep is None else dstep
        f = []
        if rd:
            f.append((bar, [P(f"s_waitcnt vmcnt({vm}) lgkmcnt(0)")] + ([] if nobar else [P("s_barrier")])))
            for n, it in enumerate(wreads(par ^ 1)):
                f.append((wr0 + n * wr_step, it))
            f.append((wr0 + 1, cread(par ^ 1, 7)))
            for i in range(7):
                f.append((min((i * 8 // cgran + 1) * cgran - 1 + (i * 8 % cgran) // 8, 63), cread(par ^ 1, i)))
        dl = []
        if dW:
            dl += dmaW(par * 16384)
            if par == 1:
                dl[-1].append(P(f"s_xor_b32 s{sMW}, s{sMW}, 0x8000"))
        if dA:
            dl += dmaA(par ^ 1)
        for d, it in enumerate(dl):
            f.append((d0 + d * dstep - 1, it[:1] if d % 4 == 0 else []))
            f.append((d0 + d * dstep, it[1:2] if d % 4 == 0 else it[:1]))
            f.append((d0 + d * dstep + 1, it[2:] if d % 4 == 0 else it[1:]))
        if rd and par == 0:
            f += place(f, advance(), 56 if cgran == 8 else 63, 63)
        return f

    def nvm(items):
        return sum(1 for x in flat(items) if isinstance(x, Ins) and x.kind in ('dma', 'vstore', 'vload'))

    def kstep(par, isV, first=False, extra=(), pl=(), **kw):
        f = kfill(par, **kw) + list(extra)
        for items, lo, hi in pl:
            f += place(f, items, lo, hi)
        L = merge([mf(par, isV, i, j, first) for i in range(8) for j in range(8)], f)
        p.add(L)
        return nvm(L)

    def sidecall(cond, body):
        lb, lr = p.newlabel('sd'), p.newlabel('sdr')
        side.append([Label(lb)] + body + [P(f"s_branch {lr}")])
        return [P(cond), P(f"s_cbranch_scc1 {lb}"), Label(lr)]

    def signal():
        return [P(f"v_mov_b32 v{vT[0]}, 1"), P(f"s_mov_b64 exec, 1"),
                P(f"buffer_store_byte v{vT[0]}, off, s[{SD}:{SD+3}], s2 sc1"), P(f"s_mov_b64 exec, -1")]

    def poll_issue():
        return [P(f"v_and_b32 v{vT[0]}, 7, v{vLane}"), P(f"v_lshlrev_b32 v{vT[0]}, 2, v{vT[0]}"),
                P(f"s_lshl_b32 s{sT}, s{sRb}, 5"),
                NT(f"buffer_load_dword v{vPoll}, v{vT[0]}, s[{SD}:{SD+3}], s{sT} offen sc1")]

    def touch_setup():
        l1, l2, l3, lj = (p.newlabel(x) for x in ('t1', 't2', 't3', 'tj'))
        t, t2 = vT[0], vT[1]
        sb, sLg, sRs = 46, sC2, sOut
        L = [f"s_cmp_ge_u32 s{sW}, 2", f"s_cbranch_scc1 {l2}",
             f"s_cmp_lg_u32 s{sIsV}, 0", f"s_cbranch_scc1 {l1}",
             f"s_mov_b64 s[{sb}:{sb+1}], s[68:69]", f"s_lshl_b32 s{sT}, s{sRb}, 1", f"s_add_u32 s{sT}, s{sT}, s{sW}",
             f"s_mul_i32 s{sT}, s{sT}, {28 * 8192}", f"s_lshl_b32 s{sT2}, s{sHead}, 9", f"s_add_u32 s{sT}, s{sT}, s{sT2}",
             f"s_mov_b32 s{ST+2}, {27 * 8192 + 512}", f"s_mov_b32 s{sLg}, 2", f"s_mov_b32 s{sRs}, 8192",
             f"s_mov_b32 s{sTs}, {3 * 8192}", f"s_branch {lj}", Label(l1),
             f"s_cmp_eq_u32 s{sW}, 0", f"s_cselect_b64 s[{sb}:{sb+1}], s[72:73], s[74:75]",
             f"s_mul_i32 s{sT}, s{sRb}, {56 * 3584}", f"s_and_b32 s{sT2}, s2, 15", f"s_min_u32 s{sT2}, s{sT2}, 13",
             f"s_lshl_b32 s{sT2}, s{sT2}, 8", f"s_add_u32 s{sT}, s{sT}, s{sT2}",
             f"s_mov_b32 s{ST+2}, {55 * 3584 + 256}", f"s_mov_b32 s{sLg}, 1", f"s_mov_b32 s{sRs}, 3584",
             f"s_mov_b32 s{sTs}, {6 * 3584}", f"s_branch {lj}", Label(l2),
             f"s_lshl_b32 s{sT}, s{sRb}, 4", f"s_and_b32 s{sT2}, s2, 15", f"s_add_u32 s{sT}, s{sT}, s{sT2}",
             f"s_lshl_b32 s{sT}, s{sT}, 1", f"s_add_u32 s{sT}, s{sT}, s{sWc}",
             f"s_mov_b32 s{ST+2}, {112 * 128}", f"s_cmp_eq_u32 s{sIsV}, 0",
             f"s_cselect_b64 s[{sb}:{sb+1}], s[70:71], s[4:5]", f"s_cselect_b32 s{ST+2}, s{ST+2}, {49 * 128}",
             f"s_mul_i32 s{sT}, s{sT}, s{ST+2}", f"s_mov_b32 s{sLg}, 0", f"s_mov_b32 s{sRs}, 128",
             f"s_mov_b32 s{sTs}, {12 * 128}", Label(lj),
             f"s_add_u32 s{ST}, s{sb}, s{sT}", f"s_addc_u32 s{ST+1}, s{sb+1}, 0", f"s_and_b32 s{ST+1}, s{ST+1}, 0xffff",
             f"s_mov_b32 s{ST+3}, 0x00020000", f"s_mov_b32 s{sTo}, 0",
             f"v_mul_u32_u24 v{t}, 3, v{vLane}", f"v_lshrrev_b32 v{t}, 4, v{t}",
             f"v_lshrrev_b32 v{t2}, s{sLg}, v{t}", f"v_mul_u32_u24 v{vTch}, s{sRs}, v{t2}",
             f"v_lshlrev_b32 v{t2}, s{sLg}, v{t2}", f"v_sub_u32 v{t}, v{t}, v{t2}",
             f"v_lshl_add_u32 v{vTch}, v{t}, 7, v{vTch}"]
        return [P(x) if isinstance(x, str) else x for x in L]

    def touch_step():
        return [NT(f"buffer_load_dword v255, v{vTch}, s[{ST}:{ST+3}], s{sTo} offen"), P(f"s_add_u32 s{sTo}, s{sTo}, s{sTs}")]

    def w_switch(isV):
        if not isV:
            return [P(f"s_mov_b32 s{SB}, s68"), P(f"s_and_b32 s{SB+1}, s69, 0xffff"), P(f"s_mov_b32 s{SB+2}, {448 * 8192}"),
                    P(f"s_lshl_b32 s{sB}, s{sHead}, 9")]
        return [P(f"s_cmp_eq_u32 s{sWc}, 0"), P(f"s_cselect_b32 s{SB}, s72, s74"), P(f"s_cselect_b32 s{SB+1}, s73, s75"),
                P(f"s_and_b32 s{SB+1}, s{SB+1}, 0xffff"),
                P(f"s_and_b32 s{sC2}, s2, 15"), P(f"s_cmp_lt_u32 s{sC2}, 14"),
                P(f"s_cselect_b32 s{SB+2}, {448 * 3584}, 0"),
                P(f"s_lshl_b32 s{sB}, s{sC2}, 8"), P(f"s_lshl_b32 s{sC2}, s{sWr}, 7"),
                P(f"s_mov_b32 s{sOut}, 3584")] + w_voffs(sC2, sOut)

    def a_switch():
        ok, spin = p.newlabel('pok'), p.newlabel('spin')
        side.append([Label(spin), P(f"s_add_u32 s{sKt}, s{sKt}, 1"), P(f"s_cmp_gt_u32 s{sKt}, 0x40000"),
                     P(f"s_cbranch_scc1 {ok}"), P("s_sleep 4")] + poll_issue() +
                    [P("s_waitcnt vmcnt(0)"), P(f"v_cmp_ne_u32 vcc, 0x01010101, v{vPoll}"),
                     P(f"s_cbranch_vccnz {spin}"), P(f"s_branch {ok}")])
        L = [[P(f"v_cmp_ne_u32 vcc, 0x01010101, v{vPoll}"), P(f"s_cbranch_vccnz {spin}"), Label(ok)]]
        L += [P(f"s_add_u32 s{SA}, s58, {WS_XN}"), P(f"s_addc_u32 s{SA+1}, s59, 0"),
              P(f"s_and_b32 s{SA+1}, s{SA+1}, 0xffff"), P(f"s_mov_b32 s{SA+2}, {2048 * 896}"),
              P(f"s_mul_i32 s{sA}, s{sRb}, {256 * 896}")] + a_voffs(896)
        return L

    def out_setup(isV):
        c = Col()
        c(f"s_lshl_b32 s{sT}, s{sIsV}, 24")
        srd_off(c, SO, 58, f"s{sT}", KV_BYTES)
        c(f"s_lshl_b32 s{sT}, s{sHead}, 6")
        c(f"s_lshl_b32 s{sT2}, s{sRb}, 3")
        c(f"s_add_u32 s{sT}, s{sT}, s{sT2}")
        c(f"s_lshl_b32 s{sT2}, s{sWr}, 2")
        c(f"s_add_u32 s{sT}, s{sT}, s{sT2}")
        c(f"s_lshl_b32 s{sOut}, s{sT}, 14")
        c(f"s_mul_i32 s{sT2}, s{sWc}, {4096 if isV else 8192}")
        c(f"s_add_u32 s{sOut}, s{sOut}, s{sT2}")
        return c.L

    if wtouch:
        p.add(touch_setup())
    p.wait_tags('p0')
    p("s_barrier")
    stp.mark(0)
    p.add([cread(0, 0)] + wreads(0) + [cread(0, i) for i in range(1, 8)])
    lV, lT2 = p.newlabel('vpath'), p.newlabel('t2')
    p(f"s_cmp_lg_u32 s{sIsV}, 0")
    p(f"s_cbranch_scc1 {lV}")

    def loop(isV):
        amod[0] = ckvmod
        G = ln_items()
        h = len(G) // 2
        npre = 1 + (1 if touch else 0)
        kstep(0, isV, first=True, vm=20 + npre, pl=[(G[:h], 8, 63)])
        kstep(1, isV, vm=16 + npre, pl=[(G[h:], 0, 63)])
        stp.mark(4)
        lab = p.newlabel('loop')
        p.raw(".p2align 6")
        p.label(lab)
        ev0 = sidecall(f"s_cmp_eq_u32 s{sKt}, s{sEv}", signal())
        vm = 17 if wtouch else 16
        ex = list(zip([bar + 1, 9], touch_step())) if wtouch else []
        kstep(0, isV, vm=vm, extra=ex, pl=[([ev0], 6, 20)], dW=not nodma, dA=not nodma)
        kstep(1, isV, vm=vm, pl=[([P(f"s_add_u32 s{sKt}, s{sKt}, 1")], 56, 60), ([P(f"s_cmp_lt_u32 s{sKt}, 12")], 62, 62)],
              dW=not nodma, dA=not nodma)
        p(f"s_cbranch_scc1 {lab}")
        dW1 = dma0 + 3 * dma_step + 2
        for k in range(24, 32):
            pl = []
            if k == 24:
                pl = [(poll_issue(), 6, 20)]
            if k == 27:
                amod[0] = " sc1"
                pl = [(a_switch(), bar + 1, dma0 + 4 * dma_step - 2), (w_switch(isV), dma0 + 4 * dma_step - 1, 63)]
            if k == 30:
                pl = [(out_setup(isV), 2, 50)]
            kstep(k & 1, isV, pl=pl)

    def epi1(isV):
        stp.mark(1)
        main, f = [], kfill(0, cgran=16 if isV else 8)
        n = 0
        pairs = [(y, x) for y in range(4) for x in range(8)] if isV else [(x, y) for x in range(8) for y in range(4)]
        for (u, w_) in pairs:
            e = vR8[n & 1]
            if isV:
                blocks = [(2 * u, w_), (2 * u + 1, w_)]
                sn = n
            else:
                blocks = [(u, 2 * w_), (u, 2 * w_ + 1)]
                sn = 8 * (u >> 1) + 2 * w_ + (u & 1)
            rdl = [P(f"v_accvgpr_read_b32 v{e + 4 * k + r}, a{acc(*blocks[k]) + r}") for k in range(2) for r in range(4)]
            f.append((2 * n - 1, rdl))
            main += [mf(0, False, *blocks[0], first=True), mf(0, False, *blocks[1], first=True)]
            f.append((2 * n, [P(f"v_cvt_pk_bf16_f32 v{hold(sn) + r}, v{e + 2 * r}, v{e + 1 + 2 * r}") for r in range(4)]))
            n += 1
        f += [(18 + 6 * k, dstore(k)) for k in range(NIMM)]
        L = merge(main, f)
        p.add(L)
        return nvm(L)

    def dstore(sn):
        L = [P(f"buffer_store_dwordx4 {v(hold(sn), 4)}, v{vSt1 if sn & 1 else vSt}, s[{SO}:{SO+3}], s{sOut} offen{stmod}")]
        if sn & 1:
            L.append(P(f"s_add_u32 s{sOut}, s{sOut}, s{sZ if sn & 7 == 7 else sX}"))
        return L

    loop(False)
    epi1(False)
    p(f"s_branch {lT2}")
    p.label(lV)
    loop(True)
    cnt = {31: 8, 32: epi1(True)}
    p(f"s_and_b32 s{sC2}, s2, 15")
    p(f"s_cmp_ge_u32 s{sC2}, 14")
    lEnd, lRep = p.newlabel('end'), p.newlabel('rep')
    p(f"s_cbranch_scc1 {lRep}")
    p.label(lT2)
    stp.mark(2)
    DS = spread(list(range(NIMM, 32)), st_first, st_last)
    for k in range(33, 46):
        mine = [sn for kk, sn in DS if kk == k]
        ex = [(dma0 + 3 + dma_step * (2 * q + 1), dstore(sn)) for q, sn in enumerate(mine)]
        cnt[k] = kstep(k & 1, False, vm=cnt[k - 1] + cnt[k - 2], dW=(k + 4 <= 45), dA=(k <= 40), rd=(k < 45), extra=ex)
    stp.mark(3)
    lF = p.newlabel('ffn')
    p(f"s_lshl_b32 s{sT2}, s{sRb}, 3")
    p(f"s_lshl_b32 s{sT}, s{sWr}, 2")
    p(f"s_add_u32 s{sT2}, s{sT2}, s{sT}")
    p(f"s_cmp_lg_u32 s{sIsV}, 0")
    p(f"s_cbranch_scc1 {lF}")
    srd_off(p, SO, 58, WS_Q, 16 * MB)
    p(f"s_lshl_b32 s{sT}, s{sHead}, 6")
    p(f"s_add_u32 s{sT}, s{sT}, s{sT2}")
    p(f"s_lshl_b32 s{sOut}, s{sT}, 14")
    p(f"s_lshl_b32 s{sT2}, s{sWc}, 13")
    p(f"s_add_u32 s{sOut}, s{sOut}, s{sT2}")
    p(f"s_mov_b32 s{sSc}, {f2u(LOG2E / 16)}")
    p(f"s_mov_b32 s{sSc+1}, {f2u(LOG2E / 16)}")
    n = 0
    for x in range(8):
        for y in range(4):
            e = FR + (n % 4) * 12
            n += 1
            off = (x >> 1) * 16384 + y * 2048 + (x & 1) * 256
            for k in range(2):
                for r in range(4):
                    p(f"v_accvgpr_read_b32 v{e + 4 + 4 * k + r}, a{acc(x, 2 * y + k) + r}")
            for r in range(4):
                p(f"v_pk_mul_f32 {v(e + 4 + 2 * r, 2)}, {v(e + 4 + 2 * r, 2)}, s[{sSc}:{sSc+1}]")
            for r in range(4):
                p(f"v_cvt_pk_bf16_f32 v{e + r}, v{e + 4 + 2 * r}, v{e + 5 + 2 * r}")
            p(f"s_add_u32 s{sT}, s{sOut}, {off & ~4095}")
            p(f"buffer_store_dwordx4 {v(e, 4)}, v{vStQ}, s[{SO}:{SO+3}], s{sT} offen offset:{off & 4095}{st2mod}")
    p(f"s_branch {lEnd}")
    p.label(lF)
    srd_off(p, SO, 58, WS_H, H_BYTES)
    p(f"s_mul_i32 s{sOut}, s{sT2}, {112 * 1024}")
    p(f"s_and_b32 s{sT}, s2, 15")
    p(f"s_lshl_b32 s{sT}, s{sT}, 13")
    p(f"s_add_u32 s{sOut}, s{sOut}, s{sT}")
    p(f"s_lshl_b32 s{sT}, s{sWc}, 12")
    p(f"s_add_u32 s{sOut}, s{sOut}, s{sT}")
    p(f"s_mov_b32 s{sSc}, {f2u(-LOG2E)}")
    p(f"s_mov_b32 s{sSc+1}, {f2u(-LOG2E)}")
    p(f"s_mov_b32 s{sSc+2}, 1.0")
    p(f"s_mov_b32 s{sSc+3}, 1.0")
    n = 0
    for x in range(8):
        for y in range(2):
            e = FR + (n % 3) * 32
            n += 1
            G, U, E = e + 8, e + 16, e + 24
            off = (x >> 1) * 112 * 1024 + y * 2048 + (x & 1) * 256
            for k in range(2):
                for r in range(4):
                    p(f"v_accvgpr_read_b32 v{G + 4 * k + r}, a{acc(x, 2 * y + k) + r}")
            for r in range(4):
                p(f"v_pk_mul_f32 {v(E + 2 * r, 2)}, {v(G + 2 * r, 2)}, s[{sSc}:{sSc+1}]")
            for k in range(2):
                for r in range(4):
                    p(f"v_exp_f32 v{E + 4 * k + r}, v{E + 4 * k + r}")
                    p(f"v_accvgpr_read_b32 v{U + 4 * k + r}, a{acc(x, 4 + 2 * y + k) + r}")
            for r in range(4):
                p(f"v_pk_add_f32 {v(E + 2 * r, 2)}, {v(E + 2 * r, 2)}, s[{sSc+2}:{sSc+3}]")
            for r in range(4):
                p(f"v_rcp_f32 v{E + 2 * r}, v{E + 2 * r}")
                p(f"v_rcp_f32 v{E + 2 * r + 1}, v{E + 2 * r + 1}")
                p(f"v_pk_mul_f32 {v(G + 2 * r, 2)}, {v(G + 2 * r, 2)}, {v(U + 2 * r, 2)}")
            for r in range(4):
                p(f"v_pk_mul_f32 {v(G + 2 * r, 2)}, {v(G + 2 * r, 2)}, {v(E + 2 * r, 2)}")
            for r in range(4):
                p(f"v_cvt_pk_bf16_f32 v{e + r}, v{G + 2 * r}, v{G + 2 * r + 1}")
            p(f"s_add_u32 s{sT}, s{sOut}, {off & ~4095}")
            p(f"buffer_store_dwordx4 {v(e, 4)}, v{vStQ}, s[{SO}:{SO+3}], s{sT} offen offset:{off & 4095}{st2mod}")
    p(f"s_branch {lEnd}")
    p.label(lRep)
    for sn in range(NIMM, 32):
        p.add(dstore(sn))
    p(f"s_lshl_b32 s{sHead}, s{sRb}, 1")
    p(f"s_and_b32 s{sT}, s2, 1")
    p(f"s_add_u32 s{sHead}, s{sHead}, s{sT}")
    srd(p, SB, 70, 4096 * 896)
    p(f"s_mul_i32 s{sT}, s{sHead}, {7 * 16384}")
    p(f"s_add_u32 s{sT}, s{sT}, {WS_WOE}")
    srd_off(p, SO, 58, f"s{sT}", 7 * 16384)
    p(f"s_sub_u32 s{sT}, s{sT}, {WS_WOE - WS_WOO}")
    srd_off(p, SA, 58, f"s{sT}", 7 * 16384)
    p(f"s_lshl_b32 s{sB}, s{sHead}, 2")
    p(f"s_add_u32 s{sB}, s{sB}, s{sW}")
    p(f"s_mul_i32 s{sB}, s{sB}, {64 * 896}")
    p(f"s_mul_i32 s{sMW}, s{sW}, 28672")
    t, t2 = vT[3], vT[4]
    p(f"v_and_b32 v{i7}, 7, v{vLane}")
    p(f"v_and_b32 v{t}, 2, v{vI3}")
    p(f"v_lshlrev_b32 v{t}, 1, v{t}")
    p(f"v_xor_b32 v{t}, v{t}, v{i7}")
    p(f"v_mul_u32_u24 v{t2}, 896, v{vI3}")
    p(f"v_lshl_add_u32 v{vDB[0]}, v{t}, 4, v{t2}")
    for q in range(1, 4):
        p(f"v_add_u32 v{vDB[q]}, {q * (8 * 896 - 1024)}, v{vDB[0]}")
    hf, r4, g1, c = vT[0], vT[1], vT[2], vT[5]
    p(f"v_lshrrev_b32 v{hf}, 5, v{vLane}")
    p(f"v_bfe_u32 v{r4}, v{vLane}, 2, 2")
    p(f"v_bfe_u32 v{g1}, v{vLane}, 4, 1")
    p(f"v_lshl_add_u32 v{t}, v{hf}, 2, v{r4}")
    p(f"v_lshlrev_b32 v{t}, 7, v{t}")
    p(f"v_lshl_add_u32 v{t}, v{g1}, 5, v{t}")
    p(f"v_and_b32 v{c}, 1, v{vLane}")
    p(f"v_lshl_add_u32 v{t}, v{c}, 4, v{t}")
    p(f"v_bfe_u32 v{c}, v{vLane}, 1, 1")
    p(f"v_lshl_add_u32 v{t}, v{c}, 3, v{t}")
    p(f"v_add_u32 v{t}, s{sMW}, v{t}")
    p(f"v_lshrrev_b32 v{t2}, 1, v{r4}")
    p(f"v_lshl_add_u32 v{vB[0]}, v{t2}, 6, v{t}")
    p(f"v_xor_b32 v{t2}, 1, v{t2}")
    p(f"v_lshl_add_u32 v{vB[1]}, v{t2}, 6, v{t}")
    p(f"v_lshlrev_b32 v{vSt}, 4, v{vLane}")
    p(f"s_lshl_b32 s{sOut}, s{sW}, 12")
    p(f"s_waitcnt vmcnt({32 - NIMM}) lgkmcnt(0)")
    p("s_barrier")
    for ps in range(2):
        for ct in range(7):
            p(f"s_add_u32 m0, s{sMW}, {ct * 4096}")
            p(f"s_add_u32 s{sT}, s{sB}, {ps * 32 * 896 + ct * 128}")
            for q in range(4):
                p(f"buffer_load_dwordx4 v{vDB[q]}, s[{SB}:{SB+3}], s{sT} offen offset:{q * 1024} lds", tags=(f"r{ct}",))
        for ct in range(7):
            p.wait_tags(f"r{ct}")
            for nb in range(2):
                for dl in range(2):
                    e = FR + (ct * 4 + nb * 2 + dl) * 4
                    p(f"ds_read_b64_tr_b16 {v(e, 2)}, v{vB[nb]} offset:{ct * 4096 + dl * 2048}")
                    p(f"ds_read_b64_tr_b16 {v(e + 2, 2)}, v{vB[nb]} offset:{ct * 4096 + dl * 2048 + 1024}")
        for ct in range(7):
            p(f"s_add_u32 s{sT}, s{sOut}, {ct * 16384}")
            for nb in range(2):
                for dl in range(2):
                    e = FR + (ct * 4 + nb * 2 + dl) * 4
                    sr = SA if nb else SO
                    p(f"buffer_store_dwordx4 {v(e, 4)}, v{vSt}, s[{sr}:{sr+3}], s{sT} offen offset:{(2 * ps + dl) * 1024}{st2mod}")
    p.label(lEnd)
    stp.finish()
    p.label(done)
    p("s_endpgm")
    for b in side:
        p.add(b)
    return p
```

```python
from common import *

MF = "v_mfma_f32_32x32x16_bf16"
M16 = "v_mfma_f32_16x16x32_bf16"


def flat(x):
    if isinstance(x, (list, tuple)):
        return [z for y in x for z in flat(y)]
    return [x]


NEG_BIG = f2u(-1.0e30)
THRESH = f2u(2.0 ** 24)
S_BYTES = 16 * 64 * 28 * 1024
STREAM_BYTES = 34 * MB


def gen_k2n(name="attn_kernel", stamp=False, LA=8, vpos=(17, 19, 21, 23), kpos=(25, 27, 29, 31), ex=(3, 14), chk=16,
            cv=(18, 26), wait2=False, smod=" sc1", sig_slot=20, x16=False):
    p = Prog(name)
    st = Stamps(p, stamp, 1)
    vLane, vL16, vL16h, vDK, vRW, vNegM, vBig, vLs, vRWu = 1, 2, 3, 4, 5, 6, 7, 8, 9
    vPs0, vPs1, vMx, vMx2, vML, vI = 10, 11, 12, 13, 14, 16
    vL8, vInv = 54, 55
    vT = list(range(24, 54))
    vP, vC, vE, vS, vO = 56, 64, 80, [96, 112], 128
    aQ, aR, aPO = 0, 64, 128
    def O(db): return vO + 16 * db
    def ring(n): return aR + 4 * (n % 16)
    sW, sKind, sHead, sRb, sRem, sT, sT2, sT3 = 3, 36, 37, 38, 39, 40, 41, 42
    sMaskAt, sSig, sWb, sKo, sVo, sQo, sOut = 43, 44, 45, 46, 47, 48, 49
    sKend, sKnx, sVend, sVnx, sEnd2, sNx2, sU, sPo, sRem2, sMl = 50, 51, 60, 61, 62, 63, 64, 65, 66, 67
    sMk = [52, 54, 56, 58]
    SK, SV, SQ, SO, SP, SM = 8, 12, 16, 20, 24, 32
    FULL, PART, MERGE = 0, 1, 2
    side = []

    done = p.newlabel('done')
    p(f"s_cmp_ge_u32 s2, 256")
    p(f"s_cbranch_scc1 {done}")
    p("s_load_dwordx2 s[30:31], s[0:1], 96")
    st.start()
    p(f"v_and_b32 v{vLane}, 63, v0")
    p(f"v_lshrrev_b32 v{vT[0]}, 6, v0")
    p(f"v_readfirstlane_b32 s{sW}, v{vT[0]}")
    p(f"v_lshlrev_b32 v{vL16}, 4, v{vLane}")
    p(f"v_lshlrev_b32 v{vDK}, 4, v0")
    p(f"v_and_b32 v{vDK}, 0xc00, v{vDK}")
    p(f"v_lshl_add_u32 v{vDK}, v{vDK}, 2, v{vL16}")
    p(f"s_bfe_u32 s{sT2}, s2, 0x10003")
    p(f"s_and_b32 s{sHead}, s2, 7")
    p(f"s_lshl_b32 s{sHead}, s{sHead}, 1")
    p(f"s_add_u32 s{sHead}, s{sHead}, s{sT2}")
    p(f"s_lshr_b32 s{sU}, s2, 4")
    p(f"s_lshl_b32 s{sT3}, s{sHead}, 20")
    p(f"s_add_u32 s{sT}, s{sU}, 1")
    p(f"s_lshl_b32 s{sT}, s{sT}, 16")
    p(f"s_add_u32 s{sEnd2}, s{sT3}, s{sT}")
    p(f"s_mul_i32 s{sNx2}, s{sHead}, {7 * 16384}")
    p(f"s_add_u32 s{sNx2}, s{sNx2}, {WS_WOO}")
    p(f"s_sub_u32 s{sT}, 15, s{sU}")
    p(f"s_mov_b32 s{sRem2}, s{sU}")
    p(f"s_mov_b32 s{sKind}, {FULL}")
    p(f"s_mov_b32 s{sMaskAt}, 0")
    p(f"s_mov_b32 s{sRem}, s{sU}")
    p(f"s_mov_b32 s{sRb}, s{sU}")
    p(f"s_mov_b32 s{sKo}, s{sT3}")
    p(f"s_mov_b32 s{sKend}, s{sEnd2}")
    p(f"s_mov_b32 s{sKnx}, s{sNx2}")
    p(f"s_sub_u32 s{sT2}, s{sEnd2}, {36 * 16384}")
    p(f"s_cmp_ge_u32 s{sU}, 9")
    p(f"s_cselect_b32 s{sKind}, {MERGE}, s{sKind}")
    p(f"s_cselect_b32 s{sRem}, 8, s{sRem}")
    p(f"s_cselect_b32 s{sKo}, s{sT2}, s{sKo}")
    p(f"s_cselect_b32 s{sPo}, s{sT}, s{sU}")
    p(f"s_sub_u32 s{sT2}, 7, s{sU}")
    p(f"s_lshl_b32 s{sT2}, s{sT2}, 16")
    p(f"s_add_u32 s{sT2}, s{sT2}, s{sT3}")
    p(f"s_sub_u32 s{sQo}, 6, s{sU}")
    p(f"s_cmp_le_u32 s{sU}, 6")
    p(f"s_cselect_b32 s{sKind}, {PART}, s{sKind}")
    p(f"s_cselect_b32 s{sMaskAt}, -1, s{sMaskAt}")
    p(f"s_cselect_b32 s{sRem}, s{sQo}, s{sRem}")
    p(f"s_cselect_b32 s{sRb}, s{sT}, s{sRb}")
    p(f"s_cselect_b32 s{sKend}, s{sT2}, s{sKend}")
    p(f"s_cselect_b32 s{sKnx}, s{sT3}, s{sKnx}")
    p(f"s_mov_b32 s{sVo}, s{sKo}")
    p(f"s_mov_b32 s{sVend}, s{sKend}")
    p(f"s_mov_b32 s{sVnx}, s{sKnx}")
    p(f"s_lshl_b32 s{sWb}, s{sW}, 12")
    p(f"s_lshl_b32 s{sRb}, s{sRb}, 2")
    p(f"s_add_u32 s{sRb}, s{sRb}, s{sW}")
    p(f"s_lshl_b32 s{sQo}, s{sRb}, 14")
    p(f"s_add_u32 s{sQo}, s{sQo}, s{sT3}")
    srd(p, SK, 30, STREAM_BYTES)
    srd_off(p, SQ, 30, WS_Q, 16 * MB)
    srd_off(p, SV, 30, WS_V, STREAM_BYTES)

    def q_load(ds):
        L = [P(f"buffer_load_dwordx4 {a(aQ + 4 * ds, 4)}, v{vL16}, s[{SQ}:{SQ+3}], s{sQo} offen offset:{(ds & 3) * 1024}")]
        if ds & 3 == 3:
            L.append(P(f"s_add_u32 s{sQo}, s{sQo}, 4096"))
        return L

    def kv_dma(isV, tile, wrap=True):
        slot = (4 if isV else 0) + tile % 4
        so, sr, se, sn = (sVo, SV, sVend, sVnx) if isV else (sKo, SK, sKend, sKnx)
        L = []
        for q in range(4):
            it = []
            if q == 0:
                it.append(P(f"s_add_u32 m0, s{sWb}, {slot * 16384}"))
            it.append(P(f"buffer_load_dwordx4 v{vDK}, s[{sr}:{sr+3}], s{so} offen offset:{q * 1024} lds",
                        tags=(f"L{slot}",)))
            if q == 3:
                it.append(P(f"s_add_u32 s{so}, s{so}, 16384"))
                if tile % 4 == 3 and wrap:
                    it += [P(f"s_cmp_eq_u32 s{so}, s{se}"), P(f"s_cselect_b32 s{so}, s{sn}, s{so}"),
                           P(f"s_cselect_b32 s{se}, s{sEnd2}, s{se}"), P(f"s_cselect_b32 s{sn}, s{sNx2}, s{sn}")]
            L.append(it)
        return L

    p.add(kv_dma(0, 0))
    for ds in range(16):
        p.add(q_load(ds))
    p.add(kv_dma(0, 1))
    p.add(kv_dma(1, 0))
    p.add(kv_dma(0, 2))
    p.add(kv_dma(1, 1))
    p.add(kv_dma(0, 3))
    p(f"v_add_u32 v{vL16h}, 0x10000, v{vL16}")
    p(f"v_lshlrev_b32 v{vL8}, 3, v{vLane}")
    srd_off(p, SO, 30, WS_S, S_BYTES)
    srd_off(p, SP, 30, WS_PO, 8 * MB)
    srd_off(p, SM, 30, WS_ML, 256 * 1024)
    p(f"s_lshl_b32 s{sT}, s{sHead}, 3")
    p(f"s_and_b32 s{sPo}, s{sPo}, 7")
    p(f"s_add_u32 s{sPo}, s{sPo}, s{sT}")
    p(f"s_lshl_b32 s{sPo}, s{sPo}, 2")
    p(f"s_add_u32 s{sPo}, s{sPo}, s{sW}")
    p(f"s_lshl_b32 s{sMl}, s{sPo}, 9")
    p(f"s_lshl_b32 s{sPo}, s{sPo}, 14")
    p(f"s_lshl_b32 s{sRb}, s{sU}, 2")
    p(f"s_add_u32 s{sRb}, s{sRb}, s{sW}")
    p(f"s_lshl_b32 s{sQo}, s{sRb}, 14")
    p(f"s_add_u32 s{sQo}, s{sQo}, s{sT3}")
    p(f"s_lshl_b32 s{sT}, s{sHead}, 6")
    p(f"s_add_u32 s{sT}, s{sT}, s{sRb}")
    p(f"s_mul_i32 s{sOut}, s{sT}, {28 * 1024}")
    p(f"s_mov_b32 s{sSig}, 0")
    t, t2, lo, hi = vT[0], vT[1], vT[2], vT[3]
    p(f"v_and_b32 v{t}, 31, v{vLane}")
    p(f"v_lshrrev_b32 v{t2}, 5, v{vLane}")
    p(f"v_lshlrev_b32 v{t2}, 2, v{t2}")
    p(f"v_sub_u32 v{t}, v{t}, v{t2}")
    p(f"s_lshl_b32 s{sT}, s{sW}, 5")
    p(f"v_add_u32 v{vRW}, s{sT}, v{t}")
    p(f"v_mov_b32 v{lo}, 0x3f80")
    p(f"v_mov_b32 v{hi}, 0x3f800000")
    for h in range(2):
        for i in range(4):
            c = 16 * h + 8 * (i >> 1) + 2 * (i & 1)
            r = vI + 4 * h + i
            p(f"v_cmp_eq_u32 vcc, {c}, v{t}")
            p(f"v_cndmask_b32 v{r}, 0, v{lo}, vcc")
            p(f"v_cmp_eq_u32 vcc, {c + 1}, v{t}")
            p(f"v_cndmask_b32 v{r}, v{r}, v{hi}, vcc")
    p(f"v_mov_b32 v{vBig}, {NEG_BIG}")

    def job_init():
        return [P(f"v_mov_b32 v{vNegM}, 0"), P(f"v_mov_b32 v{vLs}, 0")] + [P(f"v_mov_b32 v{vC + r}, 0") for r in range(16)]

    def qk(tile, n0):
        L = []
        S = vS[tile % 2]
        for ds in range(16):
            rd = [P(f"ds_read_b128 {a(ring(n0 + ds), 4)}, v{vL16} offset:{(tile % 4) * 16384 + ds * 1024}")]
            cin = v(vC, 16) if ds == 0 else v(S, 16)
            if x16:
                m = []
                for rb in range(2):
                    o = 8 * (ds & 1) + 4 * rb
                    m.append(P(f"{M16} {v(S + o, 4)}, {a(ring(n0 + ds), 4)}, {a(aQ + 4 * (2 * (ds >> 1) + rb), 4)}, {v(vC + o, 4) if ds < 2 else v(S + o, 4)}"))
                L.append((m, rd))
                continue
            L.append((P(f"{MF} {v(S, 16)}, {a(ring(n0 + ds), 4)}, {a(aQ + 4 * ds, 4)}, {cin}"), rd))
        return L

    def pv(tile, first=False, Pr=vP):
        L = []
        n = 0
        for db in range(8):
            for h in range(2):
                rd = [P(f"ds_read_b128 {a(ring(n), 4)}, v{vL16h} offset:{(tile % 4) * 16384 + (h * 8 + db) * 1024}")]
                cin = "0" if (first and h == 0) else v(O(db), 16)
                if x16:
                    m = []
                    for rb in range(2):
                        o = v(vO + 8 * n + 4 * rb, 4)
                        m.append(P(f"{M16} {o}, {a(ring(n), 4)}, {v(Pr + 4 * rb, 4)}, {'0' if first else o}"))
                    L.append((m, rd))
                else:
                    L.append((P(f"{MF} {v(O(db), 16)}, {a(ring(n), 4)}, {v(Pr + 4 * h, 4)}, {cin}"), rd))
                n += 1
        return L

    def wtile(i, odd):
        L = []
        S = vS[odd]
        for ds in range(16):
            n = 16 * odd + ds
            rd = [P(f"ds_read_b128 {a(ring(n), 4)}, v{vL16 if odd else vL16h} offset:{(i % 4) * 16384 + ds * 1024}")]
            if x16:
                m = []
                for rb in range(2):
                    o = v(S + 8 * (ds & 1) + 4 * rb, 4)
                    m.append(P(f"{M16} {o}, {a(ring(n), 4)}, {v(O(ds >> 1) + 4 * rb, 4)}, {'0' if ds < 2 else o}"))
                L.append((m, rd))
                continue
            L.append((P(f"{MF} {v(S, 16)}, {a(ring(n), 4)}, {v(O(ds >> 1) + 4 * (ds & 1), 4)}, {'0' if ds == 0 else v(S, 16)}"), rd))
        return L

    def emit(seg, nxt, bar_tags, fills, rdpos=None):
        N = len(seg)
        f = []
        rl = [(n, r) for n, (m, r) in enumerate(seg) if r][LA:]
        for k, (n, r) in enumerate(rl):
            f.append((n - LA if rdpos is None else rdpos[k], r))
        if nxt is not None:
            if bar_tags is not None:
                f.append((N - LA, [WaitTag(tuple(bar_tags)), P("s_barrier")]))
            for n in range(LA):
                f.append((N - LA + n, nxt[n][1]))
        w = []
        if wait2 and rdpos is None and nxt is not None:
            w = [(n, P(f"s_waitcnt lgkmcnt({LA - 2})")) for n in range(1, N, 2)]
        if not x16:
            p.add(merge([m for m, _ in seg], f, fills, w))
            return
        allf = sorted(f + list(fills) + w, key=lambda t: t[0])
        def cost(it):
            return sum(2 if (isinstance(x, Ins) and x.op in TRANS) else (1 if isinstance(x, (Ins, WaitTag)) else 0) for x in flat(it))
        for n, (m, _) in enumerate(seg):
            its = []
            for sl, it in allf:
                if sl == n:
                    fl = flat(it)
                    if any(isinstance(x, Label) or (isinstance(x, Ins) and x.kind in ('salu', 'barrier')) for x in fl):
                        its.append(it)
                    else:
                        its += fl
            if not isinstance(m, list):
                p.add([m] + its)
                continue
            tot = sum(cost(x) for x in its) + (0 if wait2 else 1)
            k, acc_ = 0, 0
            while k < len(its) and acc_ + cost(its[k]) <= (tot + 1) // 2:
                acc_ += cost(its[k])
                k += 1
            p.add([m[0]] + its[:k] + [m[1]] + its[k:])

    def sideblk(cond, body, base='sd'):
        lb, lr = p.newlabel(base), p.newlabel(base + 'r')
        side.append([Label(lb)] + body + [P(f"s_branch {lr}")])
        return [P(cond), P(f"s_cbranch_scc1 {lb}"), Label(lr)], lr

    def poll():
        return [P(f"buffer_load_dwordx2 {v(vML, 2)}, v{vL8}, s[{SM}:{SM+3}], s{sMl} offen sc1")]

    def po_load(d0, d1):
        L = []
        for ds in range(d0, d1):
            L.append(P(f"buffer_load_dwordx4 {a(aPO + 4 * ds, 4)}, v{vL16}, s[{SP}:{SP+3}], s{sPo} offen offset:{(ds & 3) * 1024} sc1"))
            if ds & 3 == 3:
                L.append(P(f"s_add_u32 s{sPo}, s{sPo}, 4096"))
        return L

    def maskchk(u, merge_ev=False):
        blk = [P(f"v_subrev_u32 v{vRWu}, {32 * u}, v{vRW}")]
        for r0 in range(0, 16, 4):
            for r in range(r0, r0 + 4):
                key = 16 * ((r >> 2) & 1) + 8 * (r >> 3) + (r & 3)
                blk.append(P(f"v_cmp_gt_i32 s[{sMk[r % 4]}:{sMk[r % 4]+1}], {key}, v{vRWu}"))
            for r in range(r0, r0 + 4):
                blk.append(P(f"v_cndmask_b32 v{vC + r}, v{vNegM}, v{vBig}, s[{sMk[r % 4]}:{sMk[r % 4]+1}]"))
        if merge_ev and u >= 1:
            lx = p.newlabel('mx')
            blk += [P(f"s_cmp_lg_u32 s{sKind}, {MERGE}"), P(f"s_cbranch_scc1 {lx}")]
            if u == 1:
                blk += poll()
            elif u == 2:
                ok, spin = p.newlabel('pok'), p.newlabel('spin')
                blk += [P(f"s_mov_b32 s{sT2}, 0"), Label(spin),
                        P(f"v_cmp_eq_u32 vcc, 0, v{vML + 1}"), P(f"s_cbranch_vccz {ok}"),
                        P(f"s_add_u32 s{sT2}, s{sT2}, 1"), P(f"s_cmp_gt_u32 s{sT2}, 0x40000"), P(f"s_cbranch_scc1 {ok}"),
                        P("s_sleep 2")] + poll() + [P(f"s_branch {spin}"), Label(ok)]
                blk += po_load(0, 8)
            else:
                blk += po_load(8, 16)
            blk.append(Label(lx))
        return sideblk(f"s_cmp_eq_u32 s{sRem}, s{sMaskAt}", blk, 'mask')[0]

    def rowmax(S):
        L = [P(f"v_max3_f32 v{vMx}, v{S}, v{S+1}, v{S+2}"), P(f"v_max3_f32 v{vMx2}, v{S+3}, v{S+4}, v{S+5}")]
        for k in range(6, 14, 4):
            L.append(P(f"v_max3_f32 v{vMx}, v{vMx}, v{S+k}, v{S+k+1}"))
            L.append(P(f"v_max3_f32 v{vMx2}, v{vMx2}, v{S+k+2}, v{S+k+3}"))
        L.append(P(f"v_max3_f32 v{vMx}, v{vMx}, v{S+14}, v{S+15}"))
        L.append(P(f"v_max_f32 v{vMx}, v{vMx}, v{vMx2}"))
        L.append(P(f"v_mov_b32 v{vMx2}, v{vMx}"))
        L.append(P(f"v_permlane32_swap_b32 v{vMx}, v{vMx2}"))
        L.append(P(f"v_max_f32 v{vMx}, v{vMx}, v{vMx2}"))
        return L

    def exps(S, sub=False, inplace=False):
        G = []
        for r in range(16):
            g = []
            if inplace:
                g.append(P(f"v_add_f32 v{S + r}, v{S + r}, v{vNegM}"))
            if sub:
                g.append(P(f"v_sub_f32 v{vE + r}, v{S + r}, v{vMx}"))
                g.append(P(f"v_exp_f32 v{vE + r}, v{vE + r}"))
            else:
                g.append(P(f"v_exp_f32 v{vE + r}, v{S + r}"))
            if r == 3:
                g.append(P(f"v_add_f32 v{vPs0}, v{vE}, v{vE + 1}"))
            elif r == 4:
                g.append(P(f"v_add_f32 v{vPs1}, v{vE + 2}, v{vE + 3}"))
            elif r > 4:
                g.append(P(f"v_add_f32 v{vPs0 + (r & 1)}, v{vPs0 + (r & 1)}, v{vE + r - 1}"))
            G.append(g)
        G.append([P(f"v_add_f32 v{vPs0}, v{vPs0}, v{vE + 15}"), P(f"v_add_f32 v{vPs0}, v{vPs0}, v{vPs1}")])
        return G

    def cvts(Pr=vP):
        return [P(f"v_cvt_pk_bf16_f32 v{Pr + r}, v{vE + 2 * r}, v{vE + 2 * r + 1}") for r in range(8)]

    def check(tile, has_qk, recvt=None):
        lm, lr = p.newlabel('rare'), p.newlabel('rarer')
        S, Sn = vS[tile % 2], vS[(tile + 1) % 2]
        blk = [Label(lm)] + rowmax(S)
        blk.append(P(f"v_max_f32 v{vMx}, 0, v{vMx}"))
        blk.append(P(f"v_exp_f32 v{vMx2}, -v{vMx}"))
        blk.append(P(f"v_sub_f32 v{vNegM}, v{vNegM}, v{vMx}"))
        blk.append(P(f"v_mul_f32 v{vLs}, v{vLs}, v{vMx2}"))
        for r in range(128):
            blk.append(P(f"v_mul_f32 v{vO + r}, v{vO + r}, v{vMx2}"))
        if has_qk:
            for r in range(16):
                blk.append(P(f"v_sub_f32 v{vC + r}, v{vC + r}, v{vMx}"))
                blk.append(P(f"v_sub_f32 v{Sn + r}, v{Sn + r}, v{vMx}"))
        for g in exps(S, sub=True):
            blk += g
        if recvt is not None:
            blk += cvts(recvt)
        blk.append(P(f"s_branch {lr}"))
        side.append(blk)
        return [P(f"v_cmp_nge_f32 vcc, {THRESH}, v{vPs0}"), P(f"s_cbranch_vccnz {lm}"), Label(lr),
                P(f"v_add_f32 v{vLs}, v{vLs}, v{vPs0}")]

    p.add(job_init())
    p.add(maskchk(0))
    phA = qk(0, 0)
    p.wait_tags("L0")
    p("s_barrier")
    st.mark(0)
    for n in range(LA):
        p.add(phA[n][1])
    lJob = p.newlabel('job')
    p.label(lJob)
    ph0 = qk(1, 0)
    emit(phA, ph0, ["L1"], [(3, maskchk(1))])

    def full(t, first=False):
        return pv(t - 1, first) + qk(t + 1, 16)
    ph1 = full(1, True)
    f = spread(rowmax(vS[0]), 1, 3) + [(3, P(f"v_sub_f32 v{vNegM}, 0, v{vMx}"))] + \
        spread(exps(vS[0], sub=True), 4, 13) + [(14, P(f"v_add_f32 v{vLs}, v{vLs}, v{vPs0}"))] + \
        spread(cvts(), 13, 15) + list(zip([9, 10, 11, 12], kv_dma(1, 2))) + list(zip([13, 14, 15, 15], kv_dma(0, 4)))
    emit(ph0, ph1, ["L4", "L2"], f)

    def std_fill(t, first=False, ev=False):
        f = spread(exps(vS[t % 2], inplace=first), *ex)
        if first:
            f += spread([P(f"v_mov_b32 v{vC + r}, v{vNegM}") for r in range(16)], 0, 14)
        f += [(15, maskchk((t + 1) % 4, ev))]
        f += [(chk, check(t, True))]
        f += spread(cvts(), *cv)
        f += list(zip(vpos, kv_dma(1, t + 2)))
        f += list(zip(kpos, kv_dma(0, t + 4)))
        return f

    def btags(t):
        return [f"L{4 + (t - 1) % 4}", f"L{(t + 1) % 4}"]

    sig = sideblk(f"s_cmp_lg_u32 s{sSig}, 0",
                  [WaitTag(('po',)), P(f"buffer_store_dwordx2 {v(vML, 2)}, v{vL8}, s[{SM}:{SM+3}], s{sMl} offen sc1"),
                   P(f"s_mov_b32 s{sSig}, 0")], 'sig')[0]
    emit(ph1, full(2), btags(2), std_fill(1, first=True) + [(sig_slot, sig)])
    emit(full(2), full(3), btags(3), std_fill(2))
    lTail, lLoop = p.newlabel('tail'), p.newlabel('loop')
    p(f"s_cmp_eq_u32 s{sRem}, 0")
    p(f"s_cbranch_scc1 {lTail}")
    p.raw(".p2align 6")
    p.label(lLoop)
    p(f"s_sub_u32 s{sRem}, s{sRem}, 1")
    for t in (3, 4, 5, 6):
        emit(full(t), full(t + 1), btags(t + 1), std_fill(t, ev=True))
    p(f"s_cmp_lg_u32 s{sRem}, 0")
    p(f"s_cbranch_scc1 {lLoop}")
    p.label(lTail)

    def lsum():
        return [P(f"v_mov_b32 v{vMx2}, v{vLs}"), P(f"v_permlane32_swap_b32 v{vLs}, v{vMx2}"),
                P(f"v_add_f32 v{vLs}, v{vLs}, v{vMx2}")]

    def ocvt(db):
        return [P(f"v_cvt_pk_bf16_f32 v{O(db) + r}, v{O(db) + 2 * r}, v{O(db) + 2 * r + 1}") for r in range(8)]

    vP2 = vS[0]

    def phaseD(part):
        f = spread(exps(vS[1]), 2, 13) + spread(cvts(vP2), 12, 15) + [(15, check(3, False, vP2))]
        f += list(zip([0, 1, 4, 6], kv_dma(1, 5))) + list(zip([9, 11, 13, 15], kv_dma(0, 7)))
        if part:
            f += [(n, q_load(n)) for n in range(16)]
        emit(pv(2), pv(3, Pr=vP2), ["L7"], f)

    lFin = p.newlabel('fin')
    p(f"s_cmp_lg_u32 s{sKind}, {PART}")
    p(f"s_cbranch_scc1 {lFin}")
    phaseD(True)

    def postore(db):
        L = []
        for h in range(2):
            ds = 2 * db + h
            L.append(P(f"buffer_store_dwordx4 {v(O(db) + 4 * h, 4)}, v{vL16}, s[{SP}:{SP+3}], s{sPo} offen offset:{(ds & 3) * 1024} sc1", ('po',)))
            if ds & 3 == 3:
                L.append(P(f"s_add_u32 s{sPo}, s{sPo}, 4096"))
        return L
    f = spread(lsum() + [P(f"v_mov_b32 v{vML}, v{vNegM}"), P(f"v_mov_b32 v{vML + 1}, v{vLs}")] + job_init(), 0, 3)
    f += [(3, [P(f"s_mov_b32 s{sKind}, {FULL}"), P(f"s_mov_b32 s{sMaskAt}, 0"), P(f"s_mov_b32 s{sRem}, s{sRem2}"),
               P(f"s_mov_b32 s{sSig}, 1")])]
    f += [(4, maskchk(0))]
    for db in range(6):
        f += spread(ocvt(db) + postore(db), 2 * db + 4, 2 * db + 5)
    emit(pv(3, Pr=vP2), phA, ["L0"], f)
    for db in range(6, 8):
        p.add(ocvt(db) + postore(db))
    st.mark(1)
    p(f"s_branch {lJob}")
    p.label(lFin)
    st.mark(2)
    phaseD(False)
    lM, lW = p.newlabel('merge'), p.newlabel('wo')
    W = [wtile(i, 0) + wtile(i, 1) for i in range(7)]
    p(f"s_cmp_eq_u32 s{sKind}, {MERGE}")
    p(f"s_cbranch_scc1 {lM}")
    f = spread(lsum() + [P(f"v_rcp_f32 v{vInv}, v{vLs}")], 0, 2)
    for db in range(6):
        f += spread(ocvt(db), 2 * db + 4, 2 * db + 5)
    f += list(zip([9, 11, 13, 15], kv_dma(1, 6)))
    emit(pv(3, Pr=vP2), W[0], ["L4", "L0"], f)
    p(f"s_branch {lW}")
    p.label(lM)
    pe = pv(3, Pr=vP2)
    def idm(db):
        return [(P(f"{MF} {v(O(db), 16)}, {v(vI + 4 * h, 4)}, {a(aPO + 4 * (2 * db + h), 4)}, {v(O(db), 16)}"), []) for h in range(2)]
    seg = pe[0:6]
    for db in range(8):
        seg += idm(db)
        if db + 3 < 8:
            seg += pe[2 * db + 6: 2 * db + 8]
    vF = vMx
    f = spread(lsum() + [P(f"v_sub_f32 v{vF}, v{vML}, v{vNegM}"), P(f"v_min_f32 v{vF}, {f2u(60.0)}, v{vF}"),
                         P(f"v_exp_f32 v{vF}, v{vF}"), P(f"v_fma_f32 v{vLs}, v{vLs}, v{vF}, v{vML + 1}"),
                         P(f"v_rcp_f32 v{vInv}, v{vLs}")], 0, 2)
    ipos = [6 + 4 * db if db < 6 else 26 + 2 * (db - 5) for db in range(8)]
    spos = [(3, 5), (6, 9), (10, 13), (14, 17), (18, 21), (22, 24), (25, 26), (27, 29)]
    for db in range(8):
        f += spread([P(f"v_mul_f32 v{O(db) + r}, v{O(db) + r}, v{vF}") for r in range(16)], *spos[db])
    for db in range(6):
        f += spread(ocvt(db), min(ipos[db] + 4, 30), min(ipos[db] + 7, 31))
    f += list(zip([25, 27, 29, 31], kv_dma(1, 6)))
    emit(seg, W[0], ["L4", "L0"], f, rdpos=[0, 1, 4, 5, 8, 9, 12, 13])
    p.label(lW)
    st.mark(3)

    def sout(odd, k):
        S = vS[odd]
        tb = vE if odd else vC
        L = [P(f"v_mul_f32 v{S + r}, v{S + r}, v{vInv}") for r in range(16)]
        for h in range(2):
            L += [P(f"v_cvt_pk_bf16_f32 v{tb + 4 * h + r}, v{S + 8 * h + 2 * r}, v{S + 8 * h + 2 * r + 1}") for r in range(4)]
            L.append(P(f"buffer_store_dwordx4 {v(tb + 4 * h, 4)}, v{vL16}, s[{SO}:{SO+3}], s{sOut} offen offset:{(2 * odd + h) * 1024}{smod}"))
        if odd:
            L.append(P(f"s_add_u32 s{sOut}, s{sOut}, 4096"))
        return L
    for i in range(7):
        f = spread(sout(0, i), 18, 30)
        if i == 0:
            f += spread(ocvt(6), 0, 3) + spread(ocvt(7), 4, 7)
        else:
            f += spread(sout(1, i - 1), 2, 14)
        if i <= 3:
            f += list(zip([25, 27, 29, 31], kv_dma(1, 7 + i, wrap=False)))
        if 2 <= i <= 4:
            f += list(zip([3, 7, 11, 15], kv_dma(0, 6 + i, wrap=False)))
        emit(W[i], W[i + 1] if i < 6 else None, [f"L{4 + (i + 1) % 4}", f"L{(i + 1) % 4}"], f)
    p.add(sout(1, 6))
    st.mark(4)
    st.finish()
    p.label(done)
    p("s_endpgm")
    for blk in side:
        p.add(blk)
    return p
```

```python
from common import *

MF = "v_mfma_f32_32x32x16_bf16"
S_BYTES = 16 * 64 * 28 * 1024


def gen_k3n(name="final_kernel", stamp=False, D=6, sfirst=0, g16=False, kid=2):
    p = Prog(name)
    st = Stamps(p, stamp, kid)
    vLane, vL16 = 1, 2
    vB = [4, 5]
    vDW = [12, 13, 14, 15]
    vX = 16
    vXo, vRa, vWa = 6, 7, 3
    vI = 24
    vT = list(range(32, 40))
    vW = 40
    vA = 72
    aS, aSP = 64, 128
    STG = 4096
    REG = max(D * STG, 16384)
    sW, sT, sT2, sRb, sCt, sM, sAo, sWo, sAo2, sSo = 3, 36, 37, 38, 39, 40, 41, 42, 43, 48
    SS, SH, SWD, SX, SO = 8, 12, 20, 24, 44
    done = p.newlabel('done')
    p(f"s_cmp_ge_u32 s2, 224")
    p(f"s_cbranch_scc1 {done}")
    p("s_load_dwordx4 s[32:35], s[0:1], 72")
    p("s_load_dwordx2 s[30:31], s[0:1], 96")
    p("s_load_dwordx2 s[28:29], s[0:1], 0")
    st.start()
    p(f"v_and_b32 v{vLane}, 63, v0")
    p(f"v_lshrrev_b32 v{vT[0]}, 6, v0")
    p(f"v_readfirstlane_b32 s{sW}, v{vT[0]}")
    p(f"v_lshlrev_b32 v{vL16}, 4, v{vLane}")
    p(f"s_and_b32 s{sRb}, s2, 31")
    p(f"s_lshr_b32 s{sCt}, s2, 5")
    p(f"s_mul_i32 s{sM}, s{sW}, {REG}")
    i3, i7, t, t2 = vT[0], vT[1], vT[2], vT[5]
    p(f"v_lshrrev_b32 v{i3}, 3, v{vLane}")
    p(f"v_and_b32 v{i7}, 7, v{vLane}")
    p(f"v_and_b32 v{t}, 2, v{i3}")
    p(f"v_lshlrev_b32 v{t}, 1, v{t}")
    p(f"v_xor_b32 v{t}, v{t}, v{i7}")
    p(f"v_mul_u32_u24 v{t2}, 896, v{i3}")
    p(f"v_lshl_add_u32 v{vDW[0]}, v{t}, 4, v{t2}")
    for q in range(1, 4):
        p(f"v_add_u32 v{vDW[q]}, {q * (8 * 896 - 1024)}, v{vDW[0]}")
    p(f"s_mul_i32 s{sAo}, s{sRb}, {2 * 112 * 1024}")
    p(f"s_mul_i32 s{sT}, s{sW}, {28 * 1024}")
    p(f"s_add_u32 s{sAo}, s{sAo}, s{sT}")
    p(f"s_add_u32 s{sAo2}, s{sAo}, {112 * 1024}")
    p(f"s_mul_i32 s{sWo}, s{sW}, {448 * 896}")
    p(f"s_lshl_b32 s{sT}, s{sCt}, 7")
    p(f"s_add_u32 s{sWo}, s{sWo}, s{sT}")
    p(f"s_lshl_b32 s{sRb}, s{sRb}, 1")
    p(f"s_lshr_b32 s{sT}, s{sW}, 1")
    p(f"s_add_u32 s{sRb}, s{sRb}, s{sT}")
    p(f"s_lshl_b32 s{sCt}, s{sCt}, 1")
    p(f"s_and_b32 s{sT}, s{sW}, 1")
    p(f"s_add_u32 s{sCt}, s{sCt}, s{sT}")
    p(f"s_mul_i32 s{sSo}, s{sRb}, {28 * 1024}")
    p(f"s_lshl_b32 s{sT}, s{sCt}, 11")
    p(f"s_add_u32 s{sSo}, s{sSo}, s{sT}")
    srd(p, SWD, 32, 1792 * 896)
    srd_off(p, SH, 30, WS_H, H_BYTES)
    srd_off(p, SS, 30, WS_S, S_BYTES)
    N = 14

    def loads(n):
        e = n % D
        L = []
        for q in range(4):
            g = [P(f"s_add_u32 m0, s{sM}, {e * STG}")] if q == 0 else []
            g.append(P(f"buffer_load_dwordx4 v{vDW[q]}, s[{SWD}:{SWD+3}], s{sWo} offen offset:{q * 1024} lds", tags=(f"W{e}",)))
            if q == 3:
                g.append(P(f"s_add_u32 s{sWo}, s{sWo}, {32 * 896}"))
            L.append(g)
        for ks in range(2):
            for rb in range(2):
                g = [P(f"buffer_load_dwordx4 {v(vA + 16 * e + 8 * ks + 4 * rb, 4)}, v{vL16}, s[{SH}:{SH+3}], s{sAo2 if rb else sAo} offen offset:{((n & 1) * 2 + ks) * 1024}")]
                if ks == 1 and (n & 1):
                    g.append(P(f"s_add_u32 s{sAo2 if rb else sAo}, s{sAo2 if rb else sAo}, 4096"))
                L.append(g)
        return L

    def sload(h):
        return [[P(f"buffer_load_dwordx4 {a(aSP + 8 * h, 4)}, v{vL16}, s[{SS}:{SS+3}], s{sSo} offen")],
                [P(f"buffer_load_dwordx4 {a(aSP + 8 * h + 4, 4)}, v{vL16}, s[{SS}:{SS+3}], s{sSo} offen offset:1024"),
                 P(f"s_add_u32 s{sSo}, s{sSo}, {64 * 28 * 1024}")]]
    SL = []
    for h in range(16):
        SL += sload(h)

    for n in range(D - 1):
        p.add(loads(n))
    p.add(SL[:sfirst])
    SL = SL[sfirst:]
    srd(p, SX, 28, 2048 * 896)
    srd(p, SO, 34, 2048 * 896)
    hf, r4, g1, c = vT[0], vT[1], vT[3], vT[4]
    p(f"v_lshrrev_b32 v{hf}, 5, v{vLane}")
    p(f"v_bfe_u32 v{r4}, v{vLane}, 2, 2")
    p(f"v_bfe_u32 v{g1}, v{vLane}, 4, 1")
    p(f"v_lshl_add_u32 v{t}, v{hf}, 2, v{r4}")
    p(f"v_lshlrev_b32 v{t}, 7, v{t}")
    p(f"v_lshl_add_u32 v{t}, v{g1}, 5, v{t}")
    p(f"v_and_b32 v{c}, 1, v{vLane}")
    p(f"v_lshl_add_u32 v{t}, v{c}, 4, v{t}")
    p(f"v_bfe_u32 v{c}, v{vLane}, 1, 1")
    p(f"v_lshl_add_u32 v{t}, v{c}, 3, v{t}")
    p(f"v_add_u32 v{t}, s{sM}, v{t}")
    p(f"v_lshrrev_b32 v{t2}, 1, v{r4}")
    p(f"v_lshl_add_u32 v{vB[0]}, v{t2}, 6, v{t}")
    p(f"v_xor_b32 v{t2}, 1, v{t2}")
    p(f"v_lshl_add_u32 v{vB[1]}, v{t2}, 6, v{t}")
    p(f"v_add_u32 v{vWa}, s{sM}, v{vL16}")
    p(f"s_lshl_b32 s{sT}, s{sW}, 12")
    p(f"v_add_u32 v{vRa}, s{sT}, v{vL16}")
    p(f"v_and_b32 v{t}, 31, v{vLane}")
    p(f"v_mul_u32_u24 v{t2}, 896, v{t}")
    p(f"v_lshl_add_u32 v{t2}, v{hf}, 4, v{t2}")
    p(f"s_mul_i32 s{sT}, s{sRb}, {32 * 896}")
    p(f"s_lshl_b32 s{sT2}, s{sCt}, 6")
    p(f"s_add_u32 s{sT}, s{sT}, s{sT2}")
    p(f"v_add_u32 v{vXo}, s{sT}, v{t2}")
    ps, lo, hi = vT[6], vT[7], vT[3]
    p(f"v_and_b32 v{ps}, 0x13, v{vLane}")
    p(f"v_bfe_u32 v{t2}, v{vLane}, 2, 1")
    p(f"v_lshl_add_u32 v{ps}, v{t2}, 3, v{ps}")
    p(f"v_bfe_u32 v{t2}, v{vLane}, 3, 1")
    p(f"v_lshl_add_u32 v{ps}, v{t2}, 2, v{ps}")
    p(f"v_lshlrev_b32 v{t2}, {2 if g16 else 3}, v{hf}")
    p(f"v_sub_u32 v{ps}, v{ps}, v{t2}")
    p(f"v_mov_b32 v{lo}, 0x3f80")
    p(f"v_mov_b32 v{hi}, 0x3f800000")
    for h in range(2):
        for i in range(4):
            r = vI + 4 * h + i
            c0 = 8 * h + 2 * (i & 1) + 16 * (i >> 1) if g16 else 16 * h + 2 * i
            p(f"v_cmp_eq_u32 vcc, {c0}, v{ps}")
            p(f"v_cndmask_b32 v{r}, 0, v{lo}, vcc")
            p(f"v_cmp_eq_u32 vcc, {c0 + 1}, v{ps}")
            p(f"v_cndmask_b32 v{r}, v{r}, v{hi}, vcc")

    def reads(n):
        e = n % D
        L = [WaitTag((f"W{e}",))]
        for ks in range(2):
            for cb in range(2):
                w = vW + 16 * (n & 1) + 8 * ks + 4 * cb
                L.append(P(f"ds_read_b64_tr_b16 {v(w, 2)}, v{vB[cb]} offset:{e * STG + ks * 1024}"))
                L.append(P(f"ds_read_b64_tr_b16 {v(w + 2, 2)}, v{vB[cb]} offset:{e * STG + ks * 1024 + 2048}"))
        return L

    def acc(rb, cb): return (rb * 2 + cb) * 16
    p.add(reads(0))
    st.mark(0)
    XL = [[P(f"buffer_load_dwordx4 {v(vX, 4)}, v{vXo}, s[{SX}:{SX+3}], 0 offen")],
          [P(f"buffer_load_dwordx4 {v(vX + 4, 4)}, v{vXo}, s[{SX}:{SX+3}], 0 offen offset:32")]]
    SL = SL + XL
    for n in range(N):
        e = n % D
        mf = []
        for ks in range(2):
            for rb in range(2):
                for cb in range(2):
                    ac = a(acc(rb, cb), 16)
                    mf.append(P(f"{MF} {ac}, {v(vW + 16 * (n & 1) + 8 * ks + 4 * cb, 4)}, {v(vA + 16 * e + 8 * ks + 4 * rb, 4)}, {'0' if n == 0 and ks == 0 else ac}"))
        f = []
        if n + D - 1 < N:
            f += list(zip(range(-1, 7), loads(n + D - 1)))
        else:
            k = min(8, len(SL))
            f += list(zip(range(-1, 7), SL[:k]))
            SL = SL[k:]
        if n + 1 < N:
            f.append((2, reads(n + 1)))
        p.add(merge(mf, f))
    p.add(SL)
    st.mark(1)
    wr = []
    for b in range(4):
        for q in range(4):
            wr.append(P(f"ds_write_b128 v{vWa}, {a(16 * b + 4 * q, 4)} offset:{b * 4096 + q * 1024}"))
    p.add(wr)
    p("s_waitcnt lgkmcnt(0)")
    p("s_barrier")
    vR = vA
    for sw in range(4):
        for q in range(4):
            off = sw * REG + q * 1024
            if off >= 65536:
                if sw == 65536 // REG + (1 if 65536 % REG else 0) and q == 0:
                    p(f"v_add_u32 v{vWa}, {sw * REG}, v{vRa}")
                    base = sw * REG
                p(f"ds_read_b128 {v(vR + 16 * sw + 4 * q, 4)}, v{vWa} offset:{off - base}")
            else:
                p(f"ds_read_b128 {v(vR + 16 * sw + 4 * q, 4)}, v{vRa} offset:{off}")
    mf = []
    for h in range(16):
        for k in range(2):
            mf.append(P(f"{MF} {a(aS, 16)}, {v(vI + 4 * k, 4)}, {a(aSP + 8 * h + 4 * k, 4)}, {'0' if h == 0 and k == 0 else a(aS, 16)}"))
    F, E, X = vR, vR + 16, vR + 32
    V = []
    for r in range(16):
        V.append(P(f"v_add_f32 v{F + r}, v{F + r}, v{F + 16 + r}"))
        V.append(P(f"v_add_f32 v{F + 32 + r}, v{F + 32 + r}, v{F + 48 + r}"))
    for r in range(16):
        V.append(P(f"v_add_f32 v{F + r}, v{F + r}, v{F + 32 + r}"))
    for r in range(16):
        V.append(P(f"v_mul_f32 v{E + r}, {f2u(-LOG2E)}, v{F + r}"))
    for r in range(16):
        V.append(P(f"v_exp_f32 v{E + r}, v{E + r}"))
    for r in range(16):
        V.append(P(f"v_add_f32 v{E + r}, 1.0, v{E + r}"))
    for r in range(16):
        V.append(P(f"v_rcp_f32 v{E + r}, v{E + r}"))
    for r in range(16):
        V.append(P(f"v_mul_f32 v{E + r}, v{E + r}, v{F + r}"))
    p.add(V)
    st.mark(2)
    p.add(mf)
    st.mark(3)
    for r in range(8):
        p(f"v_lshlrev_b32 v{X + 2 * r}, 16, v{vX + r}")
        p(f"v_and_b32 v{X + 2 * r + 1}, 0xffff0000, v{vX + r}")
    for r in range(16):
        p(f"v_accvgpr_read_b32 v{F + r}, a{aS + r}")
    for r in range(16):
        p(f"v_fmac_f32 v{X + r}, v{F + r}, v{E + r}")
    for r in range(8):
        p(f"v_cvt_pk_bf16_f32 v{F + r}, v{X + 2 * r}, v{X + 2 * r + 1}")
    p(f"buffer_store_dwordx4 {v(F, 4)}, v{vXo}, s[{SO}:{SO+3}], 0 offen")
    p(f"buffer_store_dwordx4 {v(F + 4, 4)}, v{vXo}, s[{SO}:{SO+3}], 0 offen offset:32")
    st.finish()
    p.label(done)
    p("s_endpgm")
    return p, 4 * REG
```

```python
from common import *
from sched import *
from k1 import ln_load, ln_compute

M16 = "v_mfma_f32_16x16x32_bf16"
NEG_BIG = f2u(-1.0e30)
THRESH = f2u(2.0 ** 24)
OOB = 0x40000000
F_ML = 32 * MB
F_FL = 33 * MB
F_PO = 96 * MB
F_Q = 112 * MB
WS_SPAN = 128 * MB
F_PF = 38 * MB
F_PS = 66 * MB
PHS = 262144
US = 7 * PHS


class Col:
    def __init__(self): self.L = []
    def __call__(self, t, tags=()): self.L.append(P(t, tags))


def PL(L):
    return [P(x) if isinstance(x, str) else x for x in L]


def keys(kind, base, n):
    return [(kind, base + k) for k in range(n)]


def gen_kj(name="main_kernel", stamp=False, marks=('t1', 't2', 'att', 'fin', 'wo'), bar=1, wr0=2, wr_step=3, dma0=4, dma_step=7,
           st0=-1, st1=24, sig_k=26, LA=8, WG=4, chk=40, vwin=(2, 30), posig=40, verbose=True, nokv=False, t2x='', ctouch=True, wtouch=0, wmod=' nt', amod='', notch=False,
           fe_end=26, chk_ph=1, fdir=3, tx='', rmod=' sc1', kvmod=' sc1', xnmod=' sc1', rsleep=0, psleep=2,
           npz=0, fl=(6, 8), pl6=48, evs='10s4 12s4 20s4 23f 23u 40p 41c 41l5 43l5 51l4 53l5 61l5 63l4', nring=14, qd=10, opx=0, vmap=0, krot=0, atouch=True, npre=5, lnh=50, smod=' sc1', fmod=' sc1', ksm=' sc1', fsm=' sc1', qsm=' sc1'):
    p = Prog(name)
    stp = Stamps(p, stamp, 0)

    def mark(nm):
        if nm in marks:
            stp.mark(marks.index(nm))
    vDK, vLane = 0, 1
    vT = [2, 3, 4, 5, 6, 7]
    vA, vA0 = [8, 9], [28, 29]
    vB = [10, 11, 12, 13]
    vL16, vStQ = 14, 15
    vDA = list(range(16, 24))
    vDB = list(range(24, 28))
    vPoll, vI3 = 30, 31
    vB2 = [[30, 31], [8, 9]]
    FR = 32
    def fC(st, i): return FR + i * 4 + (4 * st if i == 7 else 0)
    def fW(st, j): return FR + 36 + st * 32 + j * 4
    def fW2(st, j): return FR + 36 + st * 16 + j * 4
    vE1 = 148
    vTch = 250
    def acc(isV, ci, wi):
        return 8 * (8 * (ci >> 1) + wi) + 4 * (ci & 1) if isV else 8 * (8 * (ci >> 1) + (wi & 6) + (ci & 1)) + 4 * (wi & 1)
    sTs, sEv = 6, 7
    sW, sWr, sWc, sRb, sHead, sIsV = 20, 21, 22, 23, 24, 25
    sA, sB, sMW, sKt, sT, sT2, sOut = 26, 27, 28, 29, 30, 31, 32
    sMA, sAr, sWA, sBst, sU, sC2, sF = 33, 34, 35, 40, 41, 42, 43
    sSc, sWb, sBf, sTo, sFl = 44, 76, 77, 78, 3
    SA, SB, SWS, SD, ST = 8, 12, 16, 48, 52
    SF, SWQ, SWO, SV = 52, 12, 8, 64
    sKind, sRem, sMaskAt, sKo, sVo, sKend, sKnx, sVend = 36, 37, 38, 39, 60, 61, 62, 63
    sVnx, sEnd2, sQo, sSo, sPo, sMl, sWo, sHo = 4, 5, 6, 7, 46, 47, 33, 34
    sMk = [52, 54, 72, 74]
    sPz = 27
    FULL, HOLD, MERGE, PART = 0, 1, 2, 3
    side = []
    done = p.newlabel('done')
    p(f"s_cmp_ge_u32 s2, 256")
    p(f"s_cbranch_scc1 {done}")
    p("s_load_dwordx4 s[60:63], s[0:1], 0")
    p("s_load_dwordx4 s[36:39], s[0:1], 24")
    p("s_load_dwordx4 s[56:59], s[0:1], 88")
    p("s_load_dwordx2 s[68:69], s[0:1], 16")
    p("s_load_dwordx4 s[72:75], s[0:1], 56")
    p("s_load_dwordx2 s[70:71], s[0:1], 40")
    p("s_load_dwordx2 s[100:101], s[0:1], 72")
    stp.start()

    def code_touch(sr, tv, tid):
        if not ctouch:
            return []
        lp = p.newlabel('pc')
        return [[P(f"s_getpc_b64 s[{sr}:{sr+1}]"), Label(lp), P(f"s_sub_u32 s{sr}, s{sr}, {lp}-{name}"), P(f"s_subb_u32 s{sr+1}, s{sr+1}, 0")]] + \
            PL([f"s_and_b32 s{sr+1}, s{sr+1}, 0xffff", f"s_mov_b32 s{sr+2}, .Ltext_end-{name}", f"s_mov_b32 s{sr+3}, 0x00020000",
                f"s_and_b32 s{sT}, s2, 0x18", f"s_lshl_b32 s{sT}, s{sT}, 12"] + tid +
               [NT(f"buffer_load_dword v{tv}, v{tv}, s[{sr}:{sr+3}], s{sT} offen")])
    p.add(code_touch(ST, 254, [f"v_lshlrev_b32 v254, 7, v0"]))
    p(f"v_and_b32 v{vLane}, 63, v0")
    p(f"v_lshrrev_b32 v{vT[0]}, 6, v0")
    p(f"v_readfirstlane_b32 s{sW}, v{vT[0]}")
    p(f"s_lshr_b32 s{sU}, s2, 4")
    if vmap:
        p(f"s_and_b32 s{sRb}, s{sU}, 7")
        p(f"s_lshr_b32 s{sIsV}, s{sU}, 3")
        if vmap == 1:
            p(f"s_xor_b32 s{sIsV}, s{sIsV}, 1")
    else:
        p(f"s_lshr_b32 s{sRb}, s2, 5")
        p(f"s_and_b32 s{sIsV}, s{sU}, 1")
    p(f"s_bfe_u32 s{sT2}, s2, 0x10003")
    p(f"s_and_b32 s{sHead}, s2, 7")
    p(f"s_lshl_b32 s{sHead}, s{sHead}, 1")
    p(f"s_add_u32 s{sHead}, s{sHead}, s{sT2}")
    p(f"s_lshl_b32 s{sF}, s{sHead}, 4")
    p(f"s_add_u32 s{sF}, s{sF}, s{sU}")
    p(f"s_lshr_b32 s{sWr}, s{sW}, 1")
    p(f"s_and_b32 s{sWc}, s{sW}, 1")
    i7, i4 = vT[1], vT[2]

    def a_voffs(stride, dst):
        n = len(dst)
        L = [f"v_and_b32 v{i7}, 7, v{vLane}", f"v_lshrrev_b32 v{i4}, 4, v{vLane}",
             f"s_mul_i32 s{sT}, s{sW}, {8 * n * stride}",
             f"v_mul_u32_u24 v{vT[4]}, {stride}, v{vI3}", f"v_add_u32 v{vT[4]}, s{sT}, v{vT[4]}"]
        for par in range(2):
            t = vT[3]
            L += [f"v_add_u32 v{t}, {4 * par}, v{i4}", f"v_xor_b32 v{t}, v{t}, v{i7}",
                  f"v_lshl_add_u32 v{t}, v{t}, 4, v{vT[4]}"]
            for q in range(par, n, 2):
                L.append(f"v_add_u32 v{dst[q]}, {q * 8 * stride - (q & 3) * 1024}, v{t}")
        return PL(L)

    def w_voffs(scol, stride, dst):
        d = 8 * stride - 1024
        L = [f"v_and_b32 v{i7}, 7, v{vLane}", f"v_mul_u32_u24 v{vT[4]}, {stride}, v{vI3}",
             f"v_add_u32 v{vT[4]}, s{scol}, v{vT[4]}",
             f"v_and_b32 v{vT[3]}, 2, v{vI3}", f"v_xor_b32 v{vT[3]}, v{vT[3]}, v{i7}",
             f"v_lshl_add_u32 v{dst[0]}, v{vT[3]}, 4, v{vT[4]}",
             f"v_xor_b32 v{vT[3]}, 4, v{vT[3]}", f"v_lshl_add_u32 v{dst[1]}, v{vT[3]}, 4, v{vT[4]}",
             f"v_add_u32 v{dst[1]}, {d}, v{dst[1]}",
             f"v_add_u32 v{dst[2]}, {2 * d}, v{dst[0]}", f"v_add_u32 v{dst[3]}, {2 * d}, v{dst[1]}"]
        return PL(L)

    p(f"v_lshrrev_b32 v{vI3}, 3, v{vLane}")
    p.add(a_voffs(2048, vDA))
    p(f"s_lshl_b32 s{sC2}, s{sW}, 7")
    p.add(w_voffs(sC2, 8192, vDB))
    srd(p, SA, 62, 4194304)
    p(f"s_cmp_eq_u32 s{sIsV}, 0")
    p(f"s_cselect_b32 s36, s36, s38")
    p(f"s_cselect_b32 s37, s37, s39")
    srd(p, SB, 36, 8388608)
    p(f"s_lshl_b32 s{sA}, s{sRb}, 19")
    p(f"s_lshl_b32 s{sB}, s{sHead}, 9")
    if krot:
        p(f"s_and_b32 s{sT}, s2, 7" if krot == 1 else f"s_lshr_b32 s{sT}, s2, 5" if krot == 2 else f"s_bfe_u32 s{sT}, s2, 0x20003")
        p(f"s_lshl_b32 s{sT2}, s{sT}, {8 + (krot == 3)}")
        p(f"s_add_u32 s{sA}, s{sA}, s{sT2}")
        p(f"s_lshl_b32 s{sT2}, s{sT}, {20 + (krot == 3)}")
        p(f"s_add_u32 s{sB}, s{sB}, s{sT2}")
    p(f"s_lshl_b32 s{sMW}, s{sW}, 12")
    p(f"s_lshl_b32 s{sWb}, s{sW}, 12")
    p(f"s_lshl_b32 s{sWA}, s{sW}, 13")
    p(f"s_add_u32 s{sWA}, s{sWA}, 65536")
    p(f"s_mov_b32 s{sMA}, s{sWA}")

    def dma4(sm0, madd, voff, sr, so, inc, tags=(), mod="", qs=range(4)):
        L = [P(f"s_add_u32 m0, s{sm0}, {madd}")]
        for q in qs:
            L.append(P(f"buffer_load_dwordx4 v{voff[q]}, s[{sr}:{sr+3}], s{so} offen offset:{q * 1024}{mod} lds", tags))
        if inc:
            L.append(P(f"s_add_u32 s{so}, s{so}, {inc}"))
        return L

    def wrap(r, b): return [P(f"s_and_b32 s{r}, s{r}, {0xffffffff ^ (1 << b)}")] if krot else []
    def dmaW(add, tags=()): return dma4(sMW, add, vDB, SB, sB, 32 * 8192, tags, wmod) + wrap(sB, 23)
    def dmaA(half, tags=(), ma=0): return dma4(sMA, half * 4096 + ma, vDA[4 * half:], SA, sA, 128 if half else 0, tags, amod) + (wrap(sA, 11) if half else [])

    mark('d0')
    p.add(dmaW(0, ('p0',)))
    p.add(dmaA(0, ('p0',)))
    p.add(dmaA(1, ('p0',)))
    ln_load(p, vLane, sW, vE1, sid=sF)
    p.add(dmaW(16384, ('p1',)))
    p(f"s_add_u32 s{sMA}, s{sMA}, 65536")
    def pre_dma():
        return [dmaA(0, ('p2',), -32768), dmaA(1, ('p2',), -32768), dmaW(32768, ('p2',)), dmaW(49152), dmaA(0)]
    p.add(pre_dma()[:npre])
    p(f"s_lshl_b32 s{sT}, s2, 2")
    p(f"s_add_u32 s{sT}, s{sT}, s{sW}")
    p(f"v_lshlrev_b32 v{vT[0]}, 6, v{vLane}")
    p(f"s_lshl_b32 s{sT2}, s{sT}, 12")
    if atouch:
        p.add(NT(f"buffer_load_dword v255, v{vT[0]}, s[{SA}:{SA+3}], s{sT2} offen"))
    mark('d1')
    if wtouch:
        p(f"v_lshrrev_b32 v{vT[0]}, 2, v{vLane}")
        p(f"v_and_b32 v{vT[1]}, 3, v{vLane}")
        p(f"v_lshlrev_b32 v{vT[0]}, 13, v{vT[0]}")
        p(f"v_lshl_add_u32 v{vT[0]}, v{vT[1]}, 7, v{vT[0]}")
        p(f"s_lshl_b32 s{sT}, s{sW}, 3")
        p(f"s_add_u32 s{sT}, s{sT}, s{sRb}")
        p(f"s_lshl_b32 s{sT}, s{sT}, 18")
        p(f"s_lshl_b32 s{sT2}, s{sHead}, 9")
        p(f"s_add_u32 s{sT}, s{sT}, s{sT2}")
        p.add(NT(f"buffer_load_dword v255, v{vT[0]}, s[{SB}:{SB+3}], s{sT} offen"))
        p(f"s_add_u32 s{sT}, s{sT}, {16 * 8192}")
        p.add(NT(f"buffer_load_dword v255, v{vT[0]}, s[{SB}:{SB+3}], s{sT} offen"))
    r, g, f = vT[0], vT[1], vT[2]
    p(f"v_and_b32 v{r}, 15, v{vLane}")
    p(f"v_lshrrev_b32 v{g}, 4, v{vLane}")
    p(f"v_bfe_u32 v{f}, v{vLane}, 1, 3")
    p(f"s_lshl_b32 s{sT}, s{sWr}, 14")
    p(f"s_add_u32 s{sT}, s{sT}, 65536")
    for ks in range(2):
        t = vT[3]
        p(f"v_add_u32 v{t}, {4 * ks}, v{g}")
        p(f"v_xor_b32 v{t}, v{t}, v{f}")
        p(f"v_lshlrev_b32 v{t}, 4, v{t}")
        p(f"v_lshl_add_u32 v{t}, v{r}, 7, v{t}")
        p(f"v_add_u32 v{vA0[ks]}, s{sT}, v{t}")
        p(f"v_mov_b32 v{vA[ks]}, v{vA0[ks]}")
    p(f"v_and_b32 v{vT[3]}, 3, v{r}")
    p(f"v_lshlrev_b32 v{vT[3]}, 6, v{vT[3]}")
    p(f"v_lshl_add_u32 v{vStQ}, v{g}, 4, v{vT[3]}")
    p(f"v_lshrrev_b32 v{vT[3]}, 2, v{r}")
    p(f"v_mul_u32_u24 v{vT[3]}, {4096 + 512}, v{vT[3]}")
    p(f"s_lshl_b32 s{sT}, s{sHead}, 8")
    p(f"v_xor_b32 v{vT[3]}, s{sT}, v{vT[3]}")
    p(f"v_add_u32 v{vStQ}, v{vStQ}, v{vT[3]}")
    p(f"v_lshlrev_b32 v{vL16}, 4, v{vLane}")
    r4, c = vT[0], vT[3]
    p(f"v_bfe_u32 v{r4}, v{vLane}, 2, 2")
    p(f"v_and_b32 v{c}, 3, v{vLane}")
    t, t2 = vT[4], vT[5]
    p(f"v_lshl_add_u32 v{t}, v{g}, 3, v{r4}")
    p(f"v_lshlrev_b32 v{t}, 7, v{t}")
    p(f"v_lshl_add_u32 v{t}, v{c}, 3, v{t}")
    p(f"s_lshl_b32 s{sT}, s{sWc}, 13")
    p(f"v_add_u32 v{t}, s{sT}, v{t}")
    p(f"v_lshrrev_b32 v{t2}, 1, v{r4}")
    p(f"v_and_b32 v{c}, 1, v{g}")
    p(f"v_lshl_add_u32 v{t2}, v{c}, 1, v{t2}")
    for nb in range(4):
        p(f"v_xor_b32 v{c}, {nb}, v{t2}")
        p(f"v_lshl_add_u32 v{vB[nb]}, v{c}, 5, v{t}")
    srd(p, SWS, 58, WS_SPAN)
    p(f"v_lshlrev_b32 v2, 4, v0")
    for k in range(4, 8):
        p(f"v_mov_b32 v{k}, 0")
    p(f"s_lshl_b32 s{sT}, s{sF}, 12")
    p(f"s_add_u32 s{sT}, s{sT}, {F_ML}")
    p(f"buffer_store_dwordx4 v[4:7], v2, s[{SWS}:{SWS+3}], s{sT} offen sc1")
    p(f"s_lshl_b32 s{sFl}, s{sF}, 10")
    p(f"s_add_u32 s{sFl}, s{sFl}, {F_FL}")
    p(f"v_and_b32 v2, 0x3f0, v2")
    p(f"buffer_store_dwordx4 v[4:7], v2, s[{SWS}:{SWS+3}], s{sFl} offen sc1")
    p(f"v_add_u32 v{vDK}, s{sWb}, v{vL16}")
    srd(p, SD, 56, 256)
    p("s_mov_b64 s[56:57], s[60:61]")
    p(f"s_mov_b32 s{sAr}, 0")
    p(f"s_mov_b32 s{sKt}, 1")
    p(f"s_cmp_eq_u32 s{sW}, 0")
    p(f"s_cselect_b32 s{sEv}, 3, 0")

    def ln_items():
        c = Col()
        ln_compute(c, vLane, vE1, 58, rowmajor=True)
        G, cur = [], None
        for it in c.L:
            if it.text.startswith("s_mov_b32 exec_hi, 0x"):
                cur = []
            elif it.text.startswith("s_mov_b32 exec_hi, -1"):
                for k in range(0, len(cur), 4):
                    G.append([P("s_mov_b32 exec_hi, 0x00ffffff")] + cur[k:k + 4] + [P("s_mov_b32 exec_hi, -1")])
                cur = None
            elif cur is not None:
                cur.append(it)
            else:
                G.append(it)
        return chains(G)

    def cread(par, i):
        return P(f"ds_read_b128 {v(fC(par, i), 4)}, v{vA[par]} offset:{i * 2048}")

    def wreads(par):
        L = []
        for j in range(8):
            off = par * 16384 + (j >> 2) * 4096
            L += [P(f"ds_read_b64_tr_b16 {v(fW(par, j), 2)}, v{vB[j & 3]} offset:{off}"),
                  P(f"ds_read_b64_tr_b16 {v(fW(par, j) + 2, 2)}, v{vB[j & 3]} offset:{off + 512}")]
        return L

    def wunit(j): return 4 + (j + 2) % 6

    def cread2(j, i):
        return P(f"ds_read_b128 {v(fC(j & 1, i), 4)}, v{vA0[j & 1]} offset:{((j >> 1) % 4) * 16384 + i * 2048}")

    def wreads2(j):
        L = []
        u = wunit(j) - 4
        for jj in range(4):
            off = (u % 4) * 16384 + (jj >> 1) * 8192
            for h in range(2):
                L.append(P(f"ds_read_b64_tr_b16 {v(fW2(j & 1, jj) + 2 * h, 2)}, v{vB2[u // 4][jj & 1]} offset:{off + 512 * h}"))
        return L

    def dmaW2(j):
        if j < 14:
            return dma4(sWb, wunit(j) * 16384, vDA, SF, sBf, 32 * 3584, (f"X{j}",))
        return dma4(sWb, wunit(j) * 16384, vDB, SWQ, sB, 32 * 8192, (f"X{j}",))

    def dmaA2(s_, qs=range(4)):
        inc = (128 if s_ != 6 else -768) if 3 in qs else 0
        return dma4(sWb, (s_ % 4) * 16384, vDA[4:], SWS, sA, inc, (f"Y{s_}",), xnmod, qs)

    def advance():
        L = [f"s_add_u32 s{sMA}, s{sWA}, s{sAr}", f"s_add_u32 s{sAr}, s{sAr}, 32768",
             f"s_cmp_eq_u32 s{sAr}, 98304", f"s_cselect_b32 s{sAr}, 0, s{sAr}"]
        L2 = [f"v_add_u32 v{vA[k]}, s{sAr}, v{vA0[k]}" for k in range(2)]
        L2 += [f"v_xor_b32 v{x}, 0x8000, v{x}" for x in vB]
        return chains(PL(L)), PL(L2)

    def mf(par, isV, i, j, first=False):
        c_, w_ = v(fC(par, i), 4), v(fW(par, j), 4)
        x, y = (c_, w_) if (isV if not opx else opx == 1) else (w_, c_)
        d = a(acc(isV, i, j), 4)
        return P(f"{M16} {d}, {x}, {y}, {'0' if first else d}")

    def kstep(par, isV, first=False, vm=None, wt=(), dl=None, last=False, adv=True, fixed=(), pl=(), tag=None, pdl=()):
        G = Gaps([mf(par, isV, i, j, first) for i in range(8) for j in range(8)])
        if vm is not None:
            G.at(bar - 1, P(f"s_waitcnt vmcnt({vm}) lgkmcnt(0)"))
        else:
            G.at(bar - 1, WaitTag(tuple(wt) + tuple(keys('v', FR, 100))))
        G.at(bar, P("s_barrier"))
        if not last:
            wr_, cr = wreads(par ^ 1), (lambda i: cread(par ^ 1, i))
            G.at(62, WaitTag(keys('v', fC(par ^ 1, 0), 4) + keys('v', fW(par ^ 1, 0), 4 * bar)))
        else:
            wr_, cr = wreads2(0), (lambda i: cread2(0, i))
            G.at(63, WaitTag(keys('v', fC(0, 5), 4)))
        for n, it in enumerate(wr_):
            G.at(wr0 + n * wr_step, it)
        G.at(wr0 + 1, cr(7))
        for i in range(7):
            G.at(8 * i + 7, cr(i))
        if dl is None:
            dl = [dmaW(par * 16384, tag[0] if tag else ()) + ([P(f"s_xor_b32 s{sMW}, s{sMW}, 0x8000")] if par else []),
                  dmaA(par ^ 1, tag[1] if tag else ())]
        dl = list(pdl) + dl
        step = dma_step if len(dl) <= 2 else 58 // (4 * len(dl) - 1)
        d = 0
        for grp in dl:
            G.at(dma0 + d * step - 1, grp[0])
            for q in range(4):
                G.at(dma0 + (d + q) * step, grp[1 + q])
            for k, x in enumerate(grp[5:]):
                G.at(dma0 + (d + 3) * step + 1 + k, x)
            d += 4
        for sl, it in fixed:
            G.at(sl, it)
        if adv and par == 0:
            s_, v_ = advance()
            lo = max(40, dma0 + (d - 4) * step)
            G.place(s_, lo, max(55, lo + 5))
            G.place(v_, max(56, lo + 6), 63)
        for items, lo, hi in pl:
            G.place(items, lo, hi)
        p.add(G.out())

    def sidecall(cond, body, base='sd', br='s_cbranch_scc1'):
        lb, lr = p.newlabel(base), p.newlabel(base + 'r')
        side.append([Label(lb)] + body + [P(f"s_branch {lr}")])
        return Br(P(cond), P(f"{br} {lb}"), Label(lr))

    def brl(b): return [b.cond, b.br, b.lab]

    def signal(val, tmp):
        return PL([f"v_mov_b32 v{tmp}, {val}", f"s_mov_b64 exec, 1",
                   f"buffer_store_byte v{tmp}, off, s[{SD}:{SD+3}], s{sF} sc1", f"s_mov_b64 exec, -1"])

    def signal2(off, tmp):
        return PL([f"v_mov_b32 v{tmp}, 1", f"s_mov_b64 exec, 1",
                   f"buffer_store_dword v{tmp}, off, s[{SWS}:{SWS+3}], s{sFl} offset:{off} sc1", f"s_mov_b64 exec, -1"])

    def poll_xn(dst):
        return PL([f"v_lshrrev_b32 v{dst}, 2, v{vL16}", f"buffer_load_dword v{dst}, v{dst}, s[{SD}:{SD+3}], 0 offen sc1"])

    def poll_kv(dst):
        return PL([f"v_and_b32 v{dst}, 0xf0, v{vL16}", f"v_lshlrev_b32 v{dst}, 6, v{dst}", f"s_and_b32 s{sT}, s{sFl}, 0xffffc000",
                   f"buffer_load_dword v{dst}, v{dst}, s[{SWS}:{SWS+3}], s{sT} offen sc1"])

    def poll16(dst, srow, nt=False):
        ld = f"buffer_load_dword v{dst}, v{dst}, s[{SD}:{SD+3}], s{sT} offen sc1"
        return PL([f"v_bfe_u32 v{dst}, v{vL16}, 2, 4", f"s_lshl_b32 s{sT}, s{srow}, 4", NT(ld) if nt else ld])

    def spin_check(reg, mask, reissue):
        ok, spin, sp2 = p.newlabel('pok'), p.newlabel('spin'), p.newlabel('sp2')
        tst = [f"v_and_b32 v{reg}, {mask}, v{reg}", f"v_cmp_ne_u32 vcc, {mask}, v{reg}"]
        side.append(PL([Label(spin), f"s_mov_b32 s{sT2}, 0", Label(sp2), f"s_add_u32 s{sT2}, s{sT2}, 1",
                        f"s_cmp_gt_u32 s{sT2}, 0x40000", f"s_cbranch_scc1 {ok}", f"s_sleep {psleep}"] + reissue + tst +
                       [f"s_cbranch_vccnz {sp2}", f"s_branch {ok}"]))
        return [P(tst[0]), Br(P(tst[1]), P(f"s_cbranch_vccnz {spin}"), Label(ok))]

    def touch_setup():
        l1, l2, lj = (p.newlabel(x) for x in ('t1', 't2', 'tj'))
        t, t2 = vT[0], vT[1]
        sb, sLg, sRs = 46, sC2, sOut
        L = [f"s_cmp_ge_u32 s{sW}, 2", f"s_cbranch_scc1 {l2}",
             f"s_cmp_lg_u32 s{sW}, 0", f"s_cbranch_scc1 {l1}",
             f"s_mov_b64 s[{sb}:{sb+1}], s[68:69]",
             f"s_mul_i32 s{sT}, s{sU}, {28 * 8192}", f"s_lshl_b32 s{sT2}, s{sHead}, 9", f"s_add_u32 s{sT}, s{sT}, s{sT2}",
             f"s_mov_b32 s{ST+2}, {27 * 8192 + 512}", f"s_mov_b32 s{sLg}, 2", f"s_mov_b32 s{sRs}, 8192",
             f"s_mov_b32 s{sTs}, {3 * 8192}", f"s_branch {lj}", Label(l1),
             f"s_cmp_eq_u32 s{sIsV}, 0", f"s_cselect_b64 s[{sb}:{sb+1}], s[72:73], s[74:75]",
             f"s_mul_i32 s{sT}, s{sRb}, {56 * 3584}", f"s_min_u32 s{sT2}, s{sHead}, 13",
             f"s_lshl_b32 s{sT2}, s{sT2}, 8", f"s_add_u32 s{sT}, s{sT}, s{sT2}",
             f"s_mov_b32 s{ST+2}, {55 * 3584 + 256}", f"s_mov_b32 s{sLg}, 1", f"s_mov_b32 s{sRs}, 3584",
             f"s_mov_b32 s{sTs}, {6 * 3584}", f"s_branch {lj}", Label(l2),
             f"s_mov_b32 s{ST+2}, {112 * 128}", f"s_cmp_eq_u32 s{sW}, 2",
             f"s_cselect_b64 s[{sb}:{sb+1}], s[70:71], s[100:101]", f"s_cselect_b32 s{ST+2}, s{ST+2}, {49 * 128}",
             f"s_mul_i32 s{sT}, s{sF}, s{ST+2}", f"s_mov_b32 s{sLg}, 0", f"s_mov_b32 s{sRs}, 128",
             f"s_mov_b32 s{sTs}, {12 * 128}", Label(lj),
             f"s_add_u32 s{ST}, s{sb}, s{sT}", f"s_addc_u32 s{ST+1}, s{sb+1}, 0", f"s_and_b32 s{ST+1}, s{ST+1}, 0xffff",
             f"s_mov_b32 s{ST+3}, 0x00020000", f"s_mov_b32 s{sTo}, {OOB if notch else 0}",
             f"v_mul_u32_u24 v{t}, 3, v{vLane}", f"v_lshrrev_b32 v{t}, 4, v{t}",
             f"v_lshrrev_b32 v{t2}, s{sLg}, v{t}", f"v_mul_u32_u24 v{vTch}, s{sRs}, v{t2}",
             f"v_lshlrev_b32 v{t2}, s{sLg}, v{t2}", f"v_sub_u32 v{t}, v{t}, v{t2}",
             f"v_lshl_add_u32 v{vTch}, v{t}, 7, v{vTch}"]
        return PL(L)

    def f_setup():
        L = [f"s_cmp_eq_u32 s{sWr}, 0", f"s_cselect_b32 s{SF}, s72, s74", f"s_cselect_b32 s{SF+1}, s73, s75",
             f"s_and_b32 s{SF+1}, s{SF+1}, 0xffff", f"s_cmp_lt_u32 s{sHead}, 14",
             f"s_cselect_b32 s{SF+2}, {448 * 3584}, 0", f"s_mov_b32 s{SF+3}, 0x00020000",
             f"s_lshl_b32 s{sBf}, s{sHead}, 8", f"s_lshl_b32 s{sC2}, s{sWc}, 7"]
        return chains(PL(L) + w_voffs(sC2, 3584, vDA))

    def job_setup():
        hb = sC2
        L = [f"s_lshl_b32 s{hb}, s{sHead}, 20", f"s_add_u32 s{sT}, s{sU}, 1", f"s_lshl_b32 s{sT}, s{sT}, 16",
             f"s_add_u32 s{sKend}, s{hb}, s{sT}", f"s_sub_u32 s{sT2}, s{sKend}, {36 * 16384}",
             f"s_mov_b32 s{sMaskAt}, 0", f"s_xor_b32 s{sT}, s{sF}, 15",
             f"s_lshl_b32 s{sQo}, s{sF}, 16", f"s_add_u32 s{sQo}, s{sQo}, {F_Q}",
             f"s_cmp_ge_u32 s{sU}, 9", f"s_cselect_b32 s{sKind}, {MERGE}, {FULL}", f"s_cselect_b32 s{sRem}, 8, s{sU}",
             f"s_cselect_b32 s{sKo}, s{sT2}, s{hb}", f"s_cselect_b32 s{sPo}, s{sT}, s{sF}",
             f"s_cselect_b32 s{sQo}, s{sQo}, {OOB}",
             f"s_sub_u32 s{sT}, 7, s{sU}", f"s_lshl_b32 s{sT}, s{sT}, 16", f"s_add_u32 s{sEnd2}, s{hb}, s{sT}",
             f"s_cmp_le_u32 s{sU}, 6", f"s_cselect_b32 s{sKind}, {HOLD}, s{sKind}", f"s_cselect_b32 s{sKnx}, s{hb}, {OOB}",
             f"s_mov_b32 s{sVo}, s{sKo}", f"s_mov_b32 s{sVend}, s{sKend}", f"s_mov_b32 s{sVnx}, s{sKnx}",
             f"s_lshl_b32 s{sT}, s{sW}, 14", f"s_add_u32 s{sQo}, s{sQo}, s{sT}",
             f"s_lshl_b32 s{sPo}, s{sPo}, 2", f"s_add_u32 s{sPo}, s{sPo}, s{sW}",
             f"s_lshl_b32 s{sMl}, s{sPo}, 10", f"s_add_u32 s{sMl}, s{sMl}, {F_ML}",
             f"s_lshl_b32 s{sPo}, s{sPo}, 14", f"s_add_u32 s{sPo}, s{sPo}, {F_PO}",
             f"s_mul_i32 s{sSo}, s{sU}, {US}",
             f"s_lshl_b32 s{sT}, s{sW}, 14", f"s_add_u32 s{sSo}, s{sSo}, s{sT}", f"s_add_u32 s{sSo}, s{sSo}, {F_PS}",
             f"s_add_u32 s{SV}, s58, {WS_V}", f"s_addc_u32 s{SV+1}, s59, 0", f"s_and_b32 s{SV+1}, s{SV+1}, 0xffff",
             f"s_mov_b32 s{SV+2}, {KV_BYTES}", f"s_mov_b32 s{SV+3}, 0x00020000"]
        return chains(PL(L))

    def out_setup():
        L = [f"s_lshl_b32 s{sT}, s{sHead}, 6", f"s_lshl_b32 s{sT2}, s{sRb}, 3", f"s_add_u32 s{sT}, s{sT}, s{sT2}",
             f"s_lshl_b32 s{sT2}, s{sWr}, 2", f"s_add_u32 s{sT}, s{sT}, s{sT2}", f"s_lshl_b32 s{sOut}, s{sT}, 14",
             f"s_lshl_b32 s{sT2}, s{sWc}, 13", f"s_add_u32 s{sOut}, s{sOut}, s{sT2}",
             f"s_lshl_b32 s{sT2}, s{sIsV}, 24", f"s_add_u32 s{sOut}, s{sOut}, s{sT2}",
             *([f"s_mov_b32 s{sOut}, {OOB}"] if nokv else []),
             f"s_mov_b32 s{SWQ}, s68", f"s_and_b32 s{SWQ+1}, s69, 0xffff", f"s_mov_b32 s{SWQ+2}, {448 * 8192}",
             f"s_lshl_b32 s{sB}, s{sHead}, 9",
             f"s_mov_b32 s{SWO}, s70", f"s_and_b32 s{SWO+1}, s71, 0xffff", f"s_mov_b32 s{SWO+2}, {4096 * 896}",
             f"s_mul_i32 s{sWo}, s{sHead}, {256 * 896}",
             f"s_mul_i32 s{sHo}, s{sU}, {US}", f"s_lshl_b32 s{sT}, s{sWr}, 16", f"s_add_u32 s{sHo}, s{sHo}, s{sT}",
             f"s_lshl_b32 s{sT}, s{sWc}, 17", f"s_add_u32 s{sHo}, s{sHo}, s{sT}", f"s_add_u32 s{sHo}, s{sHo}, {F_PF}",
             f"s_cmp_lt_u32 s{sHead}, {0 if 'h' in tx else 14}", f"s_cselect_b32 s{sHo}, s{sHo}, {OOB}",
             f"s_mov_b32 s{sSc}, {f2u(LOG2E / 16)}", f"s_mov_b32 s{sSc+1}, {f2u(LOG2E / 16)}",
             f"s_mov_b32 s{sBst}, {f2u(-LOG2E)}"]
        return chains(PL(L))

    def rd2_setup():
        L = [f"s_add_u32 s{sT}, s{sWA}, 0", f"s_lshl_b32 s{sT}, s{sWr}, 14", f"s_add_u32 s{sT}, s{sT}, 65536"]
        L += [f"v_subrev_u32 v{vA0[k]}, s{sT}, v{vA0[k]}" for k in range(2)]
        L += [f"s_lshl_b32 s{sT}, s{sWr}, 12", f"s_lshl_b32 s{sT2}, s{sWc}, 13", f"s_sub_u32 s{sT}, s{sT}, s{sT2}",
              f"s_add_u32 s{sT}, s{sT}, {65536 - 0x8000}", f"s_cmp_lg_u32 s{sWc}, 0", f"s_cselect_b64 vcc, -1, 0"]
        for k in range(2):
            L += [f"v_cndmask_b32 v{vB2[0][k]}, v{vB[k]}, v{vB[2 + k]}, vcc", f"v_add_u32 v{vB2[0][k]}, s{sT}, v{vB2[0][k]}"]
        return chains(PL(L[1:]))

    STK = {sn: k for k, sn in spread(list(range(32)), st0, st1)}
    def kvstore(sn, data):
        L = [P(f"buffer_store_dwordx4 {data}, v{vL16}, s[{SWS}:{SWS+3}], s{sOut} offen offset:{(sn & 3) * 1024}{ksm}", ('kv',))]
        if sn & 3 == 3:
            L.append(P(f"s_add_u32 s{sOut}, s{sOut}, {12288 if sn & 4 else 4096}"))
        return L

    def unit(sn, T, direct):
        L = [P(f"v_accvgpr_read_b32 v{T + r}, a{8 * sn + r}") for r in range(8)]
        L += [P(f"v_cvt_pk_bf16_f32 v{T + r}, v{T + 2 * r}, v{T + 2 * r + 1}") for r in range(4)]
        if direct:
            return L + kvstore(sn, v(T, 4))
        return L + [P(f"v_accvgpr_write_b32 a{8 * sn + r}, v{T + r}") for r in range(4)]

    p.add(touch_setup())
    mark('d2')
    p.wait_tags('p0')
    p("s_barrier")
    mark('p')
    p.add([cread(0, 0)] + wreads(0) + [cread(0, i) for i in range(1, 8)])
    lV, lT2 = p.newlabel('vpath'), p.newlabel('t2')
    p(f"s_cmp_lg_u32 s{sIsV}, 0")
    p(f"s_cbranch_scc1 {lV}")

    def tid128(r):
        return [f"v_lshlrev_b32 v{r}, 3, v{vL16}", f"s_lshl_b32 s{sT2}, s{sW}, 13", f"v_add_u32 v{r}, s{sT2}, v{r}"]

    def tile1(isV):
        G = ln_items()
        h = len(G) * lnh // 100
        kstep(0, isV, first=True, wt=('p1',), pl=[(G[:h], 8, 63)], pdl=pre_dma()[npre:])
        mark('k1')
        kstep(1, isV, wt=('p2',), pl=[(G[h:], 0, 63)])
        mark('k2')
        lab = p.newlabel('loop')
        p.raw(".p2align 6")
        p.label(lab)
        if stamp and 'km' in marks:
            r_ = stp.sb + 6 + 2 * marks.index('km')
            p.add(brl(sidecall(f"s_cmp_eq_u32 s{sKt}, 6", [P(f"{stp.op} s[{r_}:{r_+1}]"), P("s_waitcnt lgkmcnt(0)")])))
        ev0 = sidecall(f"s_cmp_eq_u32 s{sKt}, s{sEv}", signal(1, vT[0]))
        tch = [(bar + 1, NT(f"buffer_load_dword v255, v{vTch}, s[{ST}:{ST+3}], s{sTo} offen")), (9, P(f"s_add_u32 s{sTo}, s{sTo}, s{sTs}"))]
        kstep(0, isV, vm=17, fixed=tch, pl=[([ev0], 6, 20)])
        kstep(1, isV, vm=17, fixed=[(58, P(f"s_add_u32 s{sKt}, s{sKt}, 1")), (61, P(f"s_cmp_lt_u32 s{sKt}, 12"))])
        p(f"s_cbranch_scc1 {lab}")
        mark('k24')
        def tg(k): return ((f"W{k + 4}",), (f"A{(k + 5) // 2}",))
        kstep(0, isV, vm=16, tag=tg(24), pl=[(poll_xn(vPoll), 6, 20), (job_setup(), 21, 63)])
        kstep(1, isV, vm=17, tag=tg(25), pl=[(code_touch(ST, 254, tid128(254)), 30, 63)])
        kstep(0, isV, vm=17 + ctouch, tag=tg(26), pl=[(f_setup(), 2, 60)])
        xs = PL([f"s_mul_i32 s{sA}, s{sU}, {128 * 896}", f"s_add_u32 s{sA}, s{sA}, {WS_XN}"])
        kstep(1, isV, wt=("W28", "A14"), dl=[dmaW(16384, ("W31",)), dmaW2(0)],
              pl=[(spin_check(vPoll, 0x01010101, poll_xn(vPoll)) + xs + a_voffs(896, vDA[4:]), 2, 60)])
        kstep(0, isV, wt=("W29",), dl=[dmaA2(0), dmaW2(1)], fixed=[(2, P("s_load_dwordx2 s[28:29], s[0:1], 80"))])
        kstep(1, isV, wt=("W30", "A15"), dl=[dmaA2(1), dmaW2(2)], pl=[(rd2_setup(), 2, 60)])
        kstep(0, isV, wt=("W31",), dl=[dmaA2(2), dmaW2(3)], adv=False, pl=[(out_setup(), 2, 60)])
        early = []
        for n, sn in enumerate([s_ for s_ in range(32) if STK[s_] < 0]):
            early += unit(sn, 232 + 8 * (n % 3), True)
        w2 = PL([f"v_add_u32 v{vB2[1][k]}, 65536, v{vB2[0][k]}" for k in range(2)])
        kstep(1, isV, wt=("X0", "Y0"), dl=[dmaA2(3), dmaW2(4), dmaW2(5)], last=True, pl=[(w2, 2, 10), (early, 18, 63)])

    tile1(False)
    p(f"s_branch {lT2}")
    p.label(lV)
    tile1(True)
    p.label(lT2)
    mark('t1')
    vMx, vMx2, vRWu = [2, 3], [4, 5], [6, 7]
    vPs = [8, 9]
    vDW = [10, 11, 12, 13]
    vL16h, vRW, vBig, vQr = 16, 17, 18, 19
    vNegM, vLs = [20, 21], [22, 23]
    vQw = [24, 25]
    vPl = vLane
    vP, vE, vS, vC = 24, 48, [64, 80], 112
    OB = [32, 96, 160, 176, 192, 208, 224, 240]
    def O(db, rb): return OB[db >> 1] + 8 * rb + 4 * (db & 1)
    vH = 128
    vML, vInv, vStS1, vI, vWb = 128, [132, 133], 134, 136, 144
    aQ, aR, aPO = 0, 64, 128
    aH, aFP = 128, 192
    vF2a, vHw, vHr, vF2r = [100, 101, 102, 103], [104, 105], 106, 224
    sSide, sFst, sHp, sFw, sFp, sWd = 100, 101, 23, 25, 35, 77
    SWD, SX, SO, SPZ = 52, 48, 68, 56
    sIt, sRf, sRs = 26, 28, 29
    vLs8, vLo, vFp = 136, [134, 135], 131
    def aFL(q): return 192 + 4 * (q % nring)
    def aFA(m): return 192 + 4 * nring + 4 * m
    EV = [(int(x[0]), int(x[1]), x[2], int(x[3:] or 0)) for x in evs.split()]
    assert sum(x[3] for x in EV if x[2] == 's') == 4 * (6 - fdir) and sum(x[3] for x in EV if x[2] == 'l') == 28
    assert sum(x[3] for x in EV if x[2] == 'z') == 4 * npz and aFA((27 - nring) >> 3) <= 252
    ps = {k: [4 * x[0] + x[1] for x in EV if x[2] == k for _ in range(max(x[3], 1))] for k in 'slzfpuc'}
    assert ps['f'][0] >= max(ps['s']) + 3 and all(ps['l'][q] >= ps['l'][q - nring] + 3 for q in range(nring, 28))
    assert ps['f'][0] < ps['p'][0] < ps['c'][0] <= ps['l'][0] and ps['u'][0] < ps['l'][0] and max(x[0] for x in EV) <= 6
    assert EV == sorted(EV, key=lambda x: x[:2])
    def ring(n): return aR + 4 * (n % 16)

    def kv_dma(isV, tile):
        sl = tile % 4
        unit_ = [2, 3, 0, 1][sl] if isV else 4 + sl
        so, sr, se, sn = (sVo, SV, sVend, sVnx) if isV else (sKo, SWS, sKend, sKnx)
        L = dma4(sWb, unit_ * 16384, [vDK] * 4, sr, so, 16384, (f"U{unit_}",), kvmod)
        if sl == 3:
            L.append(Chain(PL([f"s_cmp_eq_u32 s{so}, s{se}", f"s_cselect_b32 s{so}, s{sn}, s{so}",
                               f"s_cselect_b32 s{se}, s{sEnd2}, s{se}", f"s_cselect_b32 s{sn}, {OOB}, s{sn}"])))
        return L

    def lin(L):
        out = []
        for x in L:
            if isinstance(x, Chain):
                out += x.ops
            elif isinstance(x, Br):
                out += brl(x)
            else:
                out.append(x)
        return out

    def qk(tile, n0):
        L = []
        S = vS[tile % 2]
        for n in range(16):
            rd = [P(f"ds_read_b128 {a(ring(n0 + n), 4)}, v{vL16h} offset:{(tile % 4) * 16384 + n * 1024}")]
            m = []
            for rb in range(2):
                o = 8 * rb + 4 * (n & 1)
                m.append(P(f"{M16} {v(S + o, 4)}, {a(ring(n0 + n), 4)}, {a(aQ + 8 * (n >> 1) + 4 * rb, 4)}, {v((vC if n < 2 else S) + o, 4)}"))
            L.append((m, rd))
        return L

    def q_poll():
        return PL([f"s_xor_b32 s{sT}, s{sFl}, 0x3c00", f"buffer_load_dword v{vPl}, off, s[{SWS}:{SWS+3}], s{sT} offset:128 sc1"])

    def fstore(data, so, rb4, nph=1, tg='fs'):
        return PL([P(f"buffer_store_dwordx4 {data}, v{vStQ}, s[{SWS}:{SWS+3}], s{so} offen{fsm}", (tg,)),
                   f"s_add_u32 s{so}, s{so}, {16384 if rb4 < 3 else nph * PHS - 49152}" if nph else f"s_mov_b32 s{so}, {OOB}"])

    def wsignal(val, tmp):
        return PL([f"v_mov_b32 v{tmp}, {val}", f"s_mov_b64 exec, 1",
                   f"buffer_store_dword v{tmp}, off, s[{SWS}:{SWS+3}], s{sFw} sc1", f"s_mov_b64 exec, -1"])

    def w_poll(dst):
        return PL([f"v_and_b32 v{dst}, 0xf0, v{vL16}", f"v_lshlrev_b32 v{dst}, 10, v{dst}",
                   f"buffer_load_dword v{dst}, v{dst}, s[{SWS}:{SWS+3}], s{sFp} offen sc1"])

    def sel_setup(D, t, t2):
        L = [f"v_and_b32 v{t}, 16, v{vL16}", f"v_mov_b32 v{t2}, 0x3f80", f"v_lshlrev_b32 v{t}, v{t}, v{t2}", f"v_bfe_u32 v{t2}, v{vL16}, 5, 3"]
        for k in range(8):
            L += [f"v_cmp_eq_u32 vcc, {k}, v{t2}", f"v_cndmask_b32 v{D[k >> 2] + (k & 3)}, 0, v{t}, vcc"]
        return PL(L)

    def ro_setup():
        return PL([f"s_and_b32 s{sT}, s{sHead}, 1", f"s_lshl_b32 s{sT}, s{sT}, 10", f"v_add_u32 v{vLo[0]}, s{sT}, v{vL16}",
                   f"s_lshl_b32 s{sT}, s{sWr}, 9", f"s_add_u32 s{sT}, s{sT}, 1024", f"v_xor_b32 v{vLo[1]}, s{sT}, v{vLo[0]}",
                   f"v_and_b32 v{vRWu[0]}, 0x200, v{vL16}", f"v_lshl_add_u32 v{vLo[1]}, v{vRWu[0]}, 21, v{vLo[1]}"])

    def fld(q):
        j = q & 3
        L = [NT(f"buffer_load_dwordx4 {a(aFL(q), 4)}, v{vL16 if j < 2 else vLo[j - 2]}, s[{SWS}:{SWS+3}], s{sRf} offen offset:{min(j, 2) * 1024}{fmod}", ('fl',))]
        if q >= nring:
            r = q - nring
            d = a(aFA(r >> 3), 4)
            L.insert(0, f"{M16} {d}, {v(vLs8 + 4 * ((r >> 2) & 1), 4)}, {a(aFL(r), 4)}, {d if r & 7 else '0'}")
        return PL(L + ([f"s_add_u32 s{sRf}, s{sRf}, {PHS}"] if j == 3 else []))

    def poison(n):
        return PL([f"buffer_store_dwordx4 {v(vL16h, 4)}, v{vStQ}, s[{SWS}:{SWS+3}], s{sPz} offen sc1",
                   f"s_add_u32 s{sPz}, s{sPz}, 65536"] * n)

    def maskchk(u, inloop=False):
        blk = [P(f"v_subrev_u32 v{vRWu[0]}, {32 * u}, v{vRW}"), P(f"v_add_u32 v{vRWu[1]}, 64, v{vRWu[0]}")]
        for r0 in range(0, 16, 4):
            for r in range(r0, r0 + 4):
                blk.append(P(f"v_cmp_gt_i32 s[{sMk[r % 4]}:{sMk[r % 4]+1}], {16 * ((r >> 2) & 1) + (r & 3)}, v{vRWu[r >> 3]}"))
            for r in range(r0, r0 + 4):
                blk.append(P(f"v_cndmask_b32 v{vC + r}, v{vNegM[r >> 3]}, v{vBig}, s[{sMk[r % 4]}:{sMk[r % 4]+1}]"))
        if u == 3:
            blk += q_poll()
        if not inloop:
            return sidecall(f"s_cmp_eq_u32 s{sRem}, s{sMaskAt}", blk, 'mask')
        if u == 0:
            blk += flat(code_touch(12, vPl, tid128(vPl)))
        ev, cnt = {}, {}
        for it, uu, k, n in EV:
            m = cnt.get(k, 0)
            cnt[k] = m + n
            if uu != u:
                continue
            body = dict(s=lambda: flat([fstore(a(aFP + 4 * x, 4), sHp, x % 4, tg='fe') for x in range(m, m + n)]),
                        l=lambda: flat([fld(q) for q in range(m, m + n)]), z=lambda: poison(n),
                        f=lambda: [WaitTag(('fs',))] + wsignal(1, vRWu[0]), p=lambda: w_poll(vFp),
                        u=lambda: sel_setup([vLs8, vLs8 + 4], vRWu[0], vRWu[1]) + ro_setup(),
                        c=lambda: lin(spin_check(vFp, 1, w_poll(vFp))))[k]()
            ev[it] = ev.get(it, []) + body
        if not ev:
            return sidecall(f"s_cmp_eq_u32 s{sRem}, s{sMaskAt}", blk, 'mask')
        l1 = p.newlabel('m')
        blk = PL([f"s_cmp_eq_u32 s{sRem}, s{sMaskAt}", f"s_cbranch_scc0 {l1}"] + blk + [Label(l1)])
        for it, body in ev.items():
            l1 = p.newlabel('m')
            blk += PL([f"s_cmp_eq_u32 s{sIt}, {it}", f"s_cbranch_scc0 {l1}"] + body + [Label(l1)])
        return sidecall(f"s_bitcmp1_b32 s{sSide}, {u}", blk, 'mask')

    def mf2(j, i, jj):
        d = v(128 + 16 * i + 4 * jj, 4) if j < 14 else a(16 * i + 4 * jj, 4)
        return P(f"{M16} {d}, {v(fW2(j & 1, jj), 4)}, {v(fC(j & 1, i), 4)}, {'0' if j in (0, 14) else d}")
    B2 = 32 * 28
    FU = [4, 5, 0, 2, 6, 3, 7]
    def facc(n, rb4): return (64 if n & 1 else 32) + 8 * rb4
    def mf3(n, kk, c, rb4):
        d = v(facc(n, rb4) + 4 * c, 4)
        return P(f"{M16} {d}, {v(vF2r + 4 * (2 * kk + c), 4)}, {a(aH + 16 * rb4 + 4 * kk, 4)}, {'0' if kk == 0 else d}")
    G = Gaps([mf2(j, i, jj) for j in range(28) for i in range(8) for jj in range(4)] +
             [mf3(n, kk, c, rb4) for n in range(7) for kk in range(4) for c in range(2) for rb4 in range(4)])

    def gmark(nm, slot):
        if stamp and nm in marks:
            r_ = stp.sb + 6 + 2 * marks.index(nm)
            G.at(slot, [[P(f"{stp.op} s[{r_}:{r_+1}]"), P("s_waitcnt lgkmcnt(0)")]])

    def wd_dma(n):
        return [P(f"s_add_u32 s{sT2}, s{sWd}, {n * 128}")] + dma4(sWb, FU[n] * 16384, vDW, SWD, sT2, 0, (f"D{n}",))
    phA = qk(0, 0)
    for q in range(56):
        n, kk, c, u = q >> 3, (q >> 1) & 3, q & 1, FU[q >> 3]
        for h in range(2):
            G.at(B2 + 4 * (q - 4) + 2 * h, P(f"ds_read_b64_tr_b16 {v(vF2r + 4 * (q & 7) + 2 * h, 2)}, v{vF2a[2 * (u // 4) + c]} "
                                          f"offset:{(u % 4) * 16384 + kk * 4096 + 2048 * h}"))
        if q & 1 == 0:
            G.at(B2 + 4 * q - (2 if q & 7 == 4 else 1), WaitTag(tuple(keys('v', vF2r + 4 * ((q + 1) & 7), 4) + (keys('a', aH, 64) if q == 0 else []))))
    for n in range(7):
        G.at(B2 + 32 * n + 13, WaitTag((f"D{n + 1}",) if n < 6 else ("U4", "qx")))
        G.at(B2 + 32 * n + 15, P("s_barrier"))
    gmark('t2', B2 - 1)
    for j in range(28):
        b = 32 * j
        wt = []
        if j < 27:
            wt = [f"X{j + 1}"] + ([f"Y{(j + 1) // 2}"] if j & 1 else [])
        else:
            wt = keys('v', FR, 68) + ['hx', 'D0']
        if j == sig_k:
            wt.append('kv')
        G.at(b, WaitTag(tuple(wt)))
        if 'b' not in t2x or j & 1:
            G.at(b + 1, P("s_barrier"))
        if j == 14:
            gmark('f', b - 1)
        G.at(b + 19, WaitTag(keys('v', fC(0, 6), 4)))
        if j < 27:
            for i in range(7):
                G.at(b + 4 * i + 3, cread2(j + 1, i))
            for n, it in enumerate([cread2(j + 1, 7)] + wreads2(j + 1)):
                G.at(b + 2 + 2 * n + (n > 0), it)
            G.at(b + 31, WaitTag(keys('v', fC(0, 5), 4)))
        dl = []
        if j + 6 <= 27:
            dl += dmaW2(j + 6)
        if 2 <= j and j // 2 + 3 <= 13:
            dl += dmaA2(j // 2 + 3, (2, 3) if j & 1 else (0, 1))
        if 22 <= j <= 26:
            dl += wd_dma([0, 1, 3, 4, 2][j - 22])
        if 'd' in t2x:
            dl = []
        if 'a' in t2x:
            dl = dl[:6]
        G.place(dl, b + 2, b + 30)
    G.place([sidecall(f"s_cmp_eq_u32 s{sW}, 0", signal2(0, vT[0]))], 32 * sig_k + 2, 32 * sig_k + 12)
    comp = [sn for sn in range(32) if STK[sn] > 13]
    assert all(sn >= 16 for sn in comp)
    CK = {sn: k for k, sn in spread(comp, 0, 13)}
    n = 0
    L = []
    for j in range(14):
        for sn in range(32):
            if STK[sn] == j or CK.get(sn) == j:
                L += unit(sn, 100 + 8 * (n % 3), STK[sn] == j)
                n += 1
    drain = L if 'v' not in t2x else []
    for j in range(14, 28):
        G.place(flat([kvstore(sn, a(8 * sn, 4)) for sn in range(32) if STK[sn] == j]), 32 * j + 8, 32 * j + 31)
    t, t2 = vT[4], vT[5]
    L = [f"v_lshrrev_b32 v{t}, 3, v{vLane}", f"v_and_b32 v{t2}, 6, v{t}", f"v_mul_u32_u24 v{t}, 896, v{t}",
         f"v_xor_b32 v{t2}, v{t2}, v{vLane}", f"v_and_b32 v{t2}, 7, v{t2}", f"v_lshl_add_u32 v{t}, v{t2}, 4, v{t}",
         f"s_mul_i32 s{sT}, s{sW}, {32 * 896}", f"v_add_u32 v{vDW[0]}, s{sT}, v{t}"]
    L += [f"v_add_u32 v{vDW[q]}, {q * (8 * 896 - 1024)}, v{vDW[0]}" for q in range(1, 4)]
    G.place(PL(L), 32, 32 * 8)
    L = [f"v_add_u32 v{vL16h}, 0x10000, v{vL16}", f"v_mov_b32 v{vBig}, {NEG_BIG}",
         f"v_and_b32 v{t}, 15, v{vLane}", f"v_lshrrev_b32 v{t2}, 4, v{vLane}", f"v_lshlrev_b32 v{t2}, 2, v{t2}",
         f"v_sub_u32 v{t}, v{t}, v{t2}", f"s_lshl_b32 s{sT}, s{sW}, 4", f"v_add_u32 v{vRW}, s{sT}, v{t}",
         f"s_lshl_b32 s{sT}, s{sWc}, 14", f"s_lshl_b32 s{sT2}, s{sWr}, 17", f"s_add_u32 s{sT}, s{sT}, s{sT2}",
         f"v_add_u32 v{vQr}, s{sT}, v{vL16}"]
    G.place(PL(L), 32 * 8 + 1, 32 * 14 - 1)

    G.place(drain, 4, 32 * 14 - 1)

    def job_init():
        return PL([f"v_mov_b32 v{x}, 0" for x in vNegM + vLs + list(range(vC, vC + 16))])
    L = [f"s_lshl_b32 s{sT}, s{sW}, 11", f"v_add_u32 v{vQw[0]}, s{sT}, v{vL16}", f"v_add_u32 v{vQw[1]}, 0x20000, v{vQw[0]}"]
    L += [f"s_mov_b32 s{sIt}, 0", f"s_add_u32 s{sPz}, s{sSo}, {(7 - npz) * PHS}"]
    G.place(PL(L) + job_init(), 32 * 22, 32 * 27 - 1)
    G.place(poll_kv(vPl), 32 * 27 + 16, 32 * 28 - 1)
    L = []
    for q in range(64 + 8):
        def reg(x): return 128 + 16 * (x >> 3) + (x & 7)
        def ok(x): return 0 <= x < 64
        if ok(q):
            L += [f"v_mul_f32 v{reg(q) + 8}, v{reg(q)}, v{reg(q) + 8}", f"v_mul_f32 v{reg(q)}, s{sBst}, v{reg(q)}"]
        if ok(q - 1):
            L += [f"v_exp_f32 v{reg(q - 1)}, v{reg(q - 1)}"]
        if ok(q - 7) and (q - 7) & 1:
            x = q - 7
            L += [f"v_cvt_pk_bf16_f32 v{vH + (x >> 1)}, v{reg(x) + 7}, v{reg(x) + 8}"]
        if ok(q - 3):
            L += [f"v_add_f32 v{reg(q - 3)}, 1.0, v{reg(q - 3)}"]
        if ok(q - 6):
            L += [f"v_mul_f32 v{reg(q - 6) + 8}, v{reg(q - 6)}, v{reg(q - 6) + 8}"]
        if ok(q - 4):
            L += [f"v_rcp_f32 v{reg(q - 4)}, v{reg(q - 4)}"]
    fe = PL(L) if 'v' not in t2x else []
    t, t2, c = vT[3], vT[4], vT[5]
    L = [f"v_lshrrev_b32 v{t}, 6, v{vL16}", f"v_bfe_u32 v{t2}, v{t}, 1, 2", f"v_lshlrev_b32 v{t}, 7, v{t}",
         f"v_bfe_u32 v{c}, v{vL16}, 1, 5", f"v_add_u32 v{t}, v{t}, v{c}", f"s_lshl_b32 s{sT}, s{sWc}, 1",
         f"v_xor_b32 v{t2}, s{sT}, v{t2}", f"v_lshl_add_u32 v{vF2a[0]}, v{t2}, 5, v{t}", f"v_xor_b32 v{vF2a[1]}, 32, v{vF2a[0]}",
         f"v_add_u32 v{vF2a[2]}, 0x10000, v{vF2a[0]}", f"v_add_u32 v{vF2a[3]}, 0x10000, v{vF2a[1]}",
         f"s_lshl_b32 s{sT}, s{sW}, 10", f"s_add_u32 s{sT}, s{sT}, {3 * 16384}", f"v_add_u32 v{vHw[0]}, s{sT}, v{vL16}",
         f"v_add_u32 v{vHw[1]}, 0x10000, v{vHw[0]}", f"s_lshl_b32 s{sT}, s{sWr}, 16", f"s_add_u32 s{sT}, s{sT}, {3 * 16384}",
         f"v_add_u32 v{vHr}, s{sT}, v{vL16}",
         f"s_mov_b32 s{SWD}, s100", f"s_and_b32 s{SWD+1}, s101, 0xffff", f"s_mov_b32 s{SWD+2}, {1792 * 896}",
         f"s_mul_i32 s{sWd}, s{sHead}, {128 * 896}",
         f"s_mov_b32 s{SX}, s56", f"s_and_b32 s{SX+1}, s57, 0xffff", f"s_mov_b32 s{SX+2}, {2048 * 896}",
         f"s_mov_b32 s{SO}, s28", f"s_and_b32 s{SO+1}, s29, 0xffff", f"s_mov_b32 s{SO+2}, {2048 * 896}", f"s_mov_b32 s{SO+3}, 0x00020000",
         f"s_mov_b32 s{sFst}, {sum(1 << (4 * it - 4 + u) for it, u in set(x[:2] for x in EV))}", f"s_add_u32 s{sHp}, s{sHo}, {fdir * PHS}",
         f"s_lshl_b32 s{sT}, s{sHead}, 1", f"s_add_u32 s{sT}, s{sT}, s{sWr}", f"s_lshl_b32 s{sT}, s{sT}, 12",
         f"s_mul_i32 s{sRs}, s{sU}, {US}", f"s_add_u32 s{sRs}, s{sRs}, s{sT}", f"s_lshl_b32 s{sT}, s{sWc}, 17",
         f"s_add_u32 s{sRs}, s{sRs}, s{sT}", f"s_add_u32 s{sRf}, s{sRs}, {F_PF}",
         f"s_add_u32 s{sRs}, s{sRs}, {F_PS}",
         *([f"s_mov_b32 s{sRf}, {OOB}"] if 'f' in tx else []),
         f"s_lshl_b32 s{sFw}, s{sW}, 7", f"s_add_u32 s{sFw}, s{sFw}, s{sFl}", f"s_add_u32 s{sFw}, s{sFw}, 512",
         f"s_bfe_u32 s{sFp}, s{sHead}, 0x20001", f"s_lshl_b32 s{sFp}, s{sFp}, 7", f"s_lshl_b32 s{sT}, s{sU}, 10",
         f"s_add_u32 s{sFp}, s{sFp}, s{sT}", f"s_add_u32 s{sFp}, s{sFp}, {F_FL + 512}"]
    G.place(chains(PL(L)), 32 * 14, 32 * 22 - 1)
    G.place([P(f"ds_read_b128 {a(aH + 16 * rb4 + 4 * kk, 4)}, v{vHr} offset:{rb4 * 4096 + kk * 1024}") for kk in range(4) for rb4 in range(4)],
            32 * 27 + 2, 32 * 27 + 22)
    kvl = {1: [(0, 0)], 2: [(0, 1)], 4: [(1, 0)], 5: [(0, 2)], 6: [(1, 1)]}
    pend = []
    for n in range(7):
        b = B2 + 32 * n
        L = wd_dma(5) + wd_dma(6) if n == 0 else []
        pend += kvl.get(n, [])
        if n == chk_ph:
            L += spin_check(vPl, 1, poll_kv(vPl))
        if n >= chk_ph:
            for x in pend:
                L += kv_dma(*x)
            pend = []
        if n == 6:
            qr = [P(f"ds_read_b128 {a(aQ + 4 * k, 4)}, v{vQr} offset:{k * 1024}") for k in range(16)]
            G.place(flat([[qr[k]] + (phA[k][1] if k < LA else []) for k in range(16)]), b + 16, b + 31)
        G.place(L, b + 16, b + (44 if n < 6 else 31))
    G.place([maskchk(0)], B2 + 32 * 3, B2 + 32 * 4)

    def fdrain(n):
        L = []
        for rb4 in range(4):
            s_ = facc(n, rb4)
            d = s_ if n < 6 else vH + 16 + 4 * rb4
            L += [f"v_cvt_pk_bf16_f32 v{d + r}, v{s_ + 2 * r}, v{s_ + 2 * r + 1}" for r in range(4)]
            if n < fdir:
                L += fstore(v(d, 4), sHo, rb4, 1 if n < fdir - 1 else 7 - fdir)
            elif n < 6:
                L += [f"v_accvgpr_write_b32 a{aFP + 16 * (n - fdir) + 4 * rb4 + r}, v{d + r}" for r in range(4)]
        return PL(L)
    for n in range(6):
        G.place(fdrain(n), B2 + 32 * n + 34, B2 + 32 * n + 63)
    G.place(fe, 32 * 14, 32 * fe_end + 27)

    def find(it):
        return [g for g in range(len(G.items)) if any(x is it for _, _, x in G.items[g])][0] - 1
    for i in range(8):
        src = [x for x in fe if ('v', vH + 4 * i + 3) in x.wr and x.op.startswith('v_cvt')][0]
        lo = max(find(src) + 1, 32 * (24 if i < 4 else 25) + 2 + 4 * (i & 3))
        G.place([P(f"ds_write_b128 v{vHw[i >> 2]}, {v(vH + 4 * i, 4)} offset:{(i & 3) * 4096}", ('hx',))], lo, 32 * 27 - 1, even=False)
    L, chkl = [], []
    for n, (i, c) in enumerate([(i, c) for i in (1, 2, 3, 5, 6, 7, 0, 4) for c in range(2)]):
        e = 160 + 8 * (n % 8)
        blk = [f"v_accvgpr_read_b32 v{e + r}, a{16 * i + 8 * c + r}" for r in range(8)]
        blk += [f"v_pk_mul_f32 {v(e + 2 * r, 2)}, {v(e + 2 * r, 2)}, s[{sSc}:{sSc+1}]" for r in range(4)]
        blk += [f"v_cvt_pk_bf16_f32 v{e + r}, v{e + 2 * r}, v{e + 2 * r + 1}" for r in range(4)]
        blk = PL(blk) + [P(f"ds_write_b128 v{vQw[(i >> 1) & 1]}, {v(e, 4)} offset:{(i & 1) * 16384 + c * 8192 + (i >> 2) * 1024}", ('qx',))]
        chkl.append((i, blk[0], blk[-1]))
        L += blk
    G.place(L, 32 * 27 + 10, B2 + 32 * 6 + 10)
    for i, x, y in chkl:
        assert find(x) > 32 * 27 + 4 * i + 4 and (i & 3 or find(y) > B2 + 32 * 3 + 15), (i, find(x), find(y))
    if verbose:
        print("T2 over:", G.over(), [sum(max(0, G.cost(g) - 2) for g in range(32 * j + 1, 32 * j + 33)) for j in range(35)])
    p.add(G.out())

    def pv(tile, first=False, Pr=vP):
        L = []
        for db in range(16):
            rd = [P(f"ds_read_b128 {a(ring(db), 4)}, v{vL16} offset:{[2, 3, 0, 1][tile % 4] * 16384 + db * 1024}")]
            m = [P(f"{M16} {v(O(db, rb), 4)}, {a(ring(db), 4)}, {v(Pr + 4 * rb, 4)}, {'0' if first else v(O(db, rb), 4)}") for rb in range(2)]
            L.append((m, rd))
        return L

    WU = [8, 4, 6, 2, 0, 8, 4]

    def wphase(i):
        L = []
        for hb in range(2):
            for dk in range(8):
                for c in range(2):
                    n = 16 * hb + 2 * dk + c
                    u = WU[i] + (dk >> 2)
                    rd = [P(f"ds_read_b64_tr_b16 {a(ring(n) + 2 * h, 2)}, v{vWb + 4 * (u // 4) + 2 * hb + c} offset:{(u % 4) * 16384 + (dk & 3) * 4096 + 2048 * h}")
                          for h in range(2)]
                    m = []
                    for rb in range(2):
                        o = v(vS[hb] + 8 * rb + 4 * c, 4)
                        m.append(P(f"{M16} {o}, {a(ring(n), 4)}, {v(OB[dk] + 8 * rb, 4)}, {'0' if dk == 0 else o}"))
                    L.append((m, rd))
        return L

    def wo_dma(i):
        L = []
        for h in range(2):
            L += [P(f"s_add_u32 s{sT2}, s{sWo}, {i * 128 + h * 128 * 896}")]
            L += dma4(sWb, (WU[i] + h) * 16384, vDW, SWO, sT2, 0, (f"U{WU[i] + h}",))
        return L

    def emit(seg, nxt, bar_tags, streams, nm=""):
        main, pos, fx = [], [], []
        for m, r, *x in seg:
            if r:
                pos.append(len(main))
            if x:
                fx.append((len(main), x[0]))
            main += m
        G = Gaps(main)
        for sl, x in fx:
            for k, y in enumerate(x):
                G.at(sl + k, y)
        R = [e[1] for e in seg if e[1]]
        N = len(R)
        R2 = R + ([x[1] for x in nxt[:LA]] if nxt is not None else [])
        bp = None
        if nxt is not None:
            bp = pos[N - LA] - 1
            G.at(bp - 1, WaitTag(tuple(bar_tags)))
            G.at(bp, P("s_barrier"))
        for k in range(LA, len(R2)):
            for x in R2[k]:
                G.at(pos[k - LA], x)
        for k in range(WG, N + 1, WG):
            kk = min(k + WG - 1, len(R2) - 1)
            if kk >= k:
                sl = (pos[k] if k < N else len(main)) - 1
                if sl == bp:
                    sl -= 1
                G.at(sl, WaitTag(tuple(R2[kk][-1].wr)))
        for items, lo, hi in streams:
            lo = bp + 1 if lo == 'bar' else lo
            G.place(items, lo, len(main) - 1 if hi is None else hi)
        if verbose:
            print("phase", nm, "over", G.over())
        p.add(G.out())

    def ml_poll():
        return [P(f"buffer_load_dwordx4 {v(vML, 4)}, v{vL16}, s[{SWS}:{SWS+3}], s{sMl} offen sc1")]

    def xlane(op, R, T):
        return PL([f"v_permlane32_swap_b32 v{R[0]}, v{R[1]}", f"{op} v{R[0]}, v{R[0]}, v{R[1]}",
                   f"v_mov_b32 v{T}, v{R[0]}", f"v_permlane16_swap_b32 v{R[0]}, v{T}", f"{op} v{R[0]}, v{R[0]}, v{T}",
                   f"v_mov_b32 v{R[1]}, v{R[0]}", f"v_permlane32_swap_b32 v{R[0]}, v{R[1]}"])

    def rowmax(S):
        L = [f"v_max3_f32 v{vMx[rb]}, v{S + 8 * rb}, v{S + 8 * rb + 1}, v{S + 8 * rb + 2}" for rb in range(2)]
        for k in (3, 5):
            L += [f"v_max3_f32 v{vMx[rb]}, v{vMx[rb]}, v{S + 8 * rb + k}, v{S + 8 * rb + k + 1}" for rb in range(2)]
        L += [f"v_max_f32 v{vMx[rb]}, v{vMx[rb]}, v{S + 8 * rb + 7}" for rb in range(2)]
        return PL(L) + xlane("v_max_f32", vMx, vMx2[0])

    EO = [0, 1, 2, 3, 8, 9, 10, 11, 4, 5, 6, 7, 12, 13, 14, 15]

    def exps(S, sub=False, inplace=False):
        L, pend, cnt = [], [], [0, 0]
        def flush(n):
            while len(pend) > n:
                r = pend.pop(0)
                rb = r >> 3
                cnt[rb] += 1
                if cnt[rb] == 2:
                    L.append(f"v_add_f32 v{vPs[rb]}, v{vE + r - 1}, v{vE + r}")
                elif cnt[rb] > 2:
                    L.append(f"v_add_f32 v{vPs[rb]}, v{vPs[rb]}, v{vE + r}")
        for r in EO:
            if inplace:
                L.append(f"v_add_f32 v{S + r}, v{S + r}, v{vNegM[r >> 3]}")
            if sub:
                L += [f"v_sub_f32 v{vE + r}, v{S + r}, v{vMx[r >> 3]}", f"v_exp_f32 v{vE + r}, v{vE + r}"]
            else:
                L.append(f"v_exp_f32 v{vE + r}, v{S + r}")
            pend.append(r)
            flush(1)
        flush(0)
        return PL(L)

    def cvts(Pr=vP):
        return PL([f"v_cvt_pk_bf16_f32 v{Pr + r}, v{vE + 2 * r}, v{vE + 2 * r + 1}" for r in range(8)])

    def lsadd():
        return PL([f"v_add_f32 v{vLs[rb]}, v{vLs[rb]}, v{vPs[rb]}" for rb in range(2)])

    def check(tile, has_qk, recvt=None):
        S, Sn = vS[tile % 2], vS[(tile + 1) % 2]
        blk = rowmax(S)
        for rb in range(2):
            blk += PL([f"v_max_f32 v{vMx[rb]}, 0, v{vMx[rb]}", f"v_exp_f32 v{vMx2[rb]}, -v{vMx[rb]}",
                       f"v_sub_f32 v{vNegM[rb]}, v{vNegM[rb]}, v{vMx[rb]}", f"v_mul_f32 v{vLs[rb]}, v{vLs[rb]}, v{vMx2[rb]}"])
        for dk in range(8):
            blk += PL([f"v_mul_f32 v{OB[dk] + r}, v{OB[dk] + r}, v{vMx2[r >> 3]}" for r in range(16)])
        if has_qk:
            for r in range(16):
                blk += PL([f"v_sub_f32 v{vC + r}, v{vC + r}, v{vMx[r >> 3]}", f"v_sub_f32 v{Sn + r}, v{Sn + r}, v{vMx[r >> 3]}"])
        blk += exps(S, sub=True)
        if recvt is not None:
            blk += cvts(recvt)
        return [P(f"v_add_f32 v{vMx[0]}, v{vPs[0]}, v{vPs[1]}"),
                sidecall(f"v_cmp_nge_f32 vcc, {THRESH}, v{vMx[0]}", blk, 'rare', 's_cbranch_vccnz')]

    def lin_io(op, reg, so, n, tags=()):
        L = [P(f"{op} {reg}, v{vL16}, s[{SWS}:{SWS+3}], s{so} offen offset:{(n & 3) * 1024}{qsm if 'store' in op else ' sc1'}", tags)]
        if n & 3 == 3:
            L.append(P(f"s_add_u32 s{so}, s{so}, 4096"))
        return L

    mark('att')
    lJob = p.newlabel('job')
    p.label(lJob)
    ph0 = qk(1, 0)
    qst = [lin_io("buffer_store_dwordx4", a(aQ + 4 * n, 4), sQo, n) for n in range(16)]
    emit(phA, ph0, ["U5"], [([maskchk(1)], 6, 20), (kv_dma(0, 3), 'bar', None), (fdrain(6), 2, 31), (flat(qst[:10]), 4, 31)], "A")

    mark('jA')
    def full(t, first=False):
        return pv(t - 1, first) + qk(t + 1, 16)
    ph1 = full(1, True)
    emit(ph0, ph1, ["U2", "U6"],
         [(flat(qst[10:]) + [P(f"s_mov_b32 s{sQo}, {OOB}")] + kv_dma(1, 2) + kv_dma(0, 4), 'bar', None),
          (rowmax(vS[0]) + PL([f"v_sub_f32 v{vNegM[rb]}, 0, v{vMx[rb]}" for rb in range(2)]) + exps(vS[0], sub=True) + lsadd() + cvts(), 1, 30)], "0")

    mark('j0')
    def hstore(i):
        return fstore(v(vH + 4 * i, 4), sHo, i & 3, int(i < 7))

    def std(t, first=False, pre=(), extra=()):
        sh = 0
        S = [([maskchk((t + 1) % 4, t >= 3)], 26 + sh, 31 + sh), (list(pre) + kv_dma(1, t + 2), vwin[0] + 3 * sh, vwin[1] + sh), (kv_dma(0, t + 4), 'bar', None)]
        if first:
            S.append((PL([f"v_mov_b32 v{vC + r}, v{vNegM[r >> 3]}" for r in range(16)]), 0, 25))
        ck = check(t, True)
        S += list(extra)
        S.insert(1, (exps(vS[t % 2], inplace=first) + ck[:1], 1, chk - 1 + sh))
        S.append((ck[1:] + lsadd() + cvts(), chk + sh, 62))
        return S

    def btags(t):
        return [f"U{[2, 3, 0, 1][(t - 1) % 4]}", f"U{4 + (t + 1) % 4}"]

    emit(ph1, full(2), btags(2), std(1, first=True, extra=[(flat([hstore(i) for i in range(4, 5)]), 32, 63)]), "1")
    mark('j1')
    sig7 = sidecall(f"s_cmp_eq_u32 s{sW}, 0", signal2(128, vRWu[0]))
    emit(full(2), full(3), btags(3), std(2, pre=wo_dma(0), extra=[([sig7], 'bar', None), (flat([hstore(i) for i in range(5, 8)]), 20, 63)]), "2")
    mark('j2')
    lTail, lLoop = p.newlabel('tail'), p.newlabel('loop')
    p(f"s_cmp_eq_u32 s{sRem}, 0")
    p(f"s_cbranch_scc1 {lTail}")
    p.raw(".p2align 6")
    p.label(lLoop)
    for t in (3, 4, 5, 6):
        ex = [(chains(PL([f"s_sub_u32 s{sRem}, s{sRem}, 1", f"s_cmp_eq_u32 s{sRem}, s{sMaskAt}", f"s_cselect_b32 s{sSide}, 15, s{sFst}",
                          f"s_lshr_b32 s{sFst}, s{sFst}, 4", f"s_add_u32 s{sIt}, s{sIt}, 1"])), 0, 20)] if t == 3 else []
        emit(full(t), full(t + 1), btags(t + 1), ex + std(t), str(t))
    p(f"s_cmp_lg_u32 s{sRem}, 0")
    p(f"s_cbranch_scc1 {lLoop}")
    p.label(lTail)

    def lsum(): return xlane("v_add_f32", vLs, vMx2[0])

    def ocvt(dk, rb):
        b = OB[dk] + 8 * rb
        return PL([f"v_cvt_pk_bf16_f32 v{b + r}, v{b + 2 * r}, v{b + 2 * r + 1}" for r in range(4)])

    vP2 = vS[0]

    def phaseD(streams, nm):
        ck = check(3, False, vP2)
        emit(pv(2), pv(3, Pr=vP2), ["U1"], streams + [(exps(vS[1]) + cvts(vP2) + ck[:1] + [ck[1].cond], 1, 30)], nm)
        p.add([ck[1].br, ck[1].lab])

    def w_setup():
        t, t2, c = vML + 1, vML + 2, vML + 3
        L = [f"v_lshrrev_b32 v{t}, 6, v{vL16}", f"v_bfe_u32 v{t2}, v{t}, 1, 2", f"v_lshlrev_b32 v{t}, 7, v{t}",
             f"v_bfe_u32 v{c}, v{vL16}, 1, 5", f"v_add_u32 v{t}, v{t}, v{c}"]
        for nb in range(4):
            L += [f"v_xor_b32 v{c}, {nb}, v{t2}", f"v_lshl_add_u32 v{vWb + nb}, v{c}, 5, v{t}"]
        L += [f"v_add_u32 v{vWb + 8 + nb}, 0x20000, v{vWb + nb}" for nb in range(4)]
        L += [f"v_add_u32 v{vWb + 4 + nb}, 0x10000, v{vWb + nb}" for nb in range(4)]
        return PL(L)

    lFin, lPart, lM, lW = (p.newlabel(x) for x in ('fin', 'part', 'merge', 'wo'))
    p(f"s_cmp_lg_u32 s{sKind}, {HOLD}")
    p(f"s_cbranch_scc1 {lFin}")
    ql = PL([f"s_xor_b32 s{sOut}, s{sF}, 15", f"s_lshl_b32 s{sOut}, s{sOut}, 2", f"s_add_u32 s{sOut}, s{sOut}, s{sW}",
             f"s_lshl_b32 s{sOut}, s{sOut}, 14", f"s_add_u32 s{sOut}, s{sOut}, {F_Q}"])
    mark('h0')
    p.add(ql + lin(spin_check(vPl, 1, q_poll())))
    qld = [lin_io("buffer_load_dwordx4", a(aQ + 4 * n, 4), sOut, n) for n in range(16)]
    phaseD([(flat(qld[:qd]), 0, 20 if qd == 16 else 31)] + ([(kv_dma(1, 5), 'bar', None)] if qd == 16 else []), "Dh")
    mark('h1')
    def hold(dk):
        L = []
        for rb in range(2):
            L += ocvt(dk, rb) + PL([f"v_accvgpr_write_b32 a{aPO + 8 * dk + 4 * rb + r}, v{OB[dk] + 8 * rb + r}" for r in range(4)])
        return L
    S = [(lsadd() + lsum() + PL([f"v_rcp_f32 v{vInv[rb]}, v{vLs[rb]}" for rb in range(2)]) + job_init(), 0, 12),
         (PL([f"s_mov_b32 s{sKind}, {PART}", f"s_mov_b32 s{sMaskAt}, -1", f"s_sub_u32 s{sRem}, 6, s{sU}"]), 0, 12)]
    if qd < 16:
        S.insert(0, (flat(qld[qd:]) + kv_dma(1, 5), 0, 31))
    S += [(hold(dk), 4 * dk + 6, min(4 * dk + 11, 31)) for dk in range(7)]
    emit(pv(3, Pr=vP2), phA, ["U4"], S, "Eh")
    p.add(hold(7))
    mark('h2')
    p(f"s_branch {lJob}")
    p.label(lFin)
    mark('fin')
    W = [wphase(i) for i in range(7)]
    phaseD([(wo_dma(1), 0, 30), (w_setup() + ml_poll(), 0, 24)], "D")
    mark('d')
    p(f"s_cmp_eq_u32 s{sKind}, {MERGE}")
    p(f"s_cbranch_scc1 {lM}")
    p(f"s_cmp_eq_u32 s{sKind}, {PART}")
    p(f"s_cbranch_scc1 {lPart}")
    S = [(wo_dma(2), 0, 30), (lsadd() + lsum() + PL([f"v_rcp_f32 v{vInv[rb]}, v{vLs[rb]}" for rb in range(2)]), 0, 8)]
    S += [(ocvt(dk, 0) + ocvt(dk, 1), 4 * dk + 6, min(4 * dk + 11, 31)) for dk in range(6)]
    emit(pv(3, Pr=vP2), W[0], ["U8", "U9"], S, "Ef")
    p(f"s_branch {lW}")
    p.label(lPart)
    def postore(dk):
        L = []
        for rb in range(2):
            b = OB[dk] + 8 * rb
            L += ocvt(dk, rb) + lin_io("buffer_store_dwordx4", v(b, 4), sPo, 2 * dk + rb, ('po',))
        return L
    def unhold(dk):
        return PL([f"v_accvgpr_read_b32 v{OB[dk] + 8 * rb + r}, a{aPO + 8 * dk + 4 * rb + r}" for rb in range(2) for r in range(4)])
    S = [(lsadd() + lsum() + PL([f"v_mov_b32 v{vML + 2 * rb + k}, v{(vNegM, vLs)[k][rb]}" for rb in range(2) for k in range(2)]), 0, 8)]
    S += [(postore(dk), 4 * dk + 6, min(4 * dk + 9, 31)) for dk in range(7)]
    emit(pv(3, Pr=vP2), W[0], ["U8", "U9"], S, "Ep")
    p.add(postore(7))
    mark('ep')
    p.add(wo_dma(2))
    for dk in range(8):
        p.add(unhold(dk))
    lW1 = p.newlabel('wo1')

    def sout(hb, tags=()):
        S = vS[hb]
        tb = vE if hb else vC
        L = []
        for rb in range(2):
            L += [f"v_mul_f32 v{S + 8 * rb + r}, v{S + 8 * rb + r}, v{vInv[rb]}" for r in range(8)]
            L += [f"v_cvt_pk_bf16_f32 v{tb + 4 * rb + r}, v{S + 8 * rb + 2 * r}, v{S + 8 * rb + 2 * r + 1}" for r in range(4)]
            L.append(P(f"buffer_store_dwordx4 {v(tb + 4 * rb, 4)}, v{vStQ}, s[{SWS}:{SWS+3}], s{sSo} offen{smod}", tags))
            L.append(f"s_add_u32 s{sSo}, s{sSo}, 65536")
        return PL(L)

    def wemit(i, extra, tail=()):
        S = list(extra)
        if i <= 3:
            S.append((wo_dma(i + 3), 0, 62))
        if i > 0:
            S.append((sout(1, (f"s{i - 1}",)), 3, 31))
        S.append((sout(0), 35 + (len(tail[0][0]) if tail else 0), None))
        emit(W[i][:2] + list(tail[:1]) + W[i][2:20] + list(tail[1:]) + W[i][20:], W[i + 1] if i < 6 else None, [f"U{WU[i + 1]}", f"U{WU[i + 1] + 1}"] if i < 6 else [], S, f"W{i}")
    wemit(0, [([WaitTag(('po',)), P(f"buffer_store_dwordx4 {v(vML, 4)}, v{vL16}, s[{SWS}:{SWS+3}], s{sMl} offen sc1")], posig, 63)])
    mark('pw0')
    p(f"s_branch {lW1}")
    p.label(lM)
    ok, spin = p.newlabel('mok'), p.newlabel('mspin')
    p(f"s_mov_b32 s{sT2}, 0")
    p.label(spin)
    p(f"v_min_u32 v{vMx[0]}, v{vML + 1}, v{vML + 3}")
    p(f"v_cmp_eq_u32 vcc, 0, v{vMx[0]}")
    p(f"s_cbranch_vccz {ok}")
    p(f"s_add_u32 s{sT2}, s{sT2}, 1")
    p(f"s_cmp_gt_u32 s{sT2}, 0x40000")
    p(f"s_cbranch_scc1 {ok}")
    p("s_sleep 2")
    p.add(ml_poll())
    p(f"s_branch {spin}")
    p.label(ok)
    mark('mok')
    for n in range(16):
        p.add(lin_io("buffer_load_dwordx4", a(aPO + 4 * n, 4), sPo, n))
    idm = [([P(f"{M16} {v(O(db, rb), 4)}, {v(vI + 2 - 2 * (db & 1), 4)}, {a(aPO + 8 * (db >> 1) + 4 * rb, 4)}, {v(O(db, rb), 4)}")
             for rb in range(2)], []) for db in range(16)]
    vF = vMx
    L = lsadd() + lsum()
    for rb in range(2):
        L += PL([f"v_sub_f32 v{vF[rb]}, v{vML + 2 * rb}, v{vNegM[rb]}", f"v_min_f32 v{vF[rb]}, {f2u(60.0)}, v{vF[rb]}",
                 f"v_exp_f32 v{vF[rb]}, v{vF[rb]}"])
    L2 = []
    for rb in range(2):
        L2 += PL([f"v_fma_f32 v{vLs[rb]}, v{vLs[rb]}, v{vF[rb]}, v{vML + 2 * rb + 1}", f"v_rcp_f32 v{vInv[rb]}, v{vLs[rb]}"])
    t, lo, hi = vRWu[0], vPs[0], vPs[1]
    L3 = [f"s_lshl_b32 s{sT}, s{sW}, 4", f"v_subrev_u32 v{t}, s{sT}, v{vRW}", f"v_mov_b32 v{lo}, 0x3f80", f"v_mov_b32 v{hi}, 0x3f800000"]
    L3 += [f"v_mov_b32 v{vI + k}, 0" for k in (0, 1, 4, 5)]
    for k in range(2):
        L3 += [f"v_cmp_eq_u32 vcc, {2 * k}, v{t}", f"v_cndmask_b32 v{vI + 2 + k}, 0, v{lo}, vcc",
               f"v_cmp_eq_u32 vcc, {2 * k + 1}, v{t}", f"v_cndmask_b32 v{vI + 2 + k}, v{vI + 2 + k}, v{hi}, vcc"]
    S = [(wo_dma(2), 0, 60), (L + PL(L3), 0, 7)]
    for dk in range(8):
        S.append((PL([f"v_mul_f32 v{OB[dk] + r}, v{OB[dk] + r}, v{vF[r >> 3]}" for r in range(16)]), max(8 + 6 * dk, 4 * dk + 6), min(13 + 6 * dk, 30 + 4 * dk)))
    S.append((L2, 50, 63))
    S += [(ocvt(dk, 0) + ocvt(dk, 1), 38 + 4 * dk, min(43 + 4 * dk, 63)) for dk in range(6)]
    emit(pv(3, Pr=vP2) + idm, W[0], ["U8", "U9"], S, "Em")
    p.label(lW)
    mark('wo')
    wemit(0, [(ocvt(6, 0) + ocvt(6, 1) + ocvt(7, 0) + ocvt(7, 1), 3, 20)])
    p.label(lW1)
    def ch(dk, rb): return OB[dk] + 8 * rb + 4
    vSa, vSel = [ch(0, 0), ch(0, 1), ch(1, 0), ch(1, 1)], [24, 28]
    vX, vXo = [156, 158, 128, 130], 135
    sXo = sKend
    t, t2 = vRWu
    L = [f"s_lshl_b32 s{sXo}, s{sHead}, 1", f"s_add_u32 s{sXo}, s{sXo}, s{sWr}",
         f"s_lshl_b32 s{sT}, s{sU}, 5", f"s_add_u32 s{sXo}, s{sXo}, s{sT}", f"s_mul_i32 s{sXo}, s{sXo}, {4 * 896}",
         f"s_lshl_b32 s{sT}, s{sWc}, 6", f"s_add_u32 s{sXo}, s{sXo}, s{sT}",
         f"v_bfe_u32 v{t}, v{vL16}, 6, 2", f"v_mul_u32_u24 v{vXo}, 896, v{t}",
         f"v_bfe_u32 v{t}, v{vL16}, 9, 1", f"v_lshl_add_u32 v{vXo}, v{t}, 7, v{vXo}",
         f"v_bfe_u32 v{t}, v{vL16}, 8, 1", f"v_lshl_add_u32 v{vXo}, v{t}, 5, v{vXo}",
         f"v_bfe_u32 v{t}, v{vL16}, 4, 2", f"v_lshl_add_u32 v{vXo}, v{t}, 3, v{vXo}"]
    if 's' in tx:
        L.append(f"s_mov_b32 s{sRs}, {OOB}")
    def xio(op, reg, sr, m):
        x = P(f"{op} {v(reg, 2)}, v{vXo}, s[{sr}:{sr+3}], s{sXo} offen offset:{256 * m}")
        return [x] if m < 3 else [[P("s_mov_b32 exec_hi, 0"), x, P("s_mov_b32 exec_hi, -1")]]
    rs2 = PL(L) + [y for m in range(4) for y in xio("buffer_load_dwordx2", vX[m], SX, m)]
    def sreg(i, j): return 160 + 16 * i + 4 * j if i < 6 else 140 + 4 * j

    def rload(i, j):
        return P(f"buffer_load_dwordx4 {v(sreg(i, j), 4)}, v{vL16}, s[{SWS}:{SWS+3}], s{sT} offen offset:{j * 1024}{rmod}")

    def rbase(i): return P(f"s_add_u32 s{sT}, s{sRs}, {i * PHS}")

    def rmf(I):
        return [P(f"{M16} {v(vSa[i >> 1], 4)}, {v(vSel[i & 1], 4)}, {v(sreg(i, j), 4)}, {'0' if j == 0 and i & 1 == 0 else v(vSa[i >> 1], 4)}")
                for i in I for j in range(4)]

    def settle(I):
        top, redo, fb, ok = (p.newlabel(x) for x in ('st', 'sr', 'sf', 'so'))
        R = [sreg(i, j) + 2 for i in I for j in range(4)]
        p(f"s_mov_b32 s{sKnx}, 0")
        p.label(top)
        for n, r in enumerate(R):
            p(f"v_cmp_eq_u32 {'vcc' if n == 0 else f's[{sMk[n % 4]}:{sMk[n % 4]+1}]'}, v{vBig}, v{r}")
            if n >= 2:
                p(f"s_or_b64 vcc, vcc, s[{sMk[(n - 1) % 4]}:{sMk[(n - 1) % 4]+1}]")
        p(f"s_or_b64 vcc, vcc, s[{sMk[(len(R) - 1) % 4]}:{sMk[(len(R) - 1) % 4]+1}]")
        p(f"s_cbranch_scc1 {redo}")
        p.label(ok)
        B = [Label(redo), f"s_add_u32 s{sKnx}, s{sKnx}, 1", f"s_cmp_gt_u32 s{sKnx}, 400", f"s_cbranch_scc1 {fb}"] + ([f"s_sleep {rsleep}"] if rsleep else [])
        for i in I:
            B.append(rbase(i))
            for j in range(4):
                sk = p.newlabel('sk')
                B += [f"v_cmp_eq_u32 vcc, v{vBig}, v{sreg(i, j) + 2}", f"s_cbranch_vccz {sk}", "s_mov_b64 exec, vcc", rload(i, j),
                      "s_mov_b64 exec, -1", Label(sk)]
        B += ["s_waitcnt vmcnt(0)", f"s_branch {top}", Label(fb)] + w_poll(vPl) + lin(spin_check(vPl, 4, w_poll(vPl)))
        for i in I:
            B += [rbase(i)] + [rload(i, j) for j in range(4)]
        side.append(PL(B + ["s_waitcnt vmcnt(0)", f"s_branch {ok}"]))
    EX = {1: [], 2: [], 3: [], 4: [(rs2, 0, 63)], 5: [(sel_setup(vSel, t, t2), 0, 63)], 6: []}
    if npz:
        EX[fl[0]].insert(0, ([WaitTag((f"s{6 - npz}",)), wsignal(3, vMx[0])], fl[1], 63))
        EX[6].append((w_poll(vPl), pl6, 63))
    for i in range(1, 7):
        wemit(i, EX[i])
    p.add(sout(1, ("s6",)))
    mark('end')

    def sloads():
        p.add(lin(spin_check(vPl, 2 if npz else 4, w_poll(vPl))))
        mark('e0')
        for i in range(7):
            p.add([rbase(i)] + [rload(i, j) for j in range(4)])
    if npz:
        sloads()
    else:
        p.wait_tags("s6")
        p.add(wsignal(7, t))
        p.add(w_poll(vPl))
    vG, vXf, F = 64, 112, 32
    F = [OB[k >> 3] + 8 * ((k >> 2) & 1) + (k & 3) for k in range(16)]
    for m in range(4):
        for k in range(2):
            p.add([f"v_lshlrev_b32 v{vXf + 4 * m + 2 * k}, 16, v{vX[m] + k}", f"v_and_b32 v{vXf + 4 * m + 2 * k + 1}, 0xffff0000, v{vX[m] + k}"])
    p.wait_tags('fl')
    p.add([f"v_accvgpr_read_b32 v{F[k]}, a{aFA(0) + k}" for k in range(4 * ((27 - nring) >> 3) + 4)])
    for q in range(28 - nring, 28):
        d = v(F[4 * (q >> 3)], 4)
        p(f"{M16} {d}, {v(vSel[(q >> 2) & 1], 4)}, {a(aFL(q), 4)}, {d if q & 7 else '0'}")
    if not npz:
        sloads()
    p.add([f"v_mul_f32 v{vG + k}, {f2u(-LOG2E)}, v{F[k]}" for k in range(16)])
    p.add([f"v_exp_f32 v{vG + k}, v{vG + k}" for k in range(16)])
    p.add([f"v_add_f32 v{vG + k}, 1.0, v{vG + k}" for k in range(16)])
    p.add([f"v_rcp_f32 v{vG + k}, v{vG + k}" for k in range(16)])
    p.add([f"v_mul_f32 v{vG + k}, v{vG + k}, v{F[k]}" for k in range(16)])
    if npz:
        p.wait_tags("s6")
        mark('e1')
        p.add(wsignal(7, t))

    def fin(m):
        p.add([f"v_fmac_f32 v{vXf + 4 * m + q}, v{vSa[m] + q}, v{vG + 4 * m + q}" for q in range(4)])
        p.add([f"v_cvt_pk_bf16_f32 v{vX[m] + k}, v{vXf + 4 * m + 2 * k}, v{vXf + 4 * m + 2 * k + 1}" for k in range(2)])
        p.add(xio("buffer_store_dwordx2", vX[m], SO, m))
    ne = 7 - npz
    p.add(rmf(range(ne)))
    for m in range(ne // 2 if npz else 4):
        fin(m)
    if npz:
        mark('e2')
        settle(range(ne, 7))
        mark('ok')
        p.add(rmf(range(ne, 7)))
        for m in range(ne // 2, 4):
            fin(m)
    stp.finish()
    p.label(done)
    p("s_endpgm")
    for b in side:
        p.add(b)
    return p
```

```python
from common import *

SCC_KEEP = ('s_mov_b32', 's_mov_b64', 's_cselect_b32', 's_cselect_b64', 's_mul_i32', 's_setprio', 's_sleep')


def flat(x):
    if isinstance(x, (list, tuple)):
        return [z for y in x for z in flat(y)]
    return [x]


class Br:
    def __init__(self, cond, br, lab):
        self.cond, self.br, self.lab = cond, br, lab


class Chain:
    def __init__(self, ops):
        self.ops = ops


def rank_cost(it):
    if isinstance(it, WaitTag):
        return 0, 0
    if isinstance(it, Label):
        return 4, 0
    k = it.kind
    if k in ('salu', 'waitcnt', 'smem', 'nop'):
        return 0, 0
    if k in ('vstore', 'dswrite'):
        return 1, 2
    if k in ('vload', 'dma', 'dsread'):
        return 1, 1
    if k in ('barrier', 'cbranch', 'branch'):
        return 4, 2
    if it.op in TRANS:
        return 3, 2
    if it.op.startswith('v_cvt_pk'):
        return 2, 1
    return 3, 1


def wscc(it):
    return isinstance(it, Ins) and it.kind == 'salu' and it.op not in SCC_KEEP


class Gaps:
    def __init__(self, main):
        self.main = main
        n = len(main) + 1
        self.items = [[] for _ in range(n)]
        self.ns = [0] * n
        self.vc = [0] * n
        self.lock = [False] * n
        self.excl = [False] * n
        self.seq = 0

    def cost(self, g):
        return max(0, self.ns[g] - 1) + self.vc[g]

    def save(self):
        return ([list(x) for x in self.items], list(self.ns), list(self.vc), list(self.lock), list(self.excl))

    def restore(self, s):
        self.items, self.ns, self.vc, self.lock, self.excl = [list(x) for x in s[0]], list(s[1]), list(s[2]), list(s[3]), list(s[4])

    def put(self, g, it, rank=None):
        if isinstance(it, (list, tuple)):
            fl = flat(it)
            for x in fl:
                r, c = rank_cost(x)
                self.vc[g] += max(c, 0 if isinstance(x, Label) else 1)
            self.items[g].append((3.5, self.seq, fl))
        else:
            r, c = rank_cost(it)
            if r == 0:
                self.ns[g] += 1
            self.vc[g] += c
            if r == 4:
                self.excl[g] = True
            self.items[g].append((r if rank is None else rank, self.seq, it))
        self.seq += 1

    def fits(self, g, it, cap):
        if isinstance(it, (list, tuple)):
            if self.lock[g] or self.excl[g]:
                return False
            c = sum(max(rank_cost(x)[1], 0 if isinstance(x, Label) else 1) for x in flat(it))
            return self.cost(g) + c <= max(cap, c)
        r, c = rank_cost(it)
        if self.excl[g]:
            return False
        if r == 4:
            if self.lock[g] and it.kind == 'cbranch':
                return False
            return self.cost(g) + (1 if self.ns[g] else 0) <= cap - 2
        if r == 0:
            if self.lock[g] and wscc(it):
                return False
            return self.ns[g] + self.vc[g] <= cap
        return self.cost(g) + c <= cap

    def at(self, slot, it):
        for x in (it if isinstance(it, list) else [it]):
            self.put(slot + 1, x)

    def weight(self, it):
        if isinstance(it, Br):
            return 2
        if isinstance(it, Chain):
            return len(it.ops)
        if isinstance(it, (list, tuple)):
            return len(flat(it))
        return max(rank_cost(it)[1], 1)

    def place(self, items, lo, hi, cap=2, even=True):
        if not items:
            return lo
        lo += 1
        hi += 1
        tot = sum(self.weight(x) for x in items)
        s = self.save()
        for st in ((100, 92, 84, 70, 50, 0) if even else (0,)):
            r = self.run(items, lo, hi, tot, st, cap, None)
            if r is not None:
                return r
            self.restore(s)
        best = None
        for st in (100, 96, 90, 80, 60):
            for slack in (1, 2, 3, 5, 8):
                r = self.run(items, lo, hi, tot, st, cap, slack)
                if r is not None and (best is None or self.over() < best[0]):
                    best = (self.over(), st, slack)
                self.restore(s)
        assert best, "cannot place"
        return self.run(items, lo, hi, tot, best[1], cap, best[2])

    def run(self, items, lo, hi, tot, st, cap, slack):
        g, pr, acc = lo, -1, 0
        for it in items:
            want = lo + (acc * (hi - lo + 1) * st) // (tot * 100)
            acc += self.weight(it)
            if slack is None:
                if want > g:
                    g, pr = want, -1
                res = self.one(it, g, pr, hi, cap)
            else:
                lim = min(hi, max(want + slack, g + (3 if isinstance(it, (Br, Chain)) else 1)))
                c = cap
                while True:
                    sv = self.save() if isinstance(it, Br) else None
                    res = self.one(it, g, pr, lim if c > cap + 1 else min(lim, max(g, want + slack)), c)
                    if res is not None or c > 60:
                        break
                    if sv:
                        self.restore(sv)
                    c += 1
            if res is None:
                return None
            g, pr = res
        return g - 1

    def one(self, it, g, pr, hi, cap):
        if isinstance(it, Br):
            if it.cond is None:
                r = self.one(it.br, g, pr, hi, cap)
                if r:
                    self.put(r[0], it.lab)
                return r
            if it.cond.kind == 'valu':
                r = self.one(it.cond, g, pr, hi, cap)
                if r is None:
                    return None
                r = self.one(it.br, r[0] + 2, -1, hi, cap)
                if r:
                    self.put(r[0], it.lab)
                return r
            if pr > 0:
                g += 1
            while g + 1 <= hi:
                if self.fits(g, it.cond, cap) and self.fits(g + 1, it.br, cap) and not self.sccw(g + 1) and not self.grp(g):
                    self.put(g, it.cond, 0.5)
                    self.lock[g] = True
                    self.put(g + 1, it.br)
                    self.put(g + 1, it.lab)
                    return g + 1, 4
                g += 1
            return None
        if isinstance(it, Chain):
            if pr > 0:
                g += 1
            while g <= hi:
                s = self.save()
                h, good = g, True
                for k, op in enumerate(it.ops):
                    if k == 0:
                        good = self.fits(h, op, cap) and not self.grp(h)
                    else:
                        while h <= hi and not (self.ns[h] + self.vc[h] <= cap and not self.excl[h]):
                            h += 1
                            if h <= hi and (self.sccw(h) or self.lock[h]):
                                good = False
                        good = good and h <= hi
                    if not good:
                        break
                    self.put(h, op, 0.5)
                if good:
                    for x in range(g, h + 1):
                        self.lock[x] = True
                    return h, 0.5
                self.restore(s)
                g += 1
            return None
        r = 3.5 if isinstance(it, (list, tuple)) else rank_cost(it)[0]
        if r < pr:
            if cap > 3 and pr < 4 and self.fits(g, it, cap - 1):
                self.put(g, it, pr)
                return g, (5 if isinstance(it, Ins) and ('m0', 0) in it.wr else pr)
            g += 1
        while g <= hi:
            if self.fits(g, it, cap):
                self.put(g, it)
                if isinstance(it, Ins) and ('m0', 0) in it.wr:
                    r = 5
                return g, r
            g += 1
        return None

    def sccw(self, g):
        return any(wscc(x) or (isinstance(x, Ins) and x.kind == 'cbranch') for _, _, it in self.items[g] for x in flat(it))

    def grp(self, g):
        return any(isinstance(it, list) for _, _, it in self.items[g])

    def out(self):
        L = []
        for g in range(len(self.items)):
            if g > 0:
                L.append(self.main[g - 1])
            for _, _, it in sorted(self.items[g], key=lambda t: (t[0], t[1])):
                L.append(it)
        return L

    def over(self):
        return sum(max(0, self.cost(g) - 2) for g in range(1, len(self.items)))


def chains(items):
    G = []
    for it in items:
        if isinstance(it, Ins) and it.op in ('s_addc_u32', 's_cselect_b32', 's_cselect_b64') and G:
            prev = G[-1]
            G[-1] = Chain((prev.ops if isinstance(prev, Chain) else [prev]) + [it])
            assert all(x.kind == 'salu' for x in G[-1].ops)
        else:
            G.append(it)
    return G
```

```python
from build7 import *
E = '10s4 12s4 20s4 23f 23u 33p 40c 40l5 42l5 50l4 52l5 60l5 62l4'
build("v5a.s", stamp=False, kw=dict(verbose=False, posig=0, vmap=1, evs=E))
build("v5b.s", stamp=False, kw=dict(verbose=False, posig=0, vmap=1))
```

```python
import sys
from common import *
from kl import gen_kl
from build2 import header
def build(path, stamp=False, kw={}):
    p1 = gen_kl(name="main_kernel", stamp=stamp, **kw)
    build_file(header(), [("main_kernel", 256, 256, 163840)], [p1], path)
if __name__ == "__main__":
    build("j_t.s", stamp=True, kw=dict(marks=('t2', 'att', 'wo', 'end', 'e0')))
```

```python
from common import *
from sched import *
from k1 import ln_load, ln_compute

M16 = "v_mfma_f32_16x16x32_bf16"
NEG_BIG = f2u(-1.0e30)
THRESH = f2u(2.0 ** 24)
OOB = 0x40000000
F_ML = 32 * MB
F_FL = 33 * MB
F_PO = 96 * MB
F_Q = 112 * MB
WS_SPAN = 128 * MB
F_PF = 38 * MB
F_PS = 66 * MB
PHS = 262144
US = 7 * PHS


class Col:
    def __init__(self): self.L = []
    def __call__(self, t, tags=()): self.L.append(P(t, tags))


def PL(L):
    return [P(x) if isinstance(x, str) else x for x in L]


def keys(kind, base, n):
    return [(kind, base + k) for k in range(n)]


def gen_kl(name="main_kernel", stamp=False, marks=('t1', 't2', 'att', 'fin', 'wo'), bar=1, wr0=2, wr_step=3, dma0=4, dma_step=7,
           st0=-1, st1=24, sig_k=26, LA=8, WG=4, chk=40, vwin=(2, 30), posig=40, verbose=True, nokv=False, t2x='', ctouch=True, wtouch=0, wmod=' nt', amod='', notch=False,
           fe_end=26, chk_ph=1, fdir=3, tx='', rmod=' sc1', kvmod=' sc1', xnmod=' sc1', rsleep=0, psleep=2,
           tmask=0x18, dsp=None, npz=0, two=0, pk=-16, fl=(6, 8), pl6=48, evs='10t 10s3 11s3 12s3 13s3 20u 21r 22f 32p 40c 40l2 41l3 42l2 43l2 50l3 51l2 52l2 53l3 60l2 61l2 62l3 63l2', ew=(2, 62), nring=14, qd=10, opx=0, vmap=0, krot=0, atouch=True, npre=5, lnh=50, smod=' sc1', fmod=' sc1', ksm=' sc1', fsm=' sc1', qsm=' sc1'):
    p = Prog(name)
    stp = Stamps(p, stamp, 0)

    def mark(nm):
        if nm in marks:
            stp.mark(marks.index(nm))
    vDK, vLane = 0, 1
    vT = [2, 3, 4, 5, 6, 7]
    vA, vA0 = [8, 9], [28, 29]
    vB = [10, 11, 12, 13]
    vL16, vStQ = 14, 15
    vDA = list(range(16, 24))
    vDB = list(range(24, 28))
    vPoll, vI3 = 30, 31
    vB2 = [[30, 31], [8, 9]]
    FR = 32
    def fC(st, i): return FR + i * 4 + (4 * st if i == 7 else 0)
    def fW(st, j): return FR + 36 + st * 32 + j * 4
    def fW2(st, j): return FR + 36 + st * 16 + j * 4
    vE1 = 148
    vTch = 250
    def acc(isV, ci, wi):
        return 8 * (8 * (ci >> 1) + wi) + 4 * (ci & 1) if isV else 8 * (8 * (ci >> 1) + (wi & 6) + (ci & 1)) + 4 * (wi & 1)
    sTs, sEv = 6, 7
    sW, sWr, sWc, sRb, sHead, sIsV = 20, 21, 22, 23, 24, 25
    sA, sB, sMW, sKt, sT, sT2, sOut = 26, 27, 28, 29, 30, 31, 32
    sMA, sAr, sWA, sBst, sU, sC2, sF = 33, 34, 35, 40, 41, 42, 43
    sSc, sWb, sBf, sTo, sFl = 44, 76, 77, 78, 3
    SA, SB, SWS, SD, ST = 8, 12, 16, 48, 52
    SF, SWQ, SWO, SV = 52, 12, 8, 64
    sKind, sRem, sMaskAt, sKo, sVo, sKend, sKnx, sVend = 36, 37, 38, 39, 60, 61, 62, 63
    sVnx, sEnd2, sQo, sSo, sPo, sMl, sWo, sHo = 4, 5, 6, 7, 46, 47, 33, 34
    sMk = [52, 54, 72, 74]
    sPz = 27
    FULL, HOLD, MERGE, PART = 0, 1, 2, 3
    side = []
    done = p.newlabel('done')
    p(f"s_cmp_ge_u32 s2, 256")
    p(f"s_cbranch_scc1 {done}")
    p("s_load_dwordx4 s[60:63], s[0:1], 0")
    p("s_load_dwordx4 s[36:39], s[0:1], 24")
    p("s_load_dwordx4 s[56:59], s[0:1], 88")
    p("s_load_dwordx2 s[68:69], s[0:1], 16")
    p("s_load_dwordx4 s[72:75], s[0:1], 56")
    p("s_load_dwordx2 s[70:71], s[0:1], 40")
    p("s_load_dwordx2 s[100:101], s[0:1], 72")
    stp.start()

    def code_touch(sr, tv, tid):
        if not ctouch:
            return []
        lp = p.newlabel('pc')
        return [[P(f"s_getpc_b64 s[{sr}:{sr+1}]"), Label(lp), P(f"s_sub_u32 s{sr}, s{sr}, {lp}-{name}"), P(f"s_subb_u32 s{sr+1}, s{sr+1}, 0")]] + \
            PL([f"s_and_b32 s{sr+1}, s{sr+1}, 0xffff", f"s_mov_b32 s{sr+2}, .Ltext_end-{name}", f"s_mov_b32 s{sr+3}, 0x00020000",
                f"s_and_b32 s{sT}, s2, {tmask}", f"s_lshl_b32 s{sT}, s{sT}, 12"] + tid +
               [NT(f"buffer_load_dword v{tv}, v{tv}, s[{sr}:{sr+3}], s{sT} offen")])
    p.add(code_touch(ST, 254, [f"v_lshlrev_b32 v254, 7, v0"]))
    p(f"v_and_b32 v{vLane}, 63, v0")
    p(f"v_lshrrev_b32 v{vT[0]}, 6, v0")
    p(f"v_readfirstlane_b32 s{sW}, v{vT[0]}")
    p(f"s_lshr_b32 s{sU}, s2, 4")
    if vmap:
        p(f"s_and_b32 s{sRb}, s{sU}, 7")
        p(f"s_lshr_b32 s{sIsV}, s{sU}, 3")
        if vmap == 1:
            p(f"s_xor_b32 s{sIsV}, s{sIsV}, 1")
    else:
        p(f"s_lshr_b32 s{sRb}, s2, 5")
        p(f"s_and_b32 s{sIsV}, s{sU}, 1")
    p(f"s_bfe_u32 s{sT2}, s2, 0x10003")
    p(f"s_and_b32 s{sHead}, s2, 7")
    p(f"s_lshl_b32 s{sHead}, s{sHead}, 1")
    p(f"s_add_u32 s{sHead}, s{sHead}, s{sT2}")
    p(f"s_lshl_b32 s{sF}, s{sHead}, 4")
    p(f"s_add_u32 s{sF}, s{sF}, s{sU}")
    p(f"s_lshr_b32 s{sWr}, s{sW}, 1")
    p(f"s_and_b32 s{sWc}, s{sW}, 1")
    i7, i4 = vT[1], vT[2]

    def a_voffs(stride, dst):
        n = len(dst)
        L = [f"v_and_b32 v{i7}, 7, v{vLane}", f"v_lshrrev_b32 v{i4}, 4, v{vLane}",
             f"s_mul_i32 s{sT}, s{sW}, {8 * n * stride}",
             f"v_mul_u32_u24 v{vT[4]}, {stride}, v{vI3}", f"v_add_u32 v{vT[4]}, s{sT}, v{vT[4]}"]
        for par in range(2):
            t = vT[3]
            L += [f"v_add_u32 v{t}, {4 * par}, v{i4}", f"v_xor_b32 v{t}, v{t}, v{i7}",
                  f"v_lshl_add_u32 v{t}, v{t}, 4, v{vT[4]}"]
            for q in range(par, n, 2):
                L.append(f"v_add_u32 v{dst[q]}, {q * 8 * stride - (q & 3) * 1024}, v{t}")
        return PL(L)

    def w_voffs(scol, stride, dst):
        d = 8 * stride - 1024
        L = [f"v_and_b32 v{i7}, 7, v{vLane}", f"v_mul_u32_u24 v{vT[4]}, {stride}, v{vI3}",
             f"v_add_u32 v{vT[4]}, s{scol}, v{vT[4]}",
             f"v_and_b32 v{vT[3]}, 2, v{vI3}", f"v_xor_b32 v{vT[3]}, v{vT[3]}, v{i7}",
             f"v_lshl_add_u32 v{dst[0]}, v{vT[3]}, 4, v{vT[4]}",
             f"v_xor_b32 v{vT[3]}, 4, v{vT[3]}", f"v_lshl_add_u32 v{dst[1]}, v{vT[3]}, 4, v{vT[4]}",
             f"v_add_u32 v{dst[1]}, {d}, v{dst[1]}",
             f"v_add_u32 v{dst[2]}, {2 * d}, v{dst[0]}", f"v_add_u32 v{dst[3]}, {2 * d}, v{dst[1]}"]
        return PL(L)

    p(f"v_lshrrev_b32 v{vI3}, 3, v{vLane}")
    p.add(a_voffs(2048, vDA))
    p(f"s_lshl_b32 s{sC2}, s{sW}, 7")
    p.add(w_voffs(sC2, 8192, vDB))
    srd(p, SA, 62, 4194304)
    p(f"s_cmp_eq_u32 s{sIsV}, 0")
    p(f"s_cselect_b32 s36, s36, s38")
    p(f"s_cselect_b32 s37, s37, s39")
    srd(p, SB, 36, 8388608)
    p(f"s_lshl_b32 s{sA}, s{sRb}, 19")
    p(f"s_lshl_b32 s{sB}, s{sHead}, 9")
    if krot:
        p(f"s_and_b32 s{sT}, s2, 7" if krot == 1 else f"s_lshr_b32 s{sT}, s2, 5" if krot == 2 else f"s_bfe_u32 s{sT}, s2, 0x20003")
        p(f"s_lshl_b32 s{sT2}, s{sT}, {8 + (krot == 3)}")
        p(f"s_add_u32 s{sA}, s{sA}, s{sT2}")
        p(f"s_lshl_b32 s{sT2}, s{sT}, {20 + (krot == 3)}")
        p(f"s_add_u32 s{sB}, s{sB}, s{sT2}")
    p(f"s_lshl_b32 s{sMW}, s{sW}, 12")
    p(f"s_lshl_b32 s{sWb}, s{sW}, 12")
    p(f"s_lshl_b32 s{sWA}, s{sW}, 13")
    p(f"s_add_u32 s{sWA}, s{sWA}, 65536")
    p(f"s_mov_b32 s{sMA}, s{sWA}")

    def dma4(sm0, madd, voff, sr, so, inc, tags=(), mod="", qs=range(4)):
        L = [P(f"s_add_u32 m0, s{sm0}, {madd}")]
        for q in qs:
            L.append(P(f"buffer_load_dwordx4 v{voff[q]}, s[{sr}:{sr+3}], s{so} offen offset:{q * 1024}{mod} lds", tags))
        if inc:
            L.append(P(f"s_add_u32 s{so}, s{so}, {inc}"))
        return L

    def wrap(r, b): return [P(f"s_and_b32 s{r}, s{r}, {0xffffffff ^ (1 << b)}")] if krot else []
    def dmaW(add, tags=()): return dma4(sMW, add, vDB, SB, sB, 32 * 8192, tags, wmod) + wrap(sB, 23)
    def dmaA(half, tags=(), ma=0): return dma4(sMA, half * 4096 + ma, vDA[4 * half:], SA, sA, 128 if half else 0, tags, amod) + (wrap(sA, 11) if half else [])

    mark('d0')
    p.add(dmaW(0, ('p0',)))
    p.add(dmaA(0, ('p0',)))
    p.add(dmaA(1, ('p0',)))
    ln_load(p, vLane, sW, vE1, sid=sF)
    p.add(dmaW(16384, ('p1',)))
    p(f"s_add_u32 s{sMA}, s{sMA}, 65536")
    def pre_dma():
        return [dmaA(0, ('p2',), -32768), dmaA(1, ('p2',), -32768), dmaW(32768, ('p2',)), dmaW(49152), dmaA(0)]
    p.add(pre_dma()[:npre])
    p(f"s_lshl_b32 s{sT}, s2, 2")
    p(f"s_add_u32 s{sT}, s{sT}, s{sW}")
    p(f"v_lshlrev_b32 v{vT[0]}, 6, v{vLane}")
    p(f"s_lshl_b32 s{sT2}, s{sT}, 12")
    if atouch:
        p.add(NT(f"buffer_load_dword v255, v{vT[0]}, s[{SA}:{SA+3}], s{sT2} offen"))
    mark('d1')
    if wtouch:
        p(f"v_lshrrev_b32 v{vT[0]}, 2, v{vLane}")
        p(f"v_and_b32 v{vT[1]}, 3, v{vLane}")
        p(f"v_lshlrev_b32 v{vT[0]}, 13, v{vT[0]}")
        p(f"v_lshl_add_u32 v{vT[0]}, v{vT[1]}, 7, v{vT[0]}")
        p(f"s_lshl_b32 s{sT}, s{sW}, 3")
        p(f"s_add_u32 s{sT}, s{sT}, s{sRb}")
        p(f"s_lshl_b32 s{sT}, s{sT}, 18")
        p(f"s_lshl_b32 s{sT2}, s{sHead}, 9")
        p(f"s_add_u32 s{sT}, s{sT}, s{sT2}")
        p.add(NT(f"buffer_load_dword v255, v{vT[0]}, s[{SB}:{SB+3}], s{sT} offen"))
        p(f"s_add_u32 s{sT}, s{sT}, {16 * 8192}")
        p.add(NT(f"buffer_load_dword v255, v{vT[0]}, s[{SB}:{SB+3}], s{sT} offen"))
    r, g, f = vT[0], vT[1], vT[2]
    p(f"v_and_b32 v{r}, 15, v{vLane}")
    p(f"v_lshrrev_b32 v{g}, 4, v{vLane}")
    p(f"v_bfe_u32 v{f}, v{vLane}, 1, 3")
    p(f"s_lshl_b32 s{sT}, s{sWr}, 14")
    p(f"s_add_u32 s{sT}, s{sT}, 65536")
    for ks in range(2):
        t = vT[3]
        p(f"v_add_u32 v{t}, {4 * ks}, v{g}")
        p(f"v_xor_b32 v{t}, v{t}, v{f}")
        p(f"v_lshlrev_b32 v{t}, 4, v{t}")
        p(f"v_lshl_add_u32 v{t}, v{r}, 7, v{t}")
        p(f"v_add_u32 v{vA0[ks]}, s{sT}, v{t}")
        p(f"v_mov_b32 v{vA[ks]}, v{vA0[ks]}")
    p(f"v_and_b32 v{vT[3]}, 3, v{r}")
    p(f"v_lshlrev_b32 v{vT[3]}, 6, v{vT[3]}")
    p(f"v_lshl_add_u32 v{vStQ}, v{g}, 4, v{vT[3]}")
    p(f"v_lshrrev_b32 v{vT[3]}, 2, v{r}")
    p(f"v_mul_u32_u24 v{vT[3]}, {4096 + 512}, v{vT[3]}")
    p(f"s_lshl_b32 s{sT}, s{sHead}, 8")
    p(f"v_xor_b32 v{vT[3]}, s{sT}, v{vT[3]}")
    p(f"v_add_u32 v{vStQ}, v{vStQ}, v{vT[3]}")
    p(f"v_lshlrev_b32 v{vL16}, 4, v{vLane}")
    r4, c = vT[0], vT[3]
    p(f"v_bfe_u32 v{r4}, v{vLane}, 2, 2")
    p(f"v_and_b32 v{c}, 3, v{vLane}")
    t, t2 = vT[4], vT[5]
    p(f"v_lshl_add_u32 v{t}, v{g}, 3, v{r4}")
    p(f"v_lshlrev_b32 v{t}, 7, v{t}")
    p(f"v_lshl_add_u32 v{t}, v{c}, 3, v{t}")
    p(f"s_lshl_b32 s{sT}, s{sWc}, 13")
    p(f"v_add_u32 v{t}, s{sT}, v{t}")
    p(f"v_lshrrev_b32 v{t2}, 1, v{r4}")
    p(f"v_and_b32 v{c}, 1, v{g}")
    p(f"v_lshl_add_u32 v{t2}, v{c}, 1, v{t2}")
    for nb in range(4):
        p(f"v_xor_b32 v{c}, {nb}, v{t2}")
        p(f"v_lshl_add_u32 v{vB[nb]}, v{c}, 5, v{t}")
    srd(p, SWS, 58, WS_SPAN)
    p(f"v_lshlrev_b32 v2, 4, v0")
    for k in range(4, 8):
        p(f"v_mov_b32 v{k}, 0")
    p(f"s_lshl_b32 s{sT}, s{sF}, 12")
    p(f"s_add_u32 s{sT}, s{sT}, {F_ML}")
    p(f"buffer_store_dwordx4 v[4:7], v2, s[{SWS}:{SWS+3}], s{sT} offen sc1")
    p(f"s_lshl_b32 s{sFl}, s{sF}, 10")
    p(f"s_add_u32 s{sFl}, s{sFl}, {F_FL}")
    p(f"v_and_b32 v2, 0x3f0, v2")
    p(f"buffer_store_dwordx4 v[4:7], v2, s[{SWS}:{SWS+3}], s{sFl} offen sc1")
    p(f"v_add_u32 v{vDK}, s{sWb}, v{vL16}")
    srd(p, SD, 56, 256)
    p("s_mov_b64 s[56:57], s[60:61]")
    p(f"s_mov_b32 s{sAr}, 0")
    p(f"s_mov_b32 s{sKt}, 1")
    p(f"s_cmp_eq_u32 s{sW}, 0")
    p(f"s_cselect_b32 s{sEv}, 3, 0")

    def ln_items():
        c = Col()
        ln_compute(c, vLane, vE1, 58, rowmajor=True)
        G, cur = [], None
        for it in c.L:
            if it.text.startswith("s_mov_b32 exec_hi, 0x"):
                cur = []
            elif it.text.startswith("s_mov_b32 exec_hi, -1"):
                for k in range(0, len(cur), 4):
                    G.append([P("s_mov_b32 exec_hi, 0x00ffffff")] + cur[k:k + 4] + [P("s_mov_b32 exec_hi, -1")])
                cur = None
            elif cur is not None:
                cur.append(it)
            else:
                G.append(it)
        return chains(G)

    def cread(par, i):
        return P(f"ds_read_b128 {v(fC(par, i), 4)}, v{vA[par]} offset:{i * 2048}")

    def wreads(par):
        L = []
        for j in range(8):
            off = par * 16384 + (j >> 2) * 4096
            L += [P(f"ds_read_b64_tr_b16 {v(fW(par, j), 2)}, v{vB[j & 3]} offset:{off}"),
                  P(f"ds_read_b64_tr_b16 {v(fW(par, j) + 2, 2)}, v{vB[j & 3]} offset:{off + 512}")]
        return L

    def wunit(j): return 4 + (j + 2) % 6

    def cread2(j, i):
        return P(f"ds_read_b128 {v(fC(j & 1, i), 4)}, v{vA0[j & 1]} offset:{((j >> 1) % 4) * 16384 + i * 2048}")

    def wreads2(j):
        L = []
        u = wunit(j) - 4
        for jj in range(4):
            off = (u % 4) * 16384 + (jj >> 1) * 8192
            for h in range(2):
                L.append(P(f"ds_read_b64_tr_b16 {v(fW2(j & 1, jj) + 2 * h, 2)}, v{vB2[u // 4][jj & 1]} offset:{off + 512 * h}"))
        return L

    def dmaW2(j):
        if j < 14:
            return dma4(sWb, wunit(j) * 16384, vDA, SF, sBf, 32 * 3584, (f"X{j}",))
        return dma4(sWb, wunit(j) * 16384, vDB, SWQ, sB, 32 * 8192, (f"X{j}",))

    def dmaA2(s_, qs=range(4)):
        inc = (128 if s_ != 6 else -768) if 3 in qs else 0
        return dma4(sWb, (s_ % 4) * 16384, vDA[4:], SWS, sA, inc, (f"Y{s_}",), xnmod, qs)

    def advance():
        L = [f"s_add_u32 s{sMA}, s{sWA}, s{sAr}", f"s_add_u32 s{sAr}, s{sAr}, 32768",
             f"s_cmp_eq_u32 s{sAr}, 98304", f"s_cselect_b32 s{sAr}, 0, s{sAr}"]
        L2 = [f"v_add_u32 v{vA[k]}, s{sAr}, v{vA0[k]}" for k in range(2)]
        L2 += [f"v_xor_b32 v{x}, 0x8000, v{x}" for x in vB]
        return chains(PL(L)), PL(L2)

    def mf(par, isV, i, j, first=False):
        c_, w_ = v(fC(par, i), 4), v(fW(par, j), 4)
        x, y = (c_, w_) if (isV if not opx else opx == 1) else (w_, c_)
        d = a(acc(isV, i, j), 4)
        return P(f"{M16} {d}, {x}, {y}, {'0' if first else d}")

    def kstep(par, isV, first=False, vm=None, wt=(), dl=None, last=False, adv=True, fixed=(), pl=(), tag=None, pdl=()):
        G = Gaps([mf(par, isV, i, j, first) for i in range(8) for j in range(8)])
        if vm is not None:
            G.at(bar - 1, P(f"s_waitcnt vmcnt({vm}) lgkmcnt(0)"))
        else:
            G.at(bar - 1, WaitTag(tuple(wt) + tuple(keys('v', FR, 100))))
        G.at(bar, P("s_barrier"))
        if not last:
            wr_, cr = wreads(par ^ 1), (lambda i: cread(par ^ 1, i))
            G.at(62, WaitTag(keys('v', fC(par ^ 1, 0), 4) + keys('v', fW(par ^ 1, 0), 4 * bar)))
        else:
            wr_, cr = wreads2(0), (lambda i: cread2(0, i))
            G.at(63, WaitTag(keys('v', fC(0, 5), 4)))
        for n, it in enumerate(wr_):
            G.at(wr0 + n * wr_step, it)
        G.at(wr0 + 1, cr(7))
        for i in range(7):
            G.at(8 * i + 7, cr(i))
        if dl is None:
            dl = [dmaW(par * 16384, tag[0] if tag else ()) + ([P(f"s_xor_b32 s{sMW}, s{sMW}, 0x8000")] if par else []),
                  dmaA(par ^ 1, tag[1] if tag else ())]
        dl = list(pdl) + dl
        step = dma_step if len(dl) <= 2 else 58 // (4 * len(dl) - 1)
        d = 0
        for grp in dl:
            G.at(dma0 + d * step - 1, grp[0])
            for q in range(4):
                G.at(dma0 + (d + q) * step, grp[1 + q])
            for k, x in enumerate(grp[5:]):
                G.at(dma0 + (d + 3) * step + 1 + k, x)
            d += 4
        for sl, it in fixed:
            G.at(sl, it)
        if adv and par == 0:
            s_, v_ = advance()
            lo = max(40, dma0 + (d - 4) * step)
            G.place(s_, lo, max(55, lo + 5))
            G.place(v_, max(56, lo + 6), 63)
        for items, lo, hi in pl:
            G.place(items, lo, hi)
        p.add(G.out())

    def sidecall(cond, body, base='sd', br='s_cbranch_scc1'):
        lb, lr = p.newlabel(base), p.newlabel(base + 'r')
        side.append([Label(lb)] + body + [P(f"s_branch {lr}")])
        return Br(P(cond), P(f"{br} {lb}"), Label(lr))

    def brl(b): return [b.cond, b.br, b.lab]

    def signal(val, tmp):
        return PL([f"v_mov_b32 v{tmp}, {val}", f"s_mov_b64 exec, 1",
                   f"buffer_store_byte v{tmp}, off, s[{SD}:{SD+3}], s{sF} sc1", f"s_mov_b64 exec, -1"])

    def signal2(off, tmp):
        return PL([f"v_mov_b32 v{tmp}, 1", f"s_mov_b64 exec, 1",
                   f"buffer_store_dword v{tmp}, off, s[{SWS}:{SWS+3}], s{sFl} offset:{off} sc1", f"s_mov_b64 exec, -1"])

    def poll_xn(dst):
        return PL([f"v_lshrrev_b32 v{dst}, 2, v{vL16}", f"buffer_load_dword v{dst}, v{dst}, s[{SD}:{SD+3}], 0 offen sc1"])

    def poll_kv(dst):
        return PL([f"v_and_b32 v{dst}, 0xf0, v{vL16}", f"v_lshlrev_b32 v{dst}, 6, v{dst}", f"s_and_b32 s{sT}, s{sFl}, 0xffffc000",
                   f"buffer_load_dword v{dst}, v{dst}, s[{SWS}:{SWS+3}], s{sT} offen sc1"])

    def poll16(dst, srow, nt=False):
        ld = f"buffer_load_dword v{dst}, v{dst}, s[{SD}:{SD+3}], s{sT} offen sc1"
        return PL([f"v_bfe_u32 v{dst}, v{vL16}, 2, 4", f"s_lshl_b32 s{sT}, s{srow}, 4", NT(ld) if nt else ld])

    def spin_check(reg, mask, reissue):
        ok, spin, sp2 = p.newlabel('pok'), p.newlabel('spin'), p.newlabel('sp2')
        tst = [f"v_and_b32 v{reg}, {mask}, v{reg}", f"v_cmp_ne_u32 vcc, {mask}, v{reg}"]
        side.append(PL([Label(spin), f"s_mov_b32 s{sT2}, 0", Label(sp2), f"s_add_u32 s{sT2}, s{sT2}, 1",
                        f"s_cmp_gt_u32 s{sT2}, 0x40000", f"s_cbranch_scc1 {ok}", f"s_sleep {psleep}"] + reissue + tst +
                       [f"s_cbranch_vccnz {sp2}", f"s_branch {ok}"]))
        return [P(tst[0]), Br(P(tst[1]), P(f"s_cbranch_vccnz {spin}"), Label(ok))]

    def touch_setup():
        l1, l2, lj = (p.newlabel(x) for x in ('t1', 't2', 'tj'))
        t, t2 = vT[0], vT[1]
        sb, sLg, sRs = 46, sC2, sOut
        L = [f"s_cmp_ge_u32 s{sW}, 2", f"s_cbranch_scc1 {l2}",
             f"s_cmp_lg_u32 s{sW}, 0", f"s_cbranch_scc1 {l1}",
             f"s_mov_b64 s[{sb}:{sb+1}], s[68:69]",
             f"s_mul_i32 s{sT}, s{sU}, {28 * 8192}", f"s_lshl_b32 s{sT2}, s{sHead}, 9", f"s_add_u32 s{sT}, s{sT}, s{sT2}",
             f"s_mov_b32 s{ST+2}, {27 * 8192 + 512}", f"s_mov_b32 s{sLg}, 2", f"s_mov_b32 s{sRs}, 8192",
             f"s_mov_b32 s{sTs}, {3 * 8192}", f"s_branch {lj}", Label(l1),
             f"s_cmp_eq_u32 s{sIsV}, 0", f"s_cselect_b64 s[{sb}:{sb+1}], s[72:73], s[74:75]",
             f"s_mul_i32 s{sT}, s{sRb}, {56 * 3584}", f"s_min_u32 s{sT2}, s{sHead}, 13",
             f"s_lshl_b32 s{sT2}, s{sT2}, 8", f"s_add_u32 s{sT}, s{sT}, s{sT2}",
             f"s_mov_b32 s{ST+2}, {55 * 3584 + 256}", f"s_mov_b32 s{sLg}, 1", f"s_mov_b32 s{sRs}, 3584",
             f"s_mov_b32 s{sTs}, {6 * 3584}", f"s_branch {lj}", Label(l2),
             f"s_mov_b32 s{ST+2}, {112 * 128}", f"s_cmp_eq_u32 s{sW}, 2",
             f"s_cselect_b64 s[{sb}:{sb+1}], s[70:71], s[100:101]", f"s_cselect_b32 s{ST+2}, s{ST+2}, {49 * 128}",
             f"s_mul_i32 s{sT}, s{sF}, s{ST+2}", f"s_mov_b32 s{sLg}, 0", f"s_mov_b32 s{sRs}, 128",
             f"s_mov_b32 s{sTs}, {12 * 128}", Label(lj),
             f"s_add_u32 s{ST}, s{sb}, s{sT}", f"s_addc_u32 s{ST+1}, s{sb+1}, 0", f"s_and_b32 s{ST+1}, s{ST+1}, 0xffff",
             f"s_mov_b32 s{ST+3}, 0x00020000", f"s_mov_b32 s{sTo}, {OOB if notch else 0}",
             f"v_mul_u32_u24 v{t}, 3, v{vLane}", f"v_lshrrev_b32 v{t}, 4, v{t}",
             f"v_lshrrev_b32 v{t2}, s{sLg}, v{t}", f"v_mul_u32_u24 v{vTch}, s{sRs}, v{t2}",
             f"v_lshlrev_b32 v{t2}, s{sLg}, v{t2}", f"v_sub_u32 v{t}, v{t}, v{t2}",
             f"v_lshl_add_u32 v{vTch}, v{t}, 7, v{vTch}"]
        return PL(L)

    def f_setup():
        L = [f"s_cmp_eq_u32 s{sWr}, 0", f"s_cselect_b32 s{SF}, s72, s74", f"s_cselect_b32 s{SF+1}, s73, s75",
             f"s_and_b32 s{SF+1}, s{SF+1}, 0xffff", f"s_cmp_lt_u32 s{sHead}, 14",
             f"s_cselect_b32 s{SF+2}, {448 * 3584}, 0", f"s_mov_b32 s{SF+3}, 0x00020000",
             f"s_lshl_b32 s{sBf}, s{sHead}, 8", f"s_lshl_b32 s{sC2}, s{sWc}, 7"]
        return chains(PL(L) + w_voffs(sC2, 3584, vDA))

    def job_setup():
        hb = sC2
        L = [f"s_lshl_b32 s{hb}, s{sHead}, 20", f"s_add_u32 s{sT}, s{sU}, 1", f"s_lshl_b32 s{sT}, s{sT}, 16",
             f"s_add_u32 s{sKend}, s{hb}, s{sT}", f"s_sub_u32 s{sT2}, s{sKend}, {36 * 16384}",
             f"s_mov_b32 s{sMaskAt}, 0", f"s_xor_b32 s{sT}, s{sF}, 15",
             f"s_lshl_b32 s{sQo}, s{sF}, 16", f"s_add_u32 s{sQo}, s{sQo}, {F_Q}",
             f"s_cmp_ge_u32 s{sU}, 9", f"s_cselect_b32 s{sKind}, {MERGE}, {FULL}", f"s_cselect_b32 s{sRem}, 8, s{sU}",
             f"s_cselect_b32 s{sKo}, s{sT2}, s{hb}", f"s_cselect_b32 s{sPo}, s{sT}, s{sF}",
             f"s_cselect_b32 s{sQo}, s{sQo}, {OOB}",
             f"s_sub_u32 s{sT}, 7, s{sU}", f"s_lshl_b32 s{sT}, s{sT}, 16", f"s_add_u32 s{sEnd2}, s{hb}, s{sT}",
             f"s_cmp_le_u32 s{sU}, 6", f"s_cselect_b32 s{sKind}, {HOLD}, s{sKind}", f"s_cselect_b32 s{sKnx}, s{hb}, {OOB}",
             f"s_mov_b32 s{sVo}, s{sKo}", f"s_mov_b32 s{sVend}, s{sKend}", f"s_mov_b32 s{sVnx}, s{sKnx}",
             f"s_lshl_b32 s{sT}, s{sW}, 14", f"s_add_u32 s{sQo}, s{sQo}, s{sT}",
             f"s_lshl_b32 s{sPo}, s{sPo}, 2", f"s_add_u32 s{sPo}, s{sPo}, s{sW}",
             f"s_lshl_b32 s{sMl}, s{sPo}, 10", f"s_add_u32 s{sMl}, s{sMl}, {F_ML}",
             f"s_lshl_b32 s{sPo}, s{sPo}, 14", f"s_add_u32 s{sPo}, s{sPo}, {F_PO}",
             f"s_mul_i32 s{sSo}, s{sU}, {US}",
             f"s_lshl_b32 s{sT}, s{sW}, 14", f"s_add_u32 s{sSo}, s{sSo}, s{sT}", f"s_add_u32 s{sSo}, s{sSo}, {F_PS}",
             f"s_add_u32 s{SV}, s58, {WS_V}", f"s_addc_u32 s{SV+1}, s59, 0", f"s_and_b32 s{SV+1}, s{SV+1}, 0xffff",
             f"s_mov_b32 s{SV+2}, {KV_BYTES}", f"s_mov_b32 s{SV+3}, 0x00020000"]
        return chains(PL(L))

    def out_setup():
        L = [f"s_lshl_b32 s{sT}, s{sHead}, 6", f"s_lshl_b32 s{sT2}, s{sRb}, 3", f"s_add_u32 s{sT}, s{sT}, s{sT2}",
             f"s_lshl_b32 s{sT2}, s{sWr}, 2", f"s_add_u32 s{sT}, s{sT}, s{sT2}", f"s_lshl_b32 s{sOut}, s{sT}, 14",
             f"s_lshl_b32 s{sT2}, s{sWc}, 13", f"s_add_u32 s{sOut}, s{sOut}, s{sT2}",
             f"s_lshl_b32 s{sT2}, s{sIsV}, 24", f"s_add_u32 s{sOut}, s{sOut}, s{sT2}",
             *([f"s_mov_b32 s{sOut}, {OOB}"] if nokv else []),
             f"s_mov_b32 s{SWQ}, s68", f"s_and_b32 s{SWQ+1}, s69, 0xffff", f"s_mov_b32 s{SWQ+2}, {448 * 8192}",
             f"s_lshl_b32 s{sB}, s{sHead}, 9",
             f"s_mov_b32 s{SWO}, s70", f"s_and_b32 s{SWO+1}, s71, 0xffff", f"s_mov_b32 s{SWO+2}, {4096 * 896}",
             f"s_mul_i32 s{sWo}, s{sHead}, {256 * 896}",
             f"s_mul_i32 s{sHo}, s{sU}, {US}", f"s_lshl_b32 s{sT}, s{sWr}, 16", f"s_add_u32 s{sHo}, s{sHo}, s{sT}",
             f"s_lshl_b32 s{sT}, s{sWc}, 17", f"s_add_u32 s{sHo}, s{sHo}, s{sT}", f"s_add_u32 s{sHo}, s{sHo}, {F_PF}",
             f"s_cmp_lt_u32 s{sHead}, {0 if 'h' in tx else 14}", f"s_cselect_b32 s{sHo}, s{sHo}, {OOB}",
             f"s_mov_b32 s{sSc}, {f2u(LOG2E / 16)}", f"s_mov_b32 s{sSc+1}, {f2u(LOG2E / 16)}",
             f"s_mov_b32 s{sBst}, {f2u(-LOG2E)}"]
        return chains(PL(L))

    def rd2_setup():
        L = [f"s_add_u32 s{sT}, s{sWA}, 0", f"s_lshl_b32 s{sT}, s{sWr}, 14", f"s_add_u32 s{sT}, s{sT}, 65536"]
        L += [f"v_subrev_u32 v{vA0[k]}, s{sT}, v{vA0[k]}" for k in range(2)]
        L += [f"s_lshl_b32 s{sT}, s{sWr}, 12", f"s_lshl_b32 s{sT2}, s{sWc}, 13", f"s_sub_u32 s{sT}, s{sT}, s{sT2}",
              f"s_add_u32 s{sT}, s{sT}, {65536 - 0x8000}", f"s_cmp_lg_u32 s{sWc}, 0", f"s_cselect_b64 vcc, -1, 0"]
        for k in range(2):
            L += [f"v_cndmask_b32 v{vB2[0][k]}, v{vB[k]}, v{vB[2 + k]}, vcc", f"v_add_u32 v{vB2[0][k]}, s{sT}, v{vB2[0][k]}"]
        return chains(PL(L[1:]))

    STK = {sn: k for k, sn in spread(list(range(32)), st0, st1)}
    def kvstore(sn, data):
        L = [P(f"buffer_store_dwordx4 {data}, v{vL16}, s[{SWS}:{SWS+3}], s{sOut} offen offset:{(sn & 3) * 1024}{ksm}", ('kv',))]
        if sn & 3 == 3:
            L.append(P(f"s_add_u32 s{sOut}, s{sOut}, {12288 if sn & 4 else 4096}"))
        return L

    def unit(sn, T, direct):
        L = [P(f"v_accvgpr_read_b32 v{T + r}, a{8 * sn + r}") for r in range(8)]
        L += [P(f"v_cvt_pk_bf16_f32 v{T + r}, v{T + 2 * r}, v{T + 2 * r + 1}") for r in range(4)]
        if direct:
            return L + kvstore(sn, v(T, 4))
        return L + [P(f"v_accvgpr_write_b32 a{8 * sn + r}, v{T + r}") for r in range(4)]

    p.add(touch_setup())
    mark('d2')
    p.wait_tags('p0')
    p("s_barrier")
    mark('p')
    p.add([cread(0, 0)] + wreads(0) + [cread(0, i) for i in range(1, 8)])
    lV, lT2 = p.newlabel('vpath'), p.newlabel('t2')
    p(f"s_cmp_lg_u32 s{sIsV}, 0")
    p(f"s_cbranch_scc1 {lV}")

    def tid128(r):
        return [f"v_lshlrev_b32 v{r}, 3, v{vL16}", f"s_lshl_b32 s{sT2}, s{sW}, 13", f"v_add_u32 v{r}, s{sT2}, v{r}"]

    def tile1(isV):
        G = ln_items()
        h = len(G) * lnh // 100
        kstep(0, isV, first=True, wt=('p1',), pl=[(G[:h], 8, 63)], pdl=pre_dma()[npre:])
        mark('k1')
        kstep(1, isV, wt=('p2',), pl=[(G[h:], 0, 63)])
        mark('k2')
        lab = p.newlabel('loop')
        p.raw(".p2align 6")
        p.label(lab)
        if stamp and 'km' in marks:
            r_ = stp.sb + 6 + 2 * marks.index('km')
            p.add(brl(sidecall(f"s_cmp_eq_u32 s{sKt}, 6", [P(f"{stp.op} s[{r_}:{r_+1}]"), P("s_waitcnt lgkmcnt(0)")])))
        ev0 = sidecall(f"s_cmp_eq_u32 s{sKt}, s{sEv}", signal(1, vT[0]))
        tch = [(bar + 1, NT(f"buffer_load_dword v255, v{vTch}, s[{ST}:{ST+3}], s{sTo} offen")), (9, P(f"s_add_u32 s{sTo}, s{sTo}, s{sTs}"))]
        kstep(0, isV, vm=17, fixed=tch, pl=[([ev0], 6, 20)])
        kstep(1, isV, vm=17, fixed=[(58, P(f"s_add_u32 s{sKt}, s{sKt}, 1")), (61, P(f"s_cmp_lt_u32 s{sKt}, 12"))])
        p(f"s_cbranch_scc1 {lab}")
        mark('k24')
        def tg(k): return ((f"W{k + 4}",), (f"A{(k + 5) // 2}",))
        kstep(0, isV, vm=16, tag=tg(24), pl=[(poll_xn(vPoll), 6, 20), (job_setup(), 21, 63)])
        kstep(1, isV, vm=17, tag=tg(25), pl=[(code_touch(ST, 254, tid128(254)), 30, 63)])
        kstep(0, isV, vm=17 + ctouch, tag=tg(26), pl=[(f_setup(), 2, 60)])
        xs = PL([f"s_mul_i32 s{sA}, s{sU}, {128 * 896}", f"s_add_u32 s{sA}, s{sA}, {WS_XN}"])
        kstep(1, isV, wt=("W28", "A14"), dl=[dmaW(16384, ("W31",)), dmaW2(0)],
              pl=[(spin_check(vPoll, 0x01010101, poll_xn(vPoll)) + xs + a_voffs(896, vDA[4:]), 2, 60)])
        kstep(0, isV, wt=("W29",), dl=[dmaA2(0), dmaW2(1)], fixed=[(2, P("s_load_dwordx2 s[28:29], s[0:1], 80"))])
        kstep(1, isV, wt=("W30", "A15"), dl=[dmaA2(1), dmaW2(2)], pl=[(rd2_setup(), 2, 60)])
        kstep(0, isV, wt=("W31",), dl=[dmaA2(2), dmaW2(3)], adv=False, pl=[(out_setup(), 2, 60)])
        early = []
        for n, sn in enumerate([s_ for s_ in range(32) if STK[s_] < 0]):
            early += unit(sn, 232 + 8 * (n % 3), True)
        w2 = PL([f"v_add_u32 v{vB2[1][k]}, 65536, v{vB2[0][k]}" for k in range(2)])
        kstep(1, isV, wt=("X0", "Y0"), dl=[dmaA2(3), dmaW2(4), dmaW2(5)], last=True, pl=[(w2, 2, 10), (early, 18, 63)])

    tile1(False)
    p(f"s_branch {lT2}")
    p.label(lV)
    tile1(True)
    p.label(lT2)
    mark('t1')
    vMx, vMx2, vRWu = [2, 3], [4, 5], [6, 7]
    vPs = [8, 9]
    vDW = [10, 11, 12, 13]
    vL16h, vRW, vBig, vQr = 16, 17, 18, 19
    vNegM, vLs = [20, 21], [22, 23]
    vQw = [24, 25]
    vPl = vLane
    vP, vE, vS, vC = 24, 48, [64, 80], 112
    OB = [32, 96, 160, 176, 192, 208, 224, 240]
    def O(db, rb): return OB[db >> 1] + 8 * rb + 4 * (db & 1)
    vH = 128
    vML, vInv, vStS1, vI, vWb = 128, [132, 133], 134, 136, 144
    aQ, aR, aPO = 0, 64, 128
    aH, aFP = 128, 192
    vF2a, vHw, vHr, vF2r = [100, 101, 102, 103], [104, 105], 106, 224
    sSide, sFst, sHp, sFw, sFp, sWd = 100, 101, 23, 25, 35, 77
    SWD, SX, SO, SPZ = 52, 48, 68, 56
    sIt, sRf, sRs = 26, 28, 29
    vLs8, vLo, vFp = 136, [134, 135], 131
    def aFL(q): return 192 + 4 * (q % nring)
    def aFA(m): return 192 + 4 * nring + 4 * m
    EV = [(int(x[0]), int(x[1]), x[2], int(x[3:] or 0)) for x in evs.split()]
    assert sum(x[3] for x in EV if x[2] == 's') == 4 * (6 - fdir) and sum(x[3] for x in EV if x[2] == 'l') == 28
    assert npz == 0 and aFA((27 - nring) >> 3) <= 252
    ps = {k: [4 * x[0] + x[1] for x in EV if x[2] == k for _ in range(max(x[3], 1))] for k in 'slfpucr'}
    assert ps['f'][0] > max(ps['s']) and all(ps['l'][q] > ps['l'][q - nring] for q in range(nring, 28))
    assert ps['f'][0] < ps['p'][0] < ps['c'][0] <= ps['l'][0] and max(ps['u'][0], ps['r'][0]) < ps['l'][0] and max(x[0] for x in EV) <= 6
    vDum, vE0, vE1_ = 128, 129, 130
    assert EV == sorted(EV, key=lambda x: x[:2])
    def ring(n): return aR + 4 * (n % 16)

    def kv_dma(isV, tile):
        sl = tile % 4
        unit_ = [2, 3, 0, 1][sl] if isV else 4 + sl
        so, sr, se, sn = (sVo, SV, sVend, sVnx) if isV else (sKo, SWS, sKend, sKnx)
        L = dma4(sWb, unit_ * 16384, [vDK] * 4, sr, so, 16384, (f"U{unit_}",), kvmod)
        if sl == 3:
            L.append(Chain(PL([f"s_cmp_eq_u32 s{so}, s{se}", f"s_cselect_b32 s{so}, s{sn}, s{so}",
                               f"s_cselect_b32 s{se}, s{sEnd2}, s{se}", f"s_cselect_b32 s{sn}, {OOB}, s{sn}"])))
        return L

    def lin(L):
        out = []
        for x in L:
            if isinstance(x, Chain):
                out += x.ops
            elif isinstance(x, Br):
                out += brl(x)
            else:
                out.append(x)
        return out

    def qk(tile, n0):
        L = []
        S = vS[tile % 2]
        for n in range(16):
            rd = [P(f"ds_read_b128 {a(ring(n0 + n), 4)}, v{vL16h} offset:{(tile % 4) * 16384 + n * 1024}")]
            m = []
            for rb in range(2):
                o = 8 * rb + 4 * (n & 1)
                m.append(P(f"{M16} {v(S + o, 4)}, {a(ring(n0 + n), 4)}, {a(aQ + 8 * (n >> 1) + 4 * rb, 4)}, {v((vC if n < 2 else S) + o, 4)}"))
            L.append((m, rd))
        return L

    def q_poll():
        return PL([f"s_xor_b32 s{sT}, s{sFl}, 0x3c00", f"buffer_load_dword v{vPl}, off, s[{SWS}:{SWS+3}], s{sT} offset:128 sc1"])

    def fstore(data, so, rb4, nph=1, tg='fs'):
        return PL([P(f"buffer_store_dwordx4 {data}, v{vStQ}, s[{SWS}:{SWS+3}], s{so} offen{fsm}", (tg,)),
                   f"s_add_u32 s{so}, s{so}, {16384 if rb4 < 3 else nph * PHS - 49152}" if nph else f"s_mov_b32 s{so}, {OOB}"])

    def wsignal(val, tmp):
        return PL([f"v_mov_b32 v{tmp}, {val}", f"s_mov_b64 exec, 1",
                   f"buffer_store_dword v{tmp}, off, s[{SWS}:{SWS+3}], s{sFw} sc1", f"s_mov_b64 exec, -1"])

    def w_poll(dst):
        return PL([f"v_and_b32 v{dst}, 0xf0, v{vL16}", f"v_lshlrev_b32 v{dst}, 10, v{dst}",
                   f"buffer_load_dword v{dst}, v{dst}, s[{SWS}:{SWS+3}], s{sFp} offen sc1"])

    def sel_setup(D, t, t2):
        L = [f"v_and_b32 v{t}, 16, v{vL16}", f"v_mov_b32 v{t2}, 0x3f80", f"v_lshlrev_b32 v{t}, v{t}, v{t2}", f"v_bfe_u32 v{t2}, v{vL16}, 5, 3"]
        for k in range(8):
            L += [f"v_cmp_eq_u32 vcc, {k}, v{t2}", f"v_cndmask_b32 v{D[k >> 2] + (k & 3)}, 0, v{t}, vcc"]
        return PL(L)

    def ro_setup():
        return PL([f"s_and_b32 s{sT}, s{sHead}, 1", f"s_lshl_b32 s{sT}, s{sT}, 10", f"v_add_u32 v{vLo[0]}, s{sT}, v{vL16}",
                   f"s_lshl_b32 s{sT}, s{sWr}, 9", f"s_add_u32 s{sT}, s{sT}, 1024", f"v_xor_b32 v{vLo[1]}, s{sT}, v{vLo[0]}",
                   f"v_and_b32 v{vE0}, 0x200, v{vL16}", f"v_lshl_add_u32 v{vLo[1]}, v{vE0}, 21, v{vLo[1]}"])

    def fld(q):
        j = q & 3
        L = [NT(f"buffer_load_dwordx4 {a(aFL(q), 4)}, v{vL16 if j < 2 else vLo[j - 2]}, s[{SWS}:{SWS+3}], s{sRf} offen offset:{min(j, 2) * 1024}{fmod}", ('fl', f"fl{q}"))]
        if q >= nring:
            r = q - nring
            d = a(aFA(r >> 3), 4)
            L = [WaitTag((f"fl{r}",)), f"{M16} {d}, {v(vLs8 + 4 * ((r >> 2) & 1), 4)}, {a(aFL(r), 4)}, {d if r & 7 else '0'}"] + L
        return PL(L + ([f"s_add_u32 s{sRf}, s{sRf}, {PHS}"] if j == 3 else []))

    def poison(n):
        return PL([f"buffer_store_dwordx4 {v(vL16h, 4)}, v{vStQ}, s[{SWS}:{SWS+3}], s{sPz} offen sc1",
                   f"s_add_u32 s{sPz}, s{sPz}, 65536"] * n)

    def maskchk(u, inloop=False):
        blk = [P(f"v_subrev_u32 v{vRWu[0]}, {32 * u}, v{vRW}"), P(f"v_add_u32 v{vRWu[1]}, 64, v{vRWu[0]}")]
        for r0 in range(0, 16, 4):
            for r in range(r0, r0 + 4):
                blk.append(P(f"v_cmp_gt_i32 s[{sMk[r % 4]}:{sMk[r % 4]+1}], {16 * ((r >> 2) & 1) + (r & 3)}, v{vRWu[r >> 3]}"))
            for r in range(r0, r0 + 4):
                blk.append(P(f"v_cndmask_b32 v{vC + r}, v{vNegM[r >> 3]}, v{vBig}, s[{sMk[r % 4]}:{sMk[r % 4]+1}]"))
        if u == 3:
            blk += q_poll()
        if not inloop:
            return sidecall(f"s_cmp_eq_u32 s{sRem}, s{sMaskAt}", blk, 'mask')
        if u == 0:
            blk += flat(code_touch(12, vPl, tid128(vPl)))
        return sidecall(f"s_cmp_eq_u32 s{sRem}, s{sMaskAt}", blk, 'mask')

    def events(it, u):
        S, cnt = [], {}
        for i2, uu, k, n in EV:
            m = cnt.get(k, 0)
            cnt[k] = m + n
            if (i2, uu) != (it, u):
                continue
            late = 4 * it + u == ps['c'][0]
            S.append(dict(s=lambda: (flat([fstore(a(aFP + 4 * x, 4), sHp, x % 4, tg='fe') for x in range(m, m + n)]), *ew),
                          l=lambda: (flat([fld(q) for q in range(m, m + n)]), 26 if late else ew[0], ew[1]),
                          f=lambda: ([WaitTag(('fs', 'fe')), wsignal(1, vE0)], 33, 62), p=lambda: (w_poll(vFp), 33, 62),
                          u=lambda: (sel_setup([vLs8, vLs8 + 4], vE0, vE1_), 45, 63), r=lambda: (ro_setup(), 45, 63),
                          t=lambda: (code_touch(12, vDum, tid128(vDum)), 33, 63),
                          c=lambda: (spin_check(vFp, 1, w_poll(vFp)), 2, 24))[k]())
        return S

    def mf2(j, i, jj):
        d = v(128 + 16 * i + 4 * jj, 4) if j < 14 else a(16 * i + 4 * jj, 4)
        return P(f"{M16} {d}, {v(fW2(j & 1, jj), 4)}, {v(fC(j & 1, i), 4)}, {'0' if j in (0, 14) else d}")
    B2 = 32 * 28
    FU = [4, 5, 0, 2, 6, 3, 7]
    def facc(n, rb4): return (64 if n & 1 else 32) + 8 * rb4
    def mf3(n, kk, c, rb4):
        d = v(facc(n, rb4) + 4 * c, 4)
        return P(f"{M16} {d}, {v(vF2r + 4 * (2 * kk + c), 4)}, {a(aH + 16 * rb4 + 4 * kk, 4)}, {'0' if kk == 0 else d}")
    G = Gaps([mf2(j, i, jj) for j in range(28) for i in range(8) for jj in range(4)] +
             [mf3(n, kk, c, rb4) for n in range(7) for kk in range(4) for c in range(2) for rb4 in range(4)])

    def gmark(nm, slot):
        if stamp and nm in marks:
            r_ = stp.sb + 6 + 2 * marks.index(nm)
            G.at(slot, [[P(f"{stp.op} s[{r_}:{r_+1}]"), P("s_waitcnt lgkmcnt(0)")]])

    def wd_dma(n):
        return [P(f"s_add_u32 s{sT2}, s{sWd}, {n * 128}")] + dma4(sWb, FU[n] * 16384, vDW, SWD, sT2, 0, (f"D{n}",))
    phA = qk(0, 0)
    for q in range(56):
        n, kk, c, u = q >> 3, (q >> 1) & 3, q & 1, FU[q >> 3]
        for h in range(2):
            G.at(B2 + 4 * (q - 4) + 2 * h, P(f"ds_read_b64_tr_b16 {v(vF2r + 4 * (q & 7) + 2 * h, 2)}, v{vF2a[2 * (u // 4) + c]} "
                                          f"offset:{(u % 4) * 16384 + kk * 4096 + 2048 * h}"))
        if q & 1 == 0:
            G.at(B2 + 4 * q - (2 if q & 7 == 4 else 1), WaitTag(tuple(keys('v', vF2r + 4 * ((q + 1) & 7), 4) + (keys('a', aH, 64) if q == 0 else []))))
    for n in range(7):
        G.at(B2 + 32 * n + 13, WaitTag((f"D{n + 1}",) if n < 6 else ("U4", "qx")))
        G.at(B2 + 32 * n + 15, P("s_barrier"))
    gmark('t2', B2 - 1)
    for j in range(28):
        b = 32 * j
        wt = []
        if j < 27:
            wt = [f"X{j + 1}"] + ([f"Y{(j + 1) // 2}"] if j & 1 else [])
        else:
            wt = keys('v', FR, 68) + ['hx', 'D0']
        if j == sig_k:
            wt.append('kv')
        G.at(b, WaitTag(tuple(wt)))
        if 'b' not in t2x or j & 1:
            G.at(b + 1, P("s_barrier"))
        if j == 14:
            gmark('f', b - 1)
        G.at(b + 19, WaitTag(keys('v', fC(0, 6), 4)))
        if j < 27:
            for i in range(7):
                G.at(b + 4 * i + 3, cread2(j + 1, i))
            for n, it in enumerate([cread2(j + 1, 7)] + wreads2(j + 1)):
                G.at(b + 2 + 2 * n + (n > 0), it)
            G.at(b + 31, WaitTag(keys('v', fC(0, 5), 4)))
        dl = []
        if j + 6 <= 27:
            dl += dmaW2(j + 6)
        if 2 <= j and j // 2 + 3 <= 13:
            dl += dmaA2(j // 2 + 3, (2, 3) if j & 1 else (0, 1))
        if 22 <= j <= 26:
            dl += wd_dma([0, 1, 3, 4, 2][j - 22])
        if 'd' in t2x:
            dl = []
        if 'a' in t2x:
            dl = dl[:6]
        G.place(dl, b + 2, b + 30)
    G.place([sidecall(f"s_cmp_eq_u32 s{sW}, 0", signal2(0, vT[0]))], 32 * sig_k + 2, 32 * sig_k + 12)
    comp = [sn for sn in range(32) if STK[sn] > 13]
    assert all(sn >= 16 for sn in comp)
    CK = {sn: k for k, sn in spread(comp, 0, 13)}
    n = 0
    L = []
    for j in range(14):
        for sn in range(32):
            if STK[sn] == j or CK.get(sn) == j:
                L += unit(sn, 100 + 8 * (n % 3), STK[sn] == j)
                n += 1
    drain = L if 'v' not in t2x else []
    for j in range(14, 28):
        G.place(flat([kvstore(sn, a(8 * sn, 4)) for sn in range(32) if STK[sn] == j]), 32 * j + 8, 32 * j + 31)
    t, t2 = vT[4], vT[5]
    L = [f"v_lshrrev_b32 v{t}, 3, v{vLane}", f"v_and_b32 v{t2}, 6, v{t}", f"v_mul_u32_u24 v{t}, 896, v{t}",
         f"v_xor_b32 v{t2}, v{t2}, v{vLane}", f"v_and_b32 v{t2}, 7, v{t2}", f"v_lshl_add_u32 v{t}, v{t2}, 4, v{t}",
         f"s_mul_i32 s{sT}, s{sW}, {32 * 896}", f"v_add_u32 v{vDW[0]}, s{sT}, v{t}"]
    L += [f"v_add_u32 v{vDW[q]}, {q * (8 * 896 - 1024)}, v{vDW[0]}" for q in range(1, 4)]
    G.place(PL(L), 32, 32 * 8)
    L = [f"v_add_u32 v{vL16h}, 0x10000, v{vL16}", f"v_mov_b32 v{vBig}, {NEG_BIG}",
         f"v_and_b32 v{t}, 15, v{vLane}", f"v_lshrrev_b32 v{t2}, 4, v{vLane}", f"v_lshlrev_b32 v{t2}, 2, v{t2}",
         f"v_sub_u32 v{t}, v{t}, v{t2}", f"s_lshl_b32 s{sT}, s{sW}, 4", f"v_add_u32 v{vRW}, s{sT}, v{t}",
         f"s_lshl_b32 s{sT}, s{sWc}, 14", f"s_lshl_b32 s{sT2}, s{sWr}, 17", f"s_add_u32 s{sT}, s{sT}, s{sT2}",
         f"v_add_u32 v{vQr}, s{sT}, v{vL16}"]
    G.place(PL(L), 32 * 8 + 1, 32 * 14 - 1)

    G.place(drain, 4, 32 * 14 - 1)

    def job_init():
        return PL([f"v_mov_b32 v{x}, 0" for x in vNegM + vLs + list(range(vC, vC + 16))])
    L = [f"s_lshl_b32 s{sT}, s{sW}, 11", f"v_add_u32 v{vQw[0]}, s{sT}, v{vL16}", f"v_add_u32 v{vQw[1]}, 0x20000, v{vQw[0]}"]
    L += [f"s_mov_b32 s{sIt}, 0", f"s_add_u32 s{sPz}, s{sSo}, {(7 - npz) * PHS}"]
    G.place(PL(L) + job_init(), 32 * 22, 32 * 27 - 1)
    G.place(poll_kv(vPl), B2 + 32 * (chk_ph - 1) + pk, B2 + 32 * (chk_ph - 1) + pk + 15)
    L = []
    for q in range(64 + 8):
        def reg(x): return 128 + 16 * (x >> 3) + (x & 7)
        def ok(x): return 0 <= x < 64
        if ok(q):
            L += [f"v_mul_f32 v{reg(q) + 8}, v{reg(q)}, v{reg(q) + 8}", f"v_mul_f32 v{reg(q)}, s{sBst}, v{reg(q)}"]
        if ok(q - 1):
            L += [f"v_exp_f32 v{reg(q - 1)}, v{reg(q - 1)}"]
        if ok(q - 7) and (q - 7) & 1:
            x = q - 7
            L += [f"v_cvt_pk_bf16_f32 v{vH + (x >> 1)}, v{reg(x) + 7}, v{reg(x) + 8}"]
        if ok(q - 3):
            L += [f"v_add_f32 v{reg(q - 3)}, 1.0, v{reg(q - 3)}"]
        if ok(q - 6):
            L += [f"v_mul_f32 v{reg(q - 6) + 8}, v{reg(q - 6)}, v{reg(q - 6) + 8}"]
        if ok(q - 4):
            L += [f"v_rcp_f32 v{reg(q - 4)}, v{reg(q - 4)}"]
    fe = PL(L) if 'v' not in t2x else []
    t, t2, c = vT[3], vT[4], vT[5]
    L = [f"v_lshrrev_b32 v{t}, 6, v{vL16}", f"v_bfe_u32 v{t2}, v{t}, 1, 2", f"v_lshlrev_b32 v{t}, 7, v{t}",
         f"v_bfe_u32 v{c}, v{vL16}, 1, 5", f"v_add_u32 v{t}, v{t}, v{c}", f"s_lshl_b32 s{sT}, s{sWc}, 1",
         f"v_xor_b32 v{t2}, s{sT}, v{t2}", f"v_lshl_add_u32 v{vF2a[0]}, v{t2}, 5, v{t}", f"v_xor_b32 v{vF2a[1]}, 32, v{vF2a[0]}",
         f"v_add_u32 v{vF2a[2]}, 0x10000, v{vF2a[0]}", f"v_add_u32 v{vF2a[3]}, 0x10000, v{vF2a[1]}",
         f"s_lshl_b32 s{sT}, s{sW}, 10", f"s_add_u32 s{sT}, s{sT}, {3 * 16384}", f"v_add_u32 v{vHw[0]}, s{sT}, v{vL16}",
         f"v_add_u32 v{vHw[1]}, 0x10000, v{vHw[0]}", f"s_lshl_b32 s{sT}, s{sWr}, 16", f"s_add_u32 s{sT}, s{sT}, {3 * 16384}",
         f"v_add_u32 v{vHr}, s{sT}, v{vL16}",
         f"s_mov_b32 s{SWD}, s100", f"s_and_b32 s{SWD+1}, s101, 0xffff", f"s_mov_b32 s{SWD+2}, {1792 * 896}",
         f"s_mul_i32 s{sWd}, s{sHead}, {128 * 896}",
         f"s_mov_b32 s{SX}, s56", f"s_and_b32 s{SX+1}, s57, 0xffff", f"s_mov_b32 s{SX+2}, {2048 * 896}",
         f"s_mov_b32 s{SO}, s28", f"s_and_b32 s{SO+1}, s29, 0xffff", f"s_mov_b32 s{SO+2}, {2048 * 896}", f"s_mov_b32 s{SO+3}, 0x00020000",
         f"s_add_u32 s{sHp}, s{sHo}, {fdir * PHS}",
         f"s_lshl_b32 s{sT}, s{sHead}, 1", f"s_add_u32 s{sT}, s{sT}, s{sWr}", f"s_lshl_b32 s{sT}, s{sT}, 12",
         f"s_mul_i32 s{sRs}, s{sU}, {US}", f"s_add_u32 s{sRs}, s{sRs}, s{sT}", f"s_lshl_b32 s{sT}, s{sWc}, 17",
         f"s_add_u32 s{sRs}, s{sRs}, s{sT}", f"s_add_u32 s{sRf}, s{sRs}, {F_PF}",
         f"s_add_u32 s{sRs}, s{sRs}, {F_PS}",
         *([f"s_mov_b32 s{sRf}, {OOB}"] if 'f' in tx else []),
         f"s_lshl_b32 s{sFw}, s{sW}, 7", f"s_add_u32 s{sFw}, s{sFw}, s{sFl}", f"s_add_u32 s{sFw}, s{sFw}, 512",
         f"s_bfe_u32 s{sFp}, s{sHead}, 0x20001", f"s_lshl_b32 s{sFp}, s{sFp}, 7", f"s_lshl_b32 s{sT}, s{sU}, 10",
         f"s_add_u32 s{sFp}, s{sFp}, s{sT}", f"s_add_u32 s{sFp}, s{sFp}, {F_FL + 512}"]
    G.place(chains(PL(L)), 32 * 14, 32 * 22 - 1)
    G.place([P(f"ds_read_b128 {a(aH + 16 * rb4 + 4 * kk, 4)}, v{vHr} offset:{rb4 * 4096 + kk * 1024}") for kk in range(4) for rb4 in range(4)],
            32 * 27 + 2, 32 * 27 + 22)
    kvl = {1: [(0, 0)], 2: [(0, 1)], 4: [(1, 0)], 5: [(0, 2)], 6: [(1, 1)]}
    pend = []
    for n in range(7):
        b = B2 + 32 * n
        L = wd_dma(5) + wd_dma(6) if n == 0 else []
        pend += kvl.get(n, [])
        if n == chk_ph:
            L += spin_check(vPl, 1, poll_kv(vPl))
        if n >= chk_ph:
            for x in pend:
                L += kv_dma(*x)
            pend = []
        if n == 6:
            qr = [P(f"ds_read_b128 {a(aQ + 4 * k, 4)}, v{vQr} offset:{k * 1024}") for k in range(16)]
            G.place(flat([[qr[k]] + (phA[k][1] if k < LA else []) for k in range(16)]), b + 16, b + 31)
        G.place(L, b + 16, b + (44 if n < 6 else 31))
    G.place([maskchk(0)], B2 + 32 * 3, B2 + 32 * 4)

    def fdrain(n):
        L = []
        for rb4 in range(4):
            s_ = facc(n, rb4)
            d = s_ if n < 6 else vH + 16 + 4 * rb4
            L += [f"v_cvt_pk_bf16_f32 v{d + r}, v{s_ + 2 * r}, v{s_ + 2 * r + 1}" for r in range(4)]
            if n < fdir:
                L += fstore(v(d, 4), sHo, rb4, 1 if n < fdir - 1 else 7 - fdir)
            elif n < 6:
                L += [f"v_accvgpr_write_b32 a{aFP + 16 * (n - fdir) + 4 * rb4 + r}, v{d + r}" for r in range(4)]
        return PL(L)
    for n in range(6):
        G.place(fdrain(n), B2 + 32 * n + 34, B2 + 32 * n + 63)
    G.place(fe, 32 * 14, 32 * fe_end + 27)

    def find(it):
        return [g for g in range(len(G.items)) if any(x is it for _, _, x in G.items[g])][0] - 1
    for i in range(8):
        src = [x for x in fe if ('v', vH + 4 * i + 3) in x.wr and x.op.startswith('v_cvt')][0]
        lo = max(find(src) + 1, 32 * (24 if i < 4 else 25) + 2 + 4 * (i & 3))
        G.place([P(f"ds_write_b128 v{vHw[i >> 2]}, {v(vH + 4 * i, 4)} offset:{(i & 3) * 4096}", ('hx',))], lo, 32 * 27 - 1, even=False)
    L, chkl = [], []
    for n, (i, c) in enumerate([(i, c) for i in (1, 2, 3, 5, 6, 7, 0, 4) for c in range(2)]):
        e = 160 + 8 * (n % 8)
        blk = [f"v_accvgpr_read_b32 v{e + r}, a{16 * i + 8 * c + r}" for r in range(8)]
        blk += [f"v_pk_mul_f32 {v(e + 2 * r, 2)}, {v(e + 2 * r, 2)}, s[{sSc}:{sSc+1}]" for r in range(4)]
        blk += [f"v_cvt_pk_bf16_f32 v{e + r}, v{e + 2 * r}, v{e + 2 * r + 1}" for r in range(4)]
        blk = PL(blk) + [P(f"ds_write_b128 v{vQw[(i >> 1) & 1]}, {v(e, 4)} offset:{(i & 1) * 16384 + c * 8192 + (i >> 2) * 1024}", ('qx',))]
        chkl.append((i, blk[0], blk[-1]))
        L += blk
    G.place(L, 32 * 27 + 10, B2 + 32 * 6 + 10)
    for i, x, y in chkl:
        assert find(x) > 32 * 27 + 4 * i + 4 and (i & 3 or find(y) > B2 + 32 * 3 + 15), (i, find(x), find(y))
    if verbose:
        print("T2 over:", G.over(), [sum(max(0, G.cost(g) - 2) for g in range(32 * j + 1, 32 * j + 33)) for j in range(35)])
    p.add(G.out())

    def pv(tile, first=False, Pr=vP):
        L = []
        for db in range(16):
            rd = [P(f"ds_read_b128 {a(ring(db), 4)}, v{vL16} offset:{[2, 3, 0, 1][tile % 4] * 16384 + db * 1024}")]
            m = [P(f"{M16} {v(O(db, rb), 4)}, {a(ring(db), 4)}, {v(Pr + 4 * rb, 4)}, {'0' if first else v(O(db, rb), 4)}") for rb in range(2)]
            L.append((m, rd))
        return L

    WU = [8, 4, 6, 2, 0, 8, 4]

    def wphase(i):
        L = []
        for hb in range(2):
            for dk in range(8):
                for c in range(2):
                    n = 16 * hb + 2 * dk + c
                    u = WU[i] + (dk >> 2)
                    rd = [P(f"ds_read_b64_tr_b16 {a(ring(n) + 2 * h, 2)}, v{vWb + 4 * (u // 4) + 2 * hb + c} offset:{(u % 4) * 16384 + (dk & 3) * 4096 + 2048 * h}")
                          for h in range(2)]
                    m = []
                    for rb in range(2):
                        o = v(vS[hb] + 8 * rb + 4 * c, 4)
                        m.append(P(f"{M16} {o}, {a(ring(n), 4)}, {v(OB[dk] + 8 * rb, 4)}, {'0' if dk == 0 else o}"))
                    L.append((m, rd))
        return L

    def wo_dma(i):
        L = []
        for h in range(2):
            L += [P(f"s_add_u32 s{sT2}, s{sWo}, {i * 128 + h * 128 * 896}")]
            L += dma4(sWb, (WU[i] + h) * 16384, vDW, SWO, sT2, 0, (f"U{WU[i] + h}",))
        return L

    def emit(seg, nxt, bar_tags, streams, nm=""):
        main, pos, fx = [], [], []
        for m, r, *x in seg:
            if r:
                pos.append(len(main))
            if x:
                fx.append((len(main), x[0]))
            main += m
        G = Gaps(main)
        for sl, x in fx:
            for k, y in enumerate(x):
                G.at(sl + k, y)
        R = [e[1] for e in seg if e[1]]
        N = len(R)
        R2 = R + ([x[1] for x in nxt[:LA]] if nxt is not None else [])
        bp = None
        if nxt is not None:
            bp = pos[N - LA] - 1
            G.at(bp - 1, WaitTag(tuple(bar_tags)))
            G.at(bp, P("s_barrier"))
        for k in range(LA, len(R2)):
            for x in R2[k]:
                G.at(pos[k - LA], x)
        for k in range(WG, N + 1, WG):
            kk = min(k + WG - 1, len(R2) - 1)
            if kk >= k:
                sl = (pos[k] if k < N else len(main)) - 1
                if sl == bp:
                    sl -= 1
                G.at(sl, WaitTag(tuple(R2[kk][-1].wr)))
        for items, lo, hi in streams:
            if lo == 'sp':
                G.at(hi[0], items[0])
                for q in range(4):
                    G.at(hi[q], items[1 + q])
        for items, lo, hi in streams:
            if lo == 'sp':
                items, lo, hi = items[5:], hi[3] + 1, None
            lo = bp + 1 if lo == 'bar' else lo
            G.place(items, lo, len(main) - 1 if hi is None else hi)
        if verbose:
            print("phase", nm, "over", G.over())
        p.add(G.out())

    def ml_poll():
        return [P(f"buffer_load_dwordx4 {v(vML, 4)}, v{vL16}, s[{SWS}:{SWS+3}], s{sMl} offen sc1")]

    def xlane(op, R, T):
        return PL([f"v_permlane32_swap_b32 v{R[0]}, v{R[1]}", f"{op} v{R[0]}, v{R[0]}, v{R[1]}",
                   f"v_mov_b32 v{T}, v{R[0]}", f"v_permlane16_swap_b32 v{R[0]}, v{T}", f"{op} v{R[0]}, v{R[0]}, v{T}",
                   f"v_mov_b32 v{R[1]}, v{R[0]}", f"v_permlane32_swap_b32 v{R[0]}, v{R[1]}"])

    def rowmax(S):
        L = [f"v_max3_f32 v{vMx[rb]}, v{S + 8 * rb}, v{S + 8 * rb + 1}, v{S + 8 * rb + 2}" for rb in range(2)]
        for k in (3, 5):
            L += [f"v_max3_f32 v{vMx[rb]}, v{vMx[rb]}, v{S + 8 * rb + k}, v{S + 8 * rb + k + 1}" for rb in range(2)]
        L += [f"v_max_f32 v{vMx[rb]}, v{vMx[rb]}, v{S + 8 * rb + 7}" for rb in range(2)]
        return PL(L) + xlane("v_max_f32", vMx, vMx2[0])

    EO = [0, 1, 2, 3, 8, 9, 10, 11, 4, 5, 6, 7, 12, 13, 14, 15]

    def exps(S, sub=False, inplace=False):
        L, pend, cnt = [], [], [0, 0]
        def flush(n):
            while len(pend) > n:
                r = pend.pop(0)
                rb = r >> 3
                cnt[rb] += 1
                if cnt[rb] == 2:
                    L.append(f"v_add_f32 v{vPs[rb]}, v{vE + r - 1}, v{vE + r}")
                elif cnt[rb] > 2:
                    L.append(f"v_add_f32 v{vPs[rb]}, v{vPs[rb]}, v{vE + r}")
        for r in EO:
            if inplace:
                L.append(f"v_add_f32 v{S + r}, v{S + r}, v{vNegM[r >> 3]}")
            if sub:
                L += [f"v_sub_f32 v{vE + r}, v{S + r}, v{vMx[r >> 3]}", f"v_exp_f32 v{vE + r}, v{vE + r}"]
            else:
                L.append(f"v_exp_f32 v{vE + r}, v{S + r}")
            pend.append(r)
            flush(1)
        flush(0)
        return PL(L)

    def cvts(Pr=vP):
        return PL([f"v_cvt_pk_bf16_f32 v{Pr + r}, v{vE + 2 * r}, v{vE + 2 * r + 1}" for r in range(8)])

    def lsadd():
        return PL([f"v_add_f32 v{vLs[rb]}, v{vLs[rb]}, v{vPs[rb]}" for rb in range(2)])

    shared = {}
    def check(tile, has_qk, recvt=None, it=None):
        S, Sn = vS[tile % 2], vS[(tile + 1) % 2]
        blk = rowmax(S)
        for rb in range(2):
            blk += PL([f"v_max_f32 v{vMx[rb]}, 0, v{vMx[rb]}", f"v_exp_f32 v{vMx2[rb]}, -v{vMx[rb]}",
                       f"v_sub_f32 v{vNegM[rb]}, v{vNegM[rb]}, v{vMx[rb]}", f"v_mul_f32 v{vLs[rb]}, v{vLs[rb]}, v{vMx2[rb]}"])
        for dk in range(8):
            blk += PL([f"v_mul_f32 v{OB[dk] + r}, v{OB[dk] + r}, v{vMx2[r >> 3]}" for r in range(16)])
        if has_qk:
            for r in range(16):
                blk += PL([f"v_sub_f32 v{vC + r}, v{vC + r}, v{vMx[r >> 3]}", f"v_sub_f32 v{Sn + r}, v{Sn + r}, v{vMx[r >> 3]}"])
        blk += exps(S, sub=True)
        if recvt is not None:
            blk += cvts(recvt)
        if it is not None:
            if tile not in shared:
                shared[tile] = [Label(p.newlabel('rare'))] + blk + [P("s_waitcnt vmcnt(0)")]
                side.append(shared[tile])
            lr = p.newlabel('rarer')
            shared[tile] += PL([f"s_cmp_eq_u32 s{sIt}, {it}", f"s_cbranch_scc1 {lr}"] if it else [f"s_branch {lr}"])
            return [P(f"v_add_f32 v{vMx[0]}, v{vPs[0]}, v{vPs[1]}"),
                    Br(P(f"v_cmp_nge_f32 vcc, {THRESH}, v{vMx[0]}"), P(f"s_cbranch_vccnz {shared[tile][0].name}"), Label(lr))]
        return [P(f"v_add_f32 v{vMx[0]}, v{vPs[0]}, v{vPs[1]}"),
                sidecall(f"v_cmp_nge_f32 vcc, {THRESH}, v{vMx[0]}", blk, 'rare', 's_cbranch_vccnz')]

    def lin_io(op, reg, so, n, tags=()):
        L = [P(f"{op} {reg}, v{vL16}, s[{SWS}:{SWS+3}], s{so} offen offset:{(n & 3) * 1024}{qsm if 'store' in op else ' sc1'}", tags)]
        if n & 3 == 3:
            L.append(P(f"s_add_u32 s{so}, s{so}, 4096"))
        return L

    mark('att')
    lJob = p.newlabel('job')
    p.label(lJob)
    ph0 = qk(1, 0)
    qst = [lin_io("buffer_store_dwordx4", a(aQ + 4 * n, 4), sQo, n) for n in range(16)]
    emit(phA, ph0, ["U5"], [([maskchk(1)], 6, 20), (kv_dma(0, 3), 'bar', None), (fdrain(6), 2, 31), (flat(qst[:10]), 4, 31)], "A")

    mark('jA')
    def full(t, first=False):
        return pv(t - 1, first) + qk(t + 1, 16)
    ph1 = full(1, True)
    emit(ph0, ph1, ["U2", "U6"],
         [(flat(qst[10:]) + [P(f"s_mov_b32 s{sQo}, {OOB}")] + kv_dma(1, 2) + kv_dma(0, 4), 'bar', None),
          (rowmax(vS[0]) + PL([f"v_sub_f32 v{vNegM[rb]}, 0, v{vMx[rb]}" for rb in range(2)]) + exps(vS[0], sub=True) + lsadd() + cvts(), 1, 30)], "0")

    mark('j0')
    def hstore(i):
        return fstore(v(vH + 4 * i, 4), sHo, i & 3, int(i < 7))

    def std(t, first=False, pre=(), extra=(), it=None):
        sh = 0
        S = [([maskchk((t + 1) % 4, t >= 3)], 26 + sh, 31 + sh), (list(pre) + kv_dma(1, t + 2), vwin[0] + 3 * sh, vwin[1] + sh), (kv_dma(0, t + 4), 'bar', None)]
        if dsp and t >= 3:
            S[1:] = [(kv_dma(1, t + 2), 'sp', dsp[0]), (kv_dma(0, t + 4), 'sp', dsp[1])]
        if first:
            S.append((PL([f"v_mov_b32 v{vC + r}, v{vNegM[r >> 3]}" for r in range(16)]), 0, 25))
        ck = check(t, True, it=it)
        S += list(extra)
        S.insert(1, (exps(vS[t % 2], inplace=first) + ck[:1], 1, chk - 1 + sh))
        S.append((ck[1:], chk, chk + 4))
        S.append((lsadd() + cvts(), chk + 4, 62))
        if it:
            S += events(it, (t + 1) % 4)
        return S

    def btags(t):
        return [f"U{[2, 3, 0, 1][(t - 1) % 4]}", f"U{4 + (t + 1) % 4}"]

    emit(ph1, full(2), btags(2), std(1, first=True, extra=[(flat([hstore(i) for i in range(4, 5)]), 32, 63)]), "1")
    mark('j1')
    sig7 = sidecall(f"s_cmp_eq_u32 s{sW}, 0", signal2(128, vRWu[0]))
    emit(full(2), full(3), btags(3), std(2, pre=wo_dma(0), extra=[([sig7], 'bar', None), (flat([hstore(i) for i in range(5, 8)]), 20, 63)]), "2")
    mark('j2')
    lTail, lLoop = p.newlabel('tail'), p.newlabel('loop')
    p(f"s_cmp_eq_u32 s{sRem}, 0")
    p(f"s_cbranch_scc1 {lTail}")
    lC = [lLoop] + [p.newlabel('it') for _ in range(6)]
    lD = p.newlabel('disp')
    p(f"s_cmp_lg_u32 s{sIt}, 0")
    p(f"s_cbranch_scc1 {lD}")
    side.append(PL([Label(lD)] + [x for k in range(1, 5) for x in (f"s_cmp_eq_u32 s{sIt}, {k}", f"s_cbranch_scc1 {lC[k + 1]}")] + [f"s_branch {lC[6]}"]))
    for it in (1, 2, 3, 4, 5, 6, 0):
        if it == 0:
            p.raw(".p2align 6")
        p.label(lC[it])
        for t in (3, 4, 5, 6):
            ex = [(PL([f"s_sub_u32 s{sRem}, s{sRem}, 1", f"s_add_u32 s{sIt}, s{sIt}, 1"]), 0, 20)] if t == 3 else []
            emit(full(t), full(t + 1), btags(t + 1), ex + std(t, it=it), f"{it}.{t}")
        if it:
            p(f"s_cmp_eq_u32 s{sRem}, 0")
            p(f"s_cbranch_scc1 {lTail}")
    p(f"s_cmp_lg_u32 s{sRem}, 0")
    p(f"s_cbranch_scc1 {lLoop}")
    p.label(lTail)

    def lsum(): return xlane("v_add_f32", vLs, vMx2[0])

    def ocvt(dk, rb):
        b = OB[dk] + 8 * rb
        return PL([f"v_cvt_pk_bf16_f32 v{b + r}, v{b + 2 * r}, v{b + 2 * r + 1}" for r in range(4)])

    vP2 = vS[0]

    def phaseD(streams, nm):
        ck = check(3, False, vP2)
        emit(pv(2), pv(3, Pr=vP2), ["U1"], streams + [(exps(vS[1]) + cvts(vP2) + ck[:1] + [ck[1].cond], 1, 30)], nm)
        p.add([ck[1].br, ck[1].lab])

    def w_setup():
        t, t2, c = vML + 1, vML + 2, vML + 3
        L = [f"v_lshrrev_b32 v{t}, 6, v{vL16}", f"v_bfe_u32 v{t2}, v{t}, 1, 2", f"v_lshlrev_b32 v{t}, 7, v{t}",
             f"v_bfe_u32 v{c}, v{vL16}, 1, 5", f"v_add_u32 v{t}, v{t}, v{c}"]
        for nb in range(4):
            L += [f"v_xor_b32 v{c}, {nb}, v{t2}", f"v_lshl_add_u32 v{vWb + nb}, v{c}, 5, v{t}"]
        L += [f"v_add_u32 v{vWb + 8 + nb}, 0x20000, v{vWb + nb}" for nb in range(4)]
        L += [f"v_add_u32 v{vWb + 4 + nb}, 0x10000, v{vWb + nb}" for nb in range(4)]
        return PL(L)

    lFin, lPart, lM, lW = (p.newlabel(x) for x in ('fin', 'part', 'merge', 'wo'))
    p(f"s_cmp_lg_u32 s{sKind}, {HOLD}")
    p(f"s_cbranch_scc1 {lFin}")
    ql = PL([f"s_xor_b32 s{sOut}, s{sF}, 15", f"s_lshl_b32 s{sOut}, s{sOut}, 2", f"s_add_u32 s{sOut}, s{sOut}, s{sW}",
             f"s_lshl_b32 s{sOut}, s{sOut}, 14", f"s_add_u32 s{sOut}, s{sOut}, {F_Q}"])
    mark('h0')
    p.add(ql + lin(spin_check(vPl, 1, q_poll())))
    qld = [lin_io("buffer_load_dwordx4", a(aQ + 4 * n, 4), sOut, n) for n in range(16)]
    phaseD([(flat(qld[:qd]), 0, 20 if qd == 16 else 31)] + ([(kv_dma(1, 5), 'bar', None)] if qd == 16 else []), "Dh")
    mark('h1')
    def hold(dk):
        L = []
        for rb in range(2):
            L += ocvt(dk, rb) + PL([f"v_accvgpr_write_b32 a{aPO + 8 * dk + 4 * rb + r}, v{OB[dk] + 8 * rb + r}" for r in range(4)])
        return L
    S = [(lsadd() + lsum() + PL([f"v_rcp_f32 v{vInv[rb]}, v{vLs[rb]}" for rb in range(2)]) + job_init(), 0, 12),
         (PL([f"s_mov_b32 s{sKind}, {PART}", f"s_mov_b32 s{sMaskAt}, -1", f"s_sub_u32 s{sRem}, 6, s{sU}"]), 0, 12)]
    if qd < 16:
        S.insert(0, (flat(qld[qd:]) + kv_dma(1, 5), 0, 31))
    S += [(hold(dk), 4 * dk + 6, min(4 * dk + 11, 31)) for dk in range(7)]
    emit(pv(3, Pr=vP2), phA, ["U4"], S, "Eh")
    p.add(hold(7))
    mark('h2')
    p(f"s_branch {lJob}")
    p.label(lFin)
    mark('fin')
    W = [wphase(i) for i in range(7)]
    phaseD([(wo_dma(1), 0, 30), (w_setup() + ml_poll(), 0, 24)], "D")
    mark('d')
    p(f"s_cmp_eq_u32 s{sKind}, {MERGE}")
    p(f"s_cbranch_scc1 {lM}")
    p(f"s_cmp_eq_u32 s{sKind}, {PART}")
    p(f"s_cbranch_scc1 {lPart}")
    S = [(wo_dma(2), 0, 30), (lsadd() + lsum() + PL([f"v_rcp_f32 v{vInv[rb]}, v{vLs[rb]}" for rb in range(2)]), 0, 8)]
    S += [(ocvt(dk, 0) + ocvt(dk, 1), 4 * dk + 6, min(4 * dk + 11, 31)) for dk in range(6)]
    emit(pv(3, Pr=vP2), W[0], ["U8", "U9"], S, "Ef")
    p(f"s_branch {lW}")
    p.label(lPart)
    def postore(dk):
        L = []
        for rb in range(2):
            b = OB[dk] + 8 * rb
            L += ocvt(dk, rb) + lin_io("buffer_store_dwordx4", v(b, 4), sPo, 2 * dk + rb, ('po',))
        return L
    def unhold(dk):
        return PL([f"v_accvgpr_read_b32 v{OB[dk] + 8 * rb + r}, a{aPO + 8 * dk + 4 * rb + r}" for rb in range(2) for r in range(4)])
    S = [(lsadd() + lsum() + PL([f"v_mov_b32 v{vML + 2 * rb + k}, v{(vNegM, vLs)[k][rb]}" for rb in range(2) for k in range(2)]), 0, 8)]
    S += [(postore(dk), 4 * dk + 6, min(4 * dk + 9, 31)) for dk in range(7)]
    emit(pv(3, Pr=vP2), W[0], ["U8", "U9"], S, "Ep")
    p.add(postore(7))
    mark('ep')
    p.add(wo_dma(2))
    for dk in range(8):
        p.add(unhold(dk))
    lW1 = p.newlabel('wo1')

    def sout(hb, tags=()):
        S = vS[hb]
        tb = vE if hb else vC
        L = []
        for rb in range(2):
            L += [f"v_mul_f32 v{S + 8 * rb + r}, v{S + 8 * rb + r}, v{vInv[rb]}" for r in range(8)]
            L += [f"v_cvt_pk_bf16_f32 v{tb + 4 * rb + r}, v{S + 8 * rb + 2 * r}, v{S + 8 * rb + 2 * r + 1}" for r in range(4)]
            L.append(P(f"buffer_store_dwordx4 {v(tb + 4 * rb, 4)}, v{vStQ}, s[{SWS}:{SWS+3}], s{sSo} offen{smod}", tags))
            L.append(f"s_add_u32 s{sSo}, s{sSo}, 65536")
        return PL(L)

    def wemit(i, extra, tail=()):
        S = list(extra)
        if i <= 3:
            S.append((wo_dma(i + 3), 0, 62))
        if i > 0:
            S.append((sout(1, (f"s{i - 1}",)), 3, 31))
        S.append((sout(0), 35 + (len(tail[0][0]) if tail else 0), None))
        emit(W[i][:2] + list(tail[:1]) + W[i][2:20] + list(tail[1:]) + W[i][20:], W[i + 1] if i < 6 else None, [f"U{WU[i + 1]}", f"U{WU[i + 1] + 1}"] if i < 6 else [], S, f"W{i}")
    wemit(0, [([WaitTag(('po',)), P(f"buffer_store_dwordx4 {v(vML, 4)}, v{vL16}, s[{SWS}:{SWS+3}], s{sMl} offen sc1")], posig, 63)])
    mark('pw0')
    p(f"s_branch {lW1}")
    p.label(lM)
    ok, spin = p.newlabel('mok'), p.newlabel('mspin')
    p(f"s_mov_b32 s{sT2}, 0")
    p.label(spin)
    p(f"v_min_u32 v{vMx[0]}, v{vML + 1}, v{vML + 3}")
    p(f"v_cmp_eq_u32 vcc, 0, v{vMx[0]}")
    p(f"s_cbranch_vccz {ok}")
    p(f"s_add_u32 s{sT2}, s{sT2}, 1")
    p(f"s_cmp_gt_u32 s{sT2}, 0x40000")
    p(f"s_cbranch_scc1 {ok}")
    p("s_sleep 2")
    p.add(ml_poll())
    p(f"s_branch {spin}")
    p.label(ok)
    mark('mok')
    for n in range(16):
        p.add(lin_io("buffer_load_dwordx4", a(aPO + 4 * n, 4), sPo, n))
    idm = [([P(f"{M16} {v(O(db, rb), 4)}, {v(vI + 2 - 2 * (db & 1), 4)}, {a(aPO + 8 * (db >> 1) + 4 * rb, 4)}, {v(O(db, rb), 4)}")
             for rb in range(2)], []) for db in range(16)]
    vF = vMx
    L = lsadd() + lsum()
    for rb in range(2):
        L += PL([f"v_sub_f32 v{vF[rb]}, v{vML + 2 * rb}, v{vNegM[rb]}", f"v_min_f32 v{vF[rb]}, {f2u(60.0)}, v{vF[rb]}",
                 f"v_exp_f32 v{vF[rb]}, v{vF[rb]}"])
    L2 = []
    for rb in range(2):
        L2 += PL([f"v_fma_f32 v{vLs[rb]}, v{vLs[rb]}, v{vF[rb]}, v{vML + 2 * rb + 1}", f"v_rcp_f32 v{vInv[rb]}, v{vLs[rb]}"])
    t, lo, hi = vRWu[0], vPs[0], vPs[1]
    L3 = [f"s_lshl_b32 s{sT}, s{sW}, 4", f"v_subrev_u32 v{t}, s{sT}, v{vRW}", f"v_mov_b32 v{lo}, 0x3f80", f"v_mov_b32 v{hi}, 0x3f800000"]
    L3 += [f"v_mov_b32 v{vI + k}, 0" for k in (0, 1, 4, 5)]
    for k in range(2):
        L3 += [f"v_cmp_eq_u32 vcc, {2 * k}, v{t}", f"v_cndmask_b32 v{vI + 2 + k}, 0, v{lo}, vcc",
               f"v_cmp_eq_u32 vcc, {2 * k + 1}, v{t}", f"v_cndmask_b32 v{vI + 2 + k}, v{vI + 2 + k}, v{hi}, vcc"]
    S = [(wo_dma(2), 0, 60), (L + PL(L3), 0, 7)]
    for dk in range(8):
        S.append((PL([f"v_mul_f32 v{OB[dk] + r}, v{OB[dk] + r}, v{vF[r >> 3]}" for r in range(16)]), max(8 + 6 * dk, 4 * dk + 6), min(13 + 6 * dk, 30 + 4 * dk)))
    S.append((L2, 50, 63))
    S += [(ocvt(dk, 0) + ocvt(dk, 1), 38 + 4 * dk, min(43 + 4 * dk, 63)) for dk in range(6)]
    emit(pv(3, Pr=vP2) + idm, W[0], ["U8", "U9"], S, "Em")
    p.label(lW)
    mark('wo')
    wemit(0, [(ocvt(6, 0) + ocvt(6, 1) + ocvt(7, 0) + ocvt(7, 1), 3, 20)])
    p.label(lW1)
    def ch(dk, rb): return OB[dk] + 8 * rb + 4
    vSa, vSel = [ch(0, 0), ch(0, 1), ch(1, 0), ch(1, 1)], [24, 28]
    vX, vXo = [156, 158, 128, 130], 135
    sXo = sKend
    t, t2 = vRWu
    L = [f"s_lshl_b32 s{sXo}, s{sHead}, 1", f"s_add_u32 s{sXo}, s{sXo}, s{sWr}",
         f"s_lshl_b32 s{sT}, s{sU}, 5", f"s_add_u32 s{sXo}, s{sXo}, s{sT}", f"s_mul_i32 s{sXo}, s{sXo}, {4 * 896}",
         f"s_lshl_b32 s{sT}, s{sWc}, 6", f"s_add_u32 s{sXo}, s{sXo}, s{sT}",
         f"v_bfe_u32 v{t}, v{vL16}, 6, 2", f"v_mul_u32_u24 v{vXo}, 896, v{t}",
         f"v_bfe_u32 v{t}, v{vL16}, 9, 1", f"v_lshl_add_u32 v{vXo}, v{t}, 7, v{vXo}",
         f"v_bfe_u32 v{t}, v{vL16}, 8, 1", f"v_lshl_add_u32 v{vXo}, v{t}, 5, v{vXo}",
         f"v_bfe_u32 v{t}, v{vL16}, 4, 2", f"v_lshl_add_u32 v{vXo}, v{t}, 3, v{vXo}"]
    if 's' in tx:
        L.append(f"s_mov_b32 s{sRs}, {OOB}")
    def xio(op, reg, sr, m):
        x = P(f"{op} {v(reg, 2)}, v{vXo}, s[{sr}:{sr+3}], s{sXo} offen offset:{256 * m}")
        return [x] if m < 3 else [[P("s_mov_b32 exec_hi, 0"), x, P("s_mov_b32 exec_hi, -1")]]
    rs2 = PL(L) + [y for m in range(4) for y in xio("buffer_load_dwordx2", vX[m], SX, m)]
    def sreg(i, j): return 160 + 16 * i + 4 * j if i < 6 else 140 + 4 * j

    def rload(i, j):
        return P(f"buffer_load_dwordx4 {v(sreg(i, j), 4)}, v{vL16}, s[{SWS}:{SWS+3}], s{sT} offen offset:{j * 1024}{rmod}")

    def rbase(i): return P(f"s_add_u32 s{sT}, s{sRs}, {i * PHS}")

    def rmf(I):
        return [P(f"{M16} {v(vSa[i >> 1], 4)}, {v(vSel[i & 1], 4)}, {v(sreg(i, j), 4)}, {'0' if j == 0 and i & 1 == 0 else v(vSa[i >> 1], 4)}")
                for i in I for j in range(4)]

    def settle(I):
        top, redo, fb, ok = (p.newlabel(x) for x in ('st', 'sr', 'sf', 'so'))
        R = [sreg(i, j) + 2 for i in I for j in range(4)]
        p(f"s_mov_b32 s{sKnx}, 0")
        p.label(top)
        for n, r in enumerate(R):
            p(f"v_cmp_eq_u32 {'vcc' if n == 0 else f's[{sMk[n % 4]}:{sMk[n % 4]+1}]'}, v{vBig}, v{r}")
            if n >= 2:
                p(f"s_or_b64 vcc, vcc, s[{sMk[(n - 1) % 4]}:{sMk[(n - 1) % 4]+1}]")
        p(f"s_or_b64 vcc, vcc, s[{sMk[(len(R) - 1) % 4]}:{sMk[(len(R) - 1) % 4]+1}]")
        p(f"s_cbranch_scc1 {redo}")
        p.label(ok)
        B = [Label(redo), f"s_add_u32 s{sKnx}, s{sKnx}, 1", f"s_cmp_gt_u32 s{sKnx}, 400", f"s_cbranch_scc1 {fb}"] + ([f"s_sleep {rsleep}"] if rsleep else [])
        for i in I:
            B.append(rbase(i))
            for j in range(4):
                sk = p.newlabel('sk')
                B += [f"v_cmp_eq_u32 vcc, v{vBig}, v{sreg(i, j) + 2}", f"s_cbranch_vccz {sk}", "s_mov_b64 exec, vcc", rload(i, j),
                      "s_mov_b64 exec, -1", Label(sk)]
        B += ["s_waitcnt vmcnt(0)", f"s_branch {top}", Label(fb)] + w_poll(vPl) + lin(spin_check(vPl, 4, w_poll(vPl)))
        for i in I:
            B += [rbase(i)] + [rload(i, j) for j in range(4)]
        side.append(PL(B + ["s_waitcnt vmcnt(0)", f"s_branch {ok}"]))
    EX = {1: [], 2: [], 3: [], 4: [(rs2, 0, 63)], 5: [(sel_setup(vSel, t, t2), 0, 63)], 6: []}
    if npz or two:
        EX[fl[0]].insert(0, ([WaitTag((f"s{6 - npz - two}",)), wsignal(3, vMx[0])], fl[1], 63))
        EX[6].append((w_poll(vPl), pl6, 63))
    for i in range(1, 7):
        wemit(i, EX[i])
    p.add(sout(1, ("s6",)))
    mark('end')

    def sloads(I=range(7), bit=2 if npz else 4, mk='e0'):
        p.add(lin(spin_check(vPl, bit, w_poll(vPl))))
        mark(mk)
        for i in I:
            p.add([rbase(i)] + [rload(i, j) for j in range(4)])
    if npz:
        sloads()
    else:
        if two:
            sloads(range(7 - two), 2, 'ea')
        p.wait_tags("s6")
        p.add(wsignal(7, t))
        p.add(w_poll(vPl))
    vG, vXf, F = 64, 112, 32
    F = [OB[k >> 3] + 8 * ((k >> 2) & 1) + (k & 3) for k in range(16)]
    for m in range(4):
        for k in range(2):
            p.add([f"v_lshlrev_b32 v{vXf + 4 * m + 2 * k}, 16, v{vX[m] + k}", f"v_and_b32 v{vXf + 4 * m + 2 * k + 1}, 0xffff0000, v{vX[m] + k}"])
    p.wait_tags('fl')
    p.add([f"v_accvgpr_read_b32 v{F[k]}, a{aFA(0) + k}" for k in range(4 * ((27 - nring) >> 3) + 4)])
    for q in range(28 - nring, 28):
        d = v(F[4 * (q >> 3)], 4)
        p(f"{M16} {d}, {v(vSel[(q >> 2) & 1], 4)}, {a(aFL(q), 4)}, {d if q & 7 else '0'}")
    if not npz:
        sloads(range(7 - two, 7) if two else range(7))
    p.add([f"v_mul_f32 v{vG + k}, {f2u(-LOG2E)}, v{F[k]}" for k in range(16)])
    p.add([f"v_exp_f32 v{vG + k}, v{vG + k}" for k in range(16)])
    p.add([f"v_add_f32 v{vG + k}, 1.0, v{vG + k}" for k in range(16)])
    p.add([f"v_rcp_f32 v{vG + k}, v{vG + k}" for k in range(16)])
    p.add([f"v_mul_f32 v{vG + k}, v{vG + k}, v{F[k]}" for k in range(16)])
    if npz:
        p.wait_tags("s6")
        mark('e1')
        p.add(wsignal(7, t))

    def fin(m):
        p.add([f"v_fmac_f32 v{vXf + 4 * m + q}, v{vSa[m] + q}, v{vG + 4 * m + q}" for q in range(4)])
        p.add([f"v_cvt_pk_bf16_f32 v{vX[m] + k}, v{vXf + 4 * m + 2 * k}, v{vXf + 4 * m + 2 * k + 1}" for k in range(2)])
        p.add(xio("buffer_store_dwordx2", vX[m], SO, m))
    ne = 7 - npz
    p.add(rmf(range(ne)))
    for m in range(ne // 2 if npz else 4):
        fin(m)
    if npz:
        mark('e2')
        settle(range(ne, 7))
        mark('ok')
        p.add(rmf(range(ne, 7)))
        for m in range(ne // 2, 4):
            fin(m)
    stp.finish()
    p.label(done)
    p("s_endpgm")
    for b in side:
        p.add(b)
    return p
```

```python
from build9 import *
L = ' 32l2 33l2 40l2 41l2 42l2 43l2 50l2 51l2 52l2 53l2 60l2 61l2 62l2 63l2'
C = '10t 10s3 11s3 12s3 13s3 20u 21r 21f 30p 32c' + L
build("v6a.s", stamp=False, kw=dict(verbose=False, posig=0, vmap=1, evs=C))
build("v6b.s", stamp=False, kw=dict(verbose=False, posig=0, vmap=1, evs=C, tmask=0x38))
```

```python
from common import *
from sched import *
from k1 import ln_load, ln_compute

M16 = "v_mfma_f32_16x16x32_bf16"
NEG_BIG = f2u(-1.0e30)
THRESH = f2u(2.0 ** 24)
OOB = 0x40000000
F_ML = 32 * MB
F_FL = 33 * MB
F_PO = 96 * MB
F_Q = 112 * MB
WS_SPAN = 128 * MB
F_PF = 38 * MB
F_PS = 66 * MB
PHS = 262144
US = 7 * PHS


class Col:
    def __init__(self): self.L = []
    def __call__(self, t, tags=()): self.L.append(P(t, tags))


def PL(L):
    return [P(x) if isinstance(x, str) else x for x in L]


def keys(kind, base, n):
    return [(kind, base + k) for k in range(n)]


def gen_kl(name="main_kernel", stamp=False, marks=('t1', 't2', 'att', 'fin', 'wo'), bar=1, wr0=2, wr_step=3, dma0=4, dma_step=7,
           st0=-1, st1=24, sig_k=26, LA=8, WG=4, chk=40, vwin=(2, 30), posig=40, verbose=True, nokv=False, t2x='', ctouch=True, wtouch=0, wmod=' nt', amod='', notch=False,
           fe_end=26, chk_ph=1, fdir=3, tx='', rmod=' sc1', kvmod=' sc1', xnmod=' sc1', rsleep=0, psleep=2,
           tmask=0x18, tsh=0, tlate=0, dsp=None, npz=0, two=0, pk=-16, fl=(6, 8), pl6=48, evs='10t 10s3 11s3 12s3 13s3 20u 21r 22f 32p 40c 40l2 41l3 42l2 43l2 50l3 51l2 52l2 53l3 60l2 61l2 62l3 63l2', ew=(2, 62), nring=14, qd=10, opx=0, vmap=0, krot=0, atouch=True, npre=5, lnh=50, smod=' sc1', fmod=' sc1', ksm=' sc1', fsm=' sc1', qsm=' sc1'):
    p = Prog(name)
    stp = Stamps(p, stamp, 0)

    def mark(nm):
        if nm in marks:
            stp.mark(marks.index(nm))
    vDK, vLane = 0, 1
    vT = [2, 3, 4, 5, 6, 7]
    vA, vA0 = [8, 9], [28, 29]
    vB = [10, 11, 12, 13]
    vL16, vStQ = 14, 15
    vDA = list(range(16, 24))
    vDB = list(range(24, 28))
    vPoll, vI3 = 30, 31
    vB2 = [[30, 31], [8, 9]]
    FR = 32
    def fC(st, i): return FR + i * 4 + (4 * st if i == 7 else 0)
    def fW(st, j): return FR + 36 + st * 32 + j * 4
    def fW2(st, j): return FR + 36 + st * 16 + j * 4
    vE1 = 148
    vTch = 250
    def acc(isV, ci, wi):
        return 8 * (8 * (ci >> 1) + wi) + 4 * (ci & 1) if isV else 8 * (8 * (ci >> 1) + (wi & 6) + (ci & 1)) + 4 * (wi & 1)
    sTs, sEv = 6, 7
    sW, sWr, sWc, sRb, sHead, sIsV = 20, 21, 22, 23, 24, 25
    sA, sB, sMW, sKt, sT, sT2, sOut = 26, 27, 28, 29, 30, 31, 32
    sMA, sAr, sWA, sBst, sU, sC2, sF = 33, 34, 35, 40, 41, 42, 43
    sSc, sWb, sBf, sTo, sFl = 44, 76, 77, 78, 3
    SA, SB, SWS, SD, ST = 8, 12, 16, 48, 52
    SF, SWQ, SWO, SV = 52, 12, 8, 64
    sKind, sRem, sMaskAt, sKo, sVo, sKend, sKnx, sVend = 36, 37, 38, 39, 60, 61, 62, 63
    sVnx, sEnd2, sQo, sSo, sPo, sMl, sWo, sHo = 4, 5, 6, 7, 46, 47, 33, 34
    sMk = [52, 54, 72, 74]
    sPz = 27
    FULL, HOLD, MERGE, PART = 0, 1, 2, 3
    side = []
    done = p.newlabel('done')
    p(f"s_cmp_ge_u32 s2, 256")
    p(f"s_cbranch_scc1 {done}")
    p("s_load_dwordx4 s[60:63], s[0:1], 0")
    p("s_load_dwordx4 s[36:39], s[0:1], 24")
    p("s_load_dwordx4 s[56:59], s[0:1], 88")
    p("s_load_dwordx2 s[68:69], s[0:1], 16")
    p("s_load_dwordx4 s[72:75], s[0:1], 56")
    p("s_load_dwordx2 s[70:71], s[0:1], 40")
    p("s_load_dwordx2 s[100:101], s[0:1], 72")
    stp.start()

    def code_touch(sr, tv, tid):
        if not ctouch:
            return []
        lp = p.newlabel('pc')
        return [[P(f"s_getpc_b64 s[{sr}:{sr+1}]"), Label(lp), P(f"s_sub_u32 s{sr}, s{sr}, {lp}-{name}"), P(f"s_subb_u32 s{sr+1}, s{sr+1}, 0")]] + \
            PL([f"s_and_b32 s{sr+1}, s{sr+1}, 0xffff", f"s_mov_b32 s{sr+2}, .Ltext_end-{name}", f"s_mov_b32 s{sr+3}, 0x00020000",
                f"s_and_b32 s{sT}, s2, {tmask}", f"s_lshl_b32 s{sT}, s{sT}, {12 - tsh}"] + tid +
               ([f"v_lshrrev_b32 v{tv}, {7 + tsh}, v{tv}", f"v_lshlrev_b32 v{tv}, 7, v{tv}"] if tsh else []) +
               [NT(f"buffer_load_dword v{tv}, v{tv}, s[{sr}:{sr+3}], s{sT} offen")])
    if not tlate:
        p.add(code_touch(ST, 254, [f"v_lshlrev_b32 v254, 7, v0"]))
    p(f"v_and_b32 v{vLane}, 63, v0")
    p(f"v_lshrrev_b32 v{vT[0]}, 6, v0")
    p(f"v_readfirstlane_b32 s{sW}, v{vT[0]}")
    p(f"s_lshr_b32 s{sU}, s2, 4")
    if vmap:
        p(f"s_and_b32 s{sRb}, s{sU}, 7")
        p(f"s_lshr_b32 s{sIsV}, s{sU}, 3")
        if vmap == 1:
            p(f"s_xor_b32 s{sIsV}, s{sIsV}, 1")
    else:
        p(f"s_lshr_b32 s{sRb}, s2, 5")
        p(f"s_and_b32 s{sIsV}, s{sU}, 1")
    p(f"s_bfe_u32 s{sT2}, s2, 0x10003")
    p(f"s_and_b32 s{sHead}, s2, 7")
    p(f"s_lshl_b32 s{sHead}, s{sHead}, 1")
    p(f"s_add_u32 s{sHead}, s{sHead}, s{sT2}")
    p(f"s_lshl_b32 s{sF}, s{sHead}, 4")
    p(f"s_add_u32 s{sF}, s{sF}, s{sU}")
    p(f"s_lshr_b32 s{sWr}, s{sW}, 1")
    p(f"s_and_b32 s{sWc}, s{sW}, 1")
    i7, i4 = vT[1], vT[2]

    def a_voffs(stride, dst):
        n = len(dst)
        L = [f"v_and_b32 v{i7}, 7, v{vLane}", f"v_lshrrev_b32 v{i4}, 4, v{vLane}",
             f"s_mul_i32 s{sT}, s{sW}, {8 * n * stride}",
             f"v_mul_u32_u24 v{vT[4]}, {stride}, v{vI3}", f"v_add_u32 v{vT[4]}, s{sT}, v{vT[4]}"]
        for par in range(2):
            t = vT[3]
            L += [f"v_add_u32 v{t}, {4 * par}, v{i4}", f"v_xor_b32 v{t}, v{t}, v{i7}",
                  f"v_lshl_add_u32 v{t}, v{t}, 4, v{vT[4]}"]
            for q in range(par, n, 2):
                L.append(f"v_add_u32 v{dst[q]}, {q * 8 * stride - (q & 3) * 1024}, v{t}")
        return PL(L)

    def w_voffs(scol, stride, dst):
        d = 8 * stride - 1024
        L = [f"v_and_b32 v{i7}, 7, v{vLane}", f"v_mul_u32_u24 v{vT[4]}, {stride}, v{vI3}",
             f"v_add_u32 v{vT[4]}, s{scol}, v{vT[4]}",
             f"v_and_b32 v{vT[3]}, 2, v{vI3}", f"v_xor_b32 v{vT[3]}, v{vT[3]}, v{i7}",
             f"v_lshl_add_u32 v{dst[0]}, v{vT[3]}, 4, v{vT[4]}",
             f"v_xor_b32 v{vT[3]}, 4, v{vT[3]}", f"v_lshl_add_u32 v{dst[1]}, v{vT[3]}, 4, v{vT[4]}",
             f"v_add_u32 v{dst[1]}, {d}, v{dst[1]}",
             f"v_add_u32 v{dst[2]}, {2 * d}, v{dst[0]}", f"v_add_u32 v{dst[3]}, {2 * d}, v{dst[1]}"]
        return PL(L)

    p(f"v_lshrrev_b32 v{vI3}, 3, v{vLane}")
    p.add(a_voffs(2048, vDA))
    p(f"s_lshl_b32 s{sC2}, s{sW}, 7")
    p.add(w_voffs(sC2, 8192, vDB))
    srd(p, SA, 62, 4194304)
    p(f"s_cmp_eq_u32 s{sIsV}, 0")
    p(f"s_cselect_b32 s36, s36, s38")
    p(f"s_cselect_b32 s37, s37, s39")
    srd(p, SB, 36, 8388608)
    p(f"s_lshl_b32 s{sA}, s{sRb}, 19")
    p(f"s_lshl_b32 s{sB}, s{sHead}, 9")
    if krot:
        p(f"s_and_b32 s{sT}, s2, 7" if krot == 1 else f"s_lshr_b32 s{sT}, s2, 5" if krot == 2 else f"s_bfe_u32 s{sT}, s2, 0x20003")
        p(f"s_lshl_b32 s{sT2}, s{sT}, {8 + (krot == 3)}")
        p(f"s_add_u32 s{sA}, s{sA}, s{sT2}")
        p(f"s_lshl_b32 s{sT2}, s{sT}, {20 + (krot == 3)}")
        p(f"s_add_u32 s{sB}, s{sB}, s{sT2}")
    p(f"s_lshl_b32 s{sMW}, s{sW}, 12")
    p(f"s_lshl_b32 s{sWb}, s{sW}, 12")
    p(f"s_lshl_b32 s{sWA}, s{sW}, 13")
    p(f"s_add_u32 s{sWA}, s{sWA}, 65536")
    p(f"s_mov_b32 s{sMA}, s{sWA}")

    def dma4(sm0, madd, voff, sr, so, inc, tags=(), mod="", qs=range(4)):
        L = [P(f"s_add_u32 m0, s{sm0}, {madd}")]
        for q in qs:
            L.append(P(f"buffer_load_dwordx4 v{voff[q]}, s[{sr}:{sr+3}], s{so} offen offset:{q * 1024}{mod} lds", tags))
        if inc:
            L.append(P(f"s_add_u32 s{so}, s{so}, {inc}"))
        return L

    def wrap(r, b): return [P(f"s_and_b32 s{r}, s{r}, {0xffffffff ^ (1 << b)}")] if krot else []
    def dmaW(add, tags=()): return dma4(sMW, add, vDB, SB, sB, 32 * 8192, tags, wmod) + wrap(sB, 23)
    def dmaA(half, tags=(), ma=0): return dma4(sMA, half * 4096 + ma, vDA[4 * half:], SA, sA, 128 if half else 0, tags, amod) + (wrap(sA, 11) if half else [])

    mark('d0')
    p.add(dmaW(0, ('p0',)))
    p.add(dmaA(0, ('p0',)))
    p.add(dmaA(1, ('p0',)))
    if tlate == 1:
        p.add(code_touch(ST, 254, [f"v_lshlrev_b32 v254, 7, v0"]))
    ln_load(p, vLane, sW, vE1, sid=sF)
    p.add(dmaW(16384, ('p1',)))
    p(f"s_add_u32 s{sMA}, s{sMA}, 65536")
    def pre_dma():
        return [dmaA(0, ('p2',), -32768), dmaA(1, ('p2',), -32768), dmaW(32768, ('p2',)), dmaW(49152), dmaA(0)]
    p.add(pre_dma()[:npre])
    if tlate == 2:
        p.add(code_touch(ST, 254, [f"v_lshlrev_b32 v254, 7, v0"]))
    p(f"s_lshl_b32 s{sT}, s2, 2")
    p(f"s_add_u32 s{sT}, s{sT}, s{sW}")
    p(f"v_lshlrev_b32 v{vT[0]}, 6, v{vLane}")
    p(f"s_lshl_b32 s{sT2}, s{sT}, 12")
    if atouch:
        p.add(NT(f"buffer_load_dword v255, v{vT[0]}, s[{SA}:{SA+3}], s{sT2} offen"))
    mark('d1')
    if wtouch:
        p(f"v_lshrrev_b32 v{vT[0]}, 2, v{vLane}")
        p(f"v_and_b32 v{vT[1]}, 3, v{vLane}")
        p(f"v_lshlrev_b32 v{vT[0]}, 13, v{vT[0]}")
        p(f"v_lshl_add_u32 v{vT[0]}, v{vT[1]}, 7, v{vT[0]}")
        p(f"s_lshl_b32 s{sT}, s{sW}, 3")
        p(f"s_add_u32 s{sT}, s{sT}, s{sRb}")
        p(f"s_lshl_b32 s{sT}, s{sT}, 18")
        p(f"s_lshl_b32 s{sT2}, s{sHead}, 9")
        p(f"s_add_u32 s{sT}, s{sT}, s{sT2}")
        p.add(NT(f"buffer_load_dword v255, v{vT[0]}, s[{SB}:{SB+3}], s{sT} offen"))
        p(f"s_add_u32 s{sT}, s{sT}, {16 * 8192}")
        p.add(NT(f"buffer_load_dword v255, v{vT[0]}, s[{SB}:{SB+3}], s{sT} offen"))
    r, g, f = vT[0], vT[1], vT[2]
    p(f"v_and_b32 v{r}, 15, v{vLane}")
    p(f"v_lshrrev_b32 v{g}, 4, v{vLane}")
    p(f"v_bfe_u32 v{f}, v{vLane}, 1, 3")
    p(f"s_lshl_b32 s{sT}, s{sWr}, 14")
    p(f"s_add_u32 s{sT}, s{sT}, 65536")
    for ks in range(2):
        t = vT[3]
        p(f"v_add_u32 v{t}, {4 * ks}, v{g}")
        p(f"v_xor_b32 v{t}, v{t}, v{f}")
        p(f"v_lshlrev_b32 v{t}, 4, v{t}")
        p(f"v_lshl_add_u32 v{t}, v{r}, 7, v{t}")
        p(f"v_add_u32 v{vA0[ks]}, s{sT}, v{t}")
        p(f"v_mov_b32 v{vA[ks]}, v{vA0[ks]}")
    p(f"v_and_b32 v{vT[3]}, 3, v{r}")
    p(f"v_lshlrev_b32 v{vT[3]}, 6, v{vT[3]}")
    p(f"v_lshl_add_u32 v{vStQ}, v{g}, 4, v{vT[3]}")
    p(f"v_lshrrev_b32 v{vT[3]}, 2, v{r}")
    p(f"v_mul_u32_u24 v{vT[3]}, {4096 + 512}, v{vT[3]}")
    p(f"s_lshl_b32 s{sT}, s{sHead}, 8")
    p(f"v_xor_b32 v{vT[3]}, s{sT}, v{vT[3]}")
    p(f"v_add_u32 v{vStQ}, v{vStQ}, v{vT[3]}")
    p(f"v_lshlrev_b32 v{vL16}, 4, v{vLane}")
    r4, c = vT[0], vT[3]
    p(f"v_bfe_u32 v{r4}, v{vLane}, 2, 2")
    p(f"v_and_b32 v{c}, 3, v{vLane}")
    t, t2 = vT[4], vT[5]
    p(f"v_lshl_add_u32 v{t}, v{g}, 3, v{r4}")
    p(f"v_lshlrev_b32 v{t}, 7, v{t}")
    p(f"v_lshl_add_u32 v{t}, v{c}, 3, v{t}")
    p(f"s_lshl_b32 s{sT}, s{sWc}, 13")
    p(f"v_add_u32 v{t}, s{sT}, v{t}")
    p(f"v_lshrrev_b32 v{t2}, 1, v{r4}")
    p(f"v_and_b32 v{c}, 1, v{g}")
    p(f"v_lshl_add_u32 v{t2}, v{c}, 1, v{t2}")
    for nb in range(4):
        p(f"v_xor_b32 v{c}, {nb}, v{t2}")
        p(f"v_lshl_add_u32 v{vB[nb]}, v{c}, 5, v{t}")
    srd(p, SWS, 58, WS_SPAN)
    p(f"v_lshlrev_b32 v2, 4, v0")
    for k in range(4, 8):
        p(f"v_mov_b32 v{k}, 0")
    p(f"s_lshl_b32 s{sT}, s{sF}, 12")
    p(f"s_add_u32 s{sT}, s{sT}, {F_ML}")
    p(f"buffer_store_dwordx4 v[4:7], v2, s[{SWS}:{SWS+3}], s{sT} offen sc1")
    p(f"s_lshl_b32 s{sFl}, s{sF}, 10")
    p(f"s_add_u32 s{sFl}, s{sFl}, {F_FL}")
    p(f"v_and_b32 v2, 0x3f0, v2")
    p(f"buffer_store_dwordx4 v[4:7], v2, s[{SWS}:{SWS+3}], s{sFl} offen sc1")
    p(f"v_add_u32 v{vDK}, s{sWb}, v{vL16}")
    srd(p, SD, 56, 256)
    p("s_mov_b64 s[56:57], s[60:61]")
    p(f"s_mov_b32 s{sAr}, 0")
    p(f"s_mov_b32 s{sKt}, 1")
    p(f"s_cmp_eq_u32 s{sW}, 0")
    p(f"s_cselect_b32 s{sEv}, 3, 0")

    def ln_items():
        c = Col()
        ln_compute(c, vLane, vE1, 58, rowmajor=True)
        G, cur = [], None
        for it in c.L:
            if it.text.startswith("s_mov_b32 exec_hi, 0x"):
                cur = []
            elif it.text.startswith("s_mov_b32 exec_hi, -1"):
                for k in range(0, len(cur), 4):
                    G.append([P("s_mov_b32 exec_hi, 0x00ffffff")] + cur[k:k + 4] + [P("s_mov_b32 exec_hi, -1")])
                cur = None
            elif cur is not None:
                cur.append(it)
            else:
                G.append(it)
        return chains(G)

    def cread(par, i):
        return P(f"ds_read_b128 {v(fC(par, i), 4)}, v{vA[par]} offset:{i * 2048}")

    def wreads(par):
        L = []
        for j in range(8):
            off = par * 16384 + (j >> 2) * 4096
            L += [P(f"ds_read_b64_tr_b16 {v(fW(par, j), 2)}, v{vB[j & 3]} offset:{off}"),
                  P(f"ds_read_b64_tr_b16 {v(fW(par, j) + 2, 2)}, v{vB[j & 3]} offset:{off + 512}")]
        return L

    def wunit(j): return 4 + (j + 2) % 6

    def cread2(j, i):
        return P(f"ds_read_b128 {v(fC(j & 1, i), 4)}, v{vA0[j & 1]} offset:{((j >> 1) % 4) * 16384 + i * 2048}")

    def wreads2(j):
        L = []
        u = wunit(j) - 4
        for jj in range(4):
            off = (u % 4) * 16384 + (jj >> 1) * 8192
            for h in range(2):
                L.append(P(f"ds_read_b64_tr_b16 {v(fW2(j & 1, jj) + 2 * h, 2)}, v{vB2[u // 4][jj & 1]} offset:{off + 512 * h}"))
        return L

    def dmaW2(j):
        if j < 14:
            return dma4(sWb, wunit(j) * 16384, vDA, SF, sBf, 32 * 3584, (f"X{j}",))
        return dma4(sWb, wunit(j) * 16384, vDB, SWQ, sB, 32 * 8192, (f"X{j}",))

    def dmaA2(s_, qs=range(4)):
        inc = (128 if s_ != 6 else -768) if 3 in qs else 0
        return dma4(sWb, (s_ % 4) * 16384, vDA[4:], SWS, sA, inc, (f"Y{s_}",), xnmod, qs)

    def advance():
        L = [f"s_add_u32 s{sMA}, s{sWA}, s{sAr}", f"s_add_u32 s{sAr}, s{sAr}, 32768",
             f"s_cmp_eq_u32 s{sAr}, 98304", f"s_cselect_b32 s{sAr}, 0, s{sAr}"]
        L2 = [f"v_add_u32 v{vA[k]}, s{sAr}, v{vA0[k]}" for k in range(2)]
        L2 += [f"v_xor_b32 v{x}, 0x8000, v{x}" for x in vB]
        return chains(PL(L)), PL(L2)

    def mf(par, isV, i, j, first=False):
        c_, w_ = v(fC(par, i), 4), v(fW(par, j), 4)
        x, y = (c_, w_) if (isV if not opx else opx == 1) else (w_, c_)
        d = a(acc(isV, i, j), 4)
        return P(f"{M16} {d}, {x}, {y}, {'0' if first else d}")

    def kstep(par, isV, first=False, vm=None, wt=(), dl=None, last=False, adv=True, fixed=(), pl=(), tag=None, pdl=()):
        G = Gaps([mf(par, isV, i, j, first) for i in range(8) for j in range(8)])
        if vm is not None:
            G.at(bar - 1, P(f"s_waitcnt vmcnt({vm}) lgkmcnt(0)"))
        else:
            G.at(bar - 1, WaitTag(tuple(wt) + tuple(keys('v', FR, 100))))
        G.at(bar, P("s_barrier"))
        if not last:
            wr_, cr = wreads(par ^ 1), (lambda i: cread(par ^ 1, i))
            G.at(62, WaitTag(keys('v', fC(par ^ 1, 0), 4) + keys('v', fW(par ^ 1, 0), 4 * bar)))
        else:
            wr_, cr = wreads2(0), (lambda i: cread2(0, i))
            G.at(63, WaitTag(keys('v', fC(0, 5), 4)))
        for n, it in enumerate(wr_):
            G.at(wr0 + n * wr_step, it)
        G.at(wr0 + 1, cr(7))
        for i in range(7):
            G.at(8 * i + 7, cr(i))
        if dl is None:
            dl = [dmaW(par * 16384, tag[0] if tag else ()) + ([P(f"s_xor_b32 s{sMW}, s{sMW}, 0x8000")] if par else []),
                  dmaA(par ^ 1, tag[1] if tag else ())]
        dl = list(pdl) + dl
        step = dma_step if len(dl) <= 2 else 58 // (4 * len(dl) - 1)
        d = 0
        for grp in dl:
            G.at(dma0 + d * step - 1, grp[0])
            for q in range(4):
                G.at(dma0 + (d + q) * step, grp[1 + q])
            for k, x in enumerate(grp[5:]):
                G.at(dma0 + (d + 3) * step + 1 + k, x)
            d += 4
        for sl, it in fixed:
            G.at(sl, it)
        if adv and par == 0:
            s_, v_ = advance()
            lo = max(40, dma0 + (d - 4) * step)
            G.place(s_, lo, max(55, lo + 5))
            G.place(v_, max(56, lo + 6), 63)
        for items, lo, hi in pl:
            G.place(items, lo, hi)
        p.add(G.out())

    def sidecall(cond, body, base='sd', br='s_cbranch_scc1'):
        lb, lr = p.newlabel(base), p.newlabel(base + 'r')
        side.append([Label(lb)] + body + [P(f"s_branch {lr}")])
        return Br(P(cond), P(f"{br} {lb}"), Label(lr))

    def brl(b): return [b.cond, b.br, b.lab]

    def signal(val, tmp):
        return PL([f"v_mov_b32 v{tmp}, {val}", f"s_mov_b64 exec, 1",
                   f"buffer_store_byte v{tmp}, off, s[{SD}:{SD+3}], s{sF} sc1", f"s_mov_b64 exec, -1"])

    def signal2(off, tmp):
        return PL([f"v_mov_b32 v{tmp}, 1", f"s_mov_b64 exec, 1",
                   f"buffer_store_dword v{tmp}, off, s[{SWS}:{SWS+3}], s{sFl} offset:{off} sc1", f"s_mov_b64 exec, -1"])

    def poll_xn(dst):
        return PL([f"v_lshrrev_b32 v{dst}, 2, v{vL16}", f"buffer_load_dword v{dst}, v{dst}, s[{SD}:{SD+3}], 0 offen sc1"])

    def poll_kv(dst):
        return PL([f"v_and_b32 v{dst}, 0xf0, v{vL16}", f"v_lshlrev_b32 v{dst}, 6, v{dst}", f"s_and_b32 s{sT}, s{sFl}, 0xffffc000",
                   f"buffer_load_dword v{dst}, v{dst}, s[{SWS}:{SWS+3}], s{sT} offen sc1"])

    def poll16(dst, srow, nt=False):
        ld = f"buffer_load_dword v{dst}, v{dst}, s[{SD}:{SD+3}], s{sT} offen sc1"
        return PL([f"v_bfe_u32 v{dst}, v{vL16}, 2, 4", f"s_lshl_b32 s{sT}, s{srow}, 4", NT(ld) if nt else ld])

    def spin_check(reg, mask, reissue):
        ok, spin, sp2 = p.newlabel('pok'), p.newlabel('spin'), p.newlabel('sp2')
        tst = [f"v_and_b32 v{reg}, {mask}, v{reg}", f"v_cmp_ne_u32 vcc, {mask}, v{reg}"]
        side.append(PL([Label(spin), f"s_mov_b32 s{sT2}, 0", Label(sp2), f"s_add_u32 s{sT2}, s{sT2}, 1",
                        f"s_cmp_gt_u32 s{sT2}, 0x40000", f"s_cbranch_scc1 {ok}", f"s_sleep {psleep}"] + reissue + tst +
                       [f"s_cbranch_vccnz {sp2}", f"s_branch {ok}"]))
        return [P(tst[0]), Br(P(tst[1]), P(f"s_cbranch_vccnz {spin}"), Label(ok))]

    def touch_setup():
        l1, l2, lj = (p.newlabel(x) for x in ('t1', 't2', 'tj'))
        t, t2 = vT[0], vT[1]
        sb, sLg, sRs = 46, sC2, sOut
        L = [f"s_cmp_ge_u32 s{sW}, 2", f"s_cbranch_scc1 {l2}",
             f"s_cmp_lg_u32 s{sW}, 0", f"s_cbranch_scc1 {l1}",
             f"s_mov_b64 s[{sb}:{sb+1}], s[68:69]",
             f"s_mul_i32 s{sT}, s{sU}, {28 * 8192}", f"s_lshl_b32 s{sT2}, s{sHead}, 9", f"s_add_u32 s{sT}, s{sT}, s{sT2}",
             f"s_mov_b32 s{ST+2}, {27 * 8192 + 512}", f"s_mov_b32 s{sLg}, 2", f"s_mov_b32 s{sRs}, 8192",
             f"s_mov_b32 s{sTs}, {3 * 8192}", f"s_branch {lj}", Label(l1),
             f"s_cmp_eq_u32 s{sIsV}, 0", f"s_cselect_b64 s[{sb}:{sb+1}], s[72:73], s[74:75]",
             f"s_mul_i32 s{sT}, s{sRb}, {56 * 3584}", f"s_min_u32 s{sT2}, s{sHead}, 13",
             f"s_lshl_b32 s{sT2}, s{sT2}, 8", f"s_add_u32 s{sT}, s{sT}, s{sT2}",
             f"s_mov_b32 s{ST+2}, {55 * 3584 + 256}", f"s_mov_b32 s{sLg}, 1", f"s_mov_b32 s{sRs}, 3584",
             f"s_mov_b32 s{sTs}, {6 * 3584}", f"s_branch {lj}", Label(l2),
             f"s_mov_b32 s{ST+2}, {112 * 128}", f"s_cmp_eq_u32 s{sW}, 2",
             f"s_cselect_b64 s[{sb}:{sb+1}], s[70:71], s[100:101]", f"s_cselect_b32 s{ST+2}, s{ST+2}, {49 * 128}",
             f"s_mul_i32 s{sT}, s{sF}, s{ST+2}", f"s_mov_b32 s{sLg}, 0", f"s_mov_b32 s{sRs}, 128",
             f"s_mov_b32 s{sTs}, {12 * 128}", Label(lj),
             f"s_add_u32 s{ST}, s{sb}, s{sT}", f"s_addc_u32 s{ST+1}, s{sb+1}, 0", f"s_and_b32 s{ST+1}, s{ST+1}, 0xffff",
             f"s_mov_b32 s{ST+3}, 0x00020000", f"s_mov_b32 s{sTo}, {OOB if notch else 0}",
             f"v_mul_u32_u24 v{t}, 3, v{vLane}", f"v_lshrrev_b32 v{t}, 4, v{t}",
             f"v_lshrrev_b32 v{t2}, s{sLg}, v{t}", f"v_mul_u32_u24 v{vTch}, s{sRs}, v{t2}",
             f"v_lshlrev_b32 v{t2}, s{sLg}, v{t2}", f"v_sub_u32 v{t}, v{t}, v{t2}",
             f"v_lshl_add_u32 v{vTch}, v{t}, 7, v{vTch}"]
        return PL(L)

    def f_setup():
        L = [f"s_cmp_eq_u32 s{sWr}, 0", f"s_cselect_b32 s{SF}, s72, s74", f"s_cselect_b32 s{SF+1}, s73, s75",
             f"s_and_b32 s{SF+1}, s{SF+1}, 0xffff", f"s_cmp_lt_u32 s{sHead}, 14",
             f"s_cselect_b32 s{SF+2}, {448 * 3584}, 0", f"s_mov_b32 s{SF+3}, 0x00020000",
             f"s_lshl_b32 s{sBf}, s{sHead}, 8", f"s_lshl_b32 s{sC2}, s{sWc}, 7"]
        return chains(PL(L) + w_voffs(sC2, 3584, vDA))

    def job_setup():
        hb = sC2
        L = [f"s_lshl_b32 s{hb}, s{sHead}, 20", f"s_add_u32 s{sT}, s{sU}, 1", f"s_lshl_b32 s{sT}, s{sT}, 16",
             f"s_add_u32 s{sKend}, s{hb}, s{sT}", f"s_sub_u32 s{sT2}, s{sKend}, {36 * 16384}",
             f"s_mov_b32 s{sMaskAt}, 0", f"s_xor_b32 s{sT}, s{sF}, 15",
             f"s_lshl_b32 s{sQo}, s{sF}, 16", f"s_add_u32 s{sQo}, s{sQo}, {F_Q}",
             f"s_cmp_ge_u32 s{sU}, 9", f"s_cselect_b32 s{sKind}, {MERGE}, {FULL}", f"s_cselect_b32 s{sRem}, 8, s{sU}",
             f"s_cselect_b32 s{sKo}, s{sT2}, s{hb}", f"s_cselect_b32 s{sPo}, s{sT}, s{sF}",
             f"s_cselect_b32 s{sQo}, s{sQo}, {OOB}",
             f"s_sub_u32 s{sT}, 7, s{sU}", f"s_lshl_b32 s{sT}, s{sT}, 16", f"s_add_u32 s{sEnd2}, s{hb}, s{sT}",
             f"s_cmp_le_u32 s{sU}, 6", f"s_cselect_b32 s{sKind}, {HOLD}, s{sKind}", f"s_cselect_b32 s{sKnx}, s{hb}, {OOB}",
             f"s_mov_b32 s{sVo}, s{sKo}", f"s_mov_b32 s{sVend}, s{sKend}", f"s_mov_b32 s{sVnx}, s{sKnx}",
             f"s_lshl_b32 s{sT}, s{sW}, 14", f"s_add_u32 s{sQo}, s{sQo}, s{sT}",
             f"s_lshl_b32 s{sPo}, s{sPo}, 2", f"s_add_u32 s{sPo}, s{sPo}, s{sW}",
             f"s_lshl_b32 s{sMl}, s{sPo}, 10", f"s_add_u32 s{sMl}, s{sMl}, {F_ML}",
             f"s_lshl_b32 s{sPo}, s{sPo}, 14", f"s_add_u32 s{sPo}, s{sPo}, {F_PO}",
             f"s_mul_i32 s{sSo}, s{sU}, {US}",
             f"s_lshl_b32 s{sT}, s{sW}, 14", f"s_add_u32 s{sSo}, s{sSo}, s{sT}", f"s_add_u32 s{sSo}, s{sSo}, {F_PS}",
             f"s_add_u32 s{SV}, s58, {WS_V}", f"s_addc_u32 s{SV+1}, s59, 0", f"s_and_b32 s{SV+1}, s{SV+1}, 0xffff",
             f"s_mov_b32 s{SV+2}, {KV_BYTES}", f"s_mov_b32 s{SV+3}, 0x00020000"]
        return chains(PL(L))

    def out_setup():
        L = [f"s_lshl_b32 s{sT}, s{sHead}, 6", f"s_lshl_b32 s{sT2}, s{sRb}, 3", f"s_add_u32 s{sT}, s{sT}, s{sT2}",
             f"s_lshl_b32 s{sT2}, s{sWr}, 2", f"s_add_u32 s{sT}, s{sT}, s{sT2}", f"s_lshl_b32 s{sOut}, s{sT}, 14",
             f"s_lshl_b32 s{sT2}, s{sWc}, 13", f"s_add_u32 s{sOut}, s{sOut}, s{sT2}",
             f"s_lshl_b32 s{sT2}, s{sIsV}, 24", f"s_add_u32 s{sOut}, s{sOut}, s{sT2}",
             *([f"s_mov_b32 s{sOut}, {OOB}"] if nokv else []),
             f"s_mov_b32 s{SWQ}, s68", f"s_and_b32 s{SWQ+1}, s69, 0xffff", f"s_mov_b32 s{SWQ+2}, {448 * 8192}",
             f"s_lshl_b32 s{sB}, s{sHead}, 9",
             f"s_mov_b32 s{SWO}, s70", f"s_and_b32 s{SWO+1}, s71, 0xffff", f"s_mov_b32 s{SWO+2}, {4096 * 896}",
             f"s_mul_i32 s{sWo}, s{sHead}, {256 * 896}",
             f"s_mul_i32 s{sHo}, s{sU}, {US}", f"s_lshl_b32 s{sT}, s{sWr}, 16", f"s_add_u32 s{sHo}, s{sHo}, s{sT}",
             f"s_lshl_b32 s{sT}, s{sWc}, 17", f"s_add_u32 s{sHo}, s{sHo}, s{sT}", f"s_add_u32 s{sHo}, s{sHo}, {F_PF}",
             f"s_cmp_lt_u32 s{sHead}, {0 if 'h' in tx else 14}", f"s_cselect_b32 s{sHo}, s{sHo}, {OOB}",
             f"s_mov_b32 s{sSc}, {f2u(LOG2E / 16)}", f"s_mov_b32 s{sSc+1}, {f2u(LOG2E / 16)}",
             f"s_mov_b32 s{sBst}, {f2u(-LOG2E)}"]
        return chains(PL(L))

    def rd2_setup():
        L = [f"s_add_u32 s{sT}, s{sWA}, 0", f"s_lshl_b32 s{sT}, s{sWr}, 14", f"s_add_u32 s{sT}, s{sT}, 65536"]
        L += [f"v_subrev_u32 v{vA0[k]}, s{sT}, v{vA0[k]}" for k in range(2)]
        L += [f"s_lshl_b32 s{sT}, s{sWr}, 12", f"s_lshl_b32 s{sT2}, s{sWc}, 13", f"s_sub_u32 s{sT}, s{sT}, s{sT2}",
              f"s_add_u32 s{sT}, s{sT}, {65536 - 0x8000}", f"s_cmp_lg_u32 s{sWc}, 0", f"s_cselect_b64 vcc, -1, 0"]
        for k in range(2):
            L += [f"v_cndmask_b32 v{vB2[0][k]}, v{vB[k]}, v{vB[2 + k]}, vcc", f"v_add_u32 v{vB2[0][k]}, s{sT}, v{vB2[0][k]}"]
        return chains(PL(L[1:]))

    STK = {sn: k for k, sn in spread(list(range(32)), st0, st1)}
    def kvstore(sn, data):
        L = [P(f"buffer_store_dwordx4 {data}, v{vL16}, s[{SWS}:{SWS+3}], s{sOut} offen offset:{(sn & 3) * 1024}{ksm}", ('kv',))]
        if sn & 3 == 3:
            L.append(P(f"s_add_u32 s{sOut}, s{sOut}, {12288 if sn & 4 else 4096}"))
        return L

    def unit(sn, T, direct):
        L = [P(f"v_accvgpr_read_b32 v{T + r}, a{8 * sn + r}") for r in range(8)]
        L += [P(f"v_cvt_pk_bf16_f32 v{T + r}, v{T + 2 * r}, v{T + 2 * r + 1}") for r in range(4)]
        if direct:
            return L + kvstore(sn, v(T, 4))
        return L + [P(f"v_accvgpr_write_b32 a{8 * sn + r}, v{T + r}") for r in range(4)]

    p.add(touch_setup())
    mark('d2')
    p.wait_tags('p0')
    p("s_barrier")
    mark('p')
    p.add([cread(0, 0)] + wreads(0) + [cread(0, i) for i in range(1, 8)])
    lV, lT2 = p.newlabel('vpath'), p.newlabel('t2')
    p(f"s_cmp_lg_u32 s{sIsV}, 0")
    p(f"s_cbranch_scc1 {lV}")

    def tid128(r):
        return [f"v_lshlrev_b32 v{r}, 3, v{vL16}", f"s_lshl_b32 s{sT2}, s{sW}, 13", f"v_add_u32 v{r}, s{sT2}, v{r}"]

    def tile1(isV):
        G = ln_items()
        h = len(G) * lnh // 100
        kstep(0, isV, first=True, wt=('p1',), pl=[(G[:h], 8, 63)], pdl=pre_dma()[npre:])
        mark('k1')
        kstep(1, isV, wt=('p2',), pl=[(G[h:], 0, 63)])
        mark('k2')
        lab = p.newlabel('loop')
        p.raw(".p2align 6")
        p.label(lab)
        if stamp and 'km' in marks:
            r_ = stp.sb + 6 + 2 * marks.index('km')
            p.add(brl(sidecall(f"s_cmp_eq_u32 s{sKt}, 6", [P(f"{stp.op} s[{r_}:{r_+1}]"), P("s_waitcnt lgkmcnt(0)")])))
        ev0 = sidecall(f"s_cmp_eq_u32 s{sKt}, s{sEv}", signal(1, vT[0]))
        tch = [(bar + 1, NT(f"buffer_load_dword v255, v{vTch}, s[{ST}:{ST+3}], s{sTo} offen")), (9, P(f"s_add_u32 s{sTo}, s{sTo}, s{sTs}"))]
        kstep(0, isV, vm=17, fixed=tch, pl=[([ev0], 6, 20)])
        kstep(1, isV, vm=17, fixed=[(58, P(f"s_add_u32 s{sKt}, s{sKt}, 1")), (61, P(f"s_cmp_lt_u32 s{sKt}, 12"))])
        p(f"s_cbranch_scc1 {lab}")
        mark('k24')
        def tg(k): return ((f"W{k + 4}",), (f"A{(k + 5) // 2}",))
        kstep(0, isV, vm=16, tag=tg(24), pl=[(poll_xn(vPoll), 6, 20), (job_setup(), 21, 63)])
        kstep(1, isV, vm=17, tag=tg(25), pl=[(code_touch(ST, 254, tid128(254)), 30, 63)])
        kstep(0, isV, vm=17 + ctouch, tag=tg(26), pl=[(f_setup(), 2, 60)])
        xs = PL([f"s_mul_i32 s{sA}, s{sU}, {128 * 896}", f"s_add_u32 s{sA}, s{sA}, {WS_XN}"])
        kstep(1, isV, wt=("W28", "A14"), dl=[dmaW(16384, ("W31",)), dmaW2(0)],
              pl=[(spin_check(vPoll, 0x01010101, poll_xn(vPoll)) + xs + a_voffs(896, vDA[4:]), 2, 60)])
        kstep(0, isV, wt=("W29",), dl=[dmaA2(0), dmaW2(1)], fixed=[(2, P("s_load_dwordx2 s[28:29], s[0:1], 80"))])
        kstep(1, isV, wt=("W30", "A15"), dl=[dmaA2(1), dmaW2(2)], pl=[(rd2_setup(), 2, 60)])
        kstep(0, isV, wt=("W31",), dl=[dmaA2(2), dmaW2(3)], adv=False, pl=[(out_setup(), 2, 60)])
        early = []
        for n, sn in enumerate([s_ for s_ in range(32) if STK[s_] < 0]):
            early += unit(sn, 232 + 8 * (n % 3), True)
        w2 = PL([f"v_add_u32 v{vB2[1][k]}, 65536, v{vB2[0][k]}" for k in range(2)])
        kstep(1, isV, wt=("X0", "Y0"), dl=[dmaA2(3), dmaW2(4), dmaW2(5)], last=True, pl=[(w2, 2, 10), (early, 18, 63)])

    tile1(False)
    p(f"s_branch {lT2}")
    p.label(lV)
    tile1(True)
    p.label(lT2)
    mark('t1')
    vMx, vMx2, vRWu = [2, 3], [4, 5], [6, 7]
    vPs = [8, 9]
    vDW = [10, 11, 12, 13]
    vL16h, vRW, vBig, vQr = 16, 17, 18, 19
    vNegM, vLs = [20, 21], [22, 23]
    vQw = [24, 25]
    vPl = vLane
    vP, vE, vS, vC = 24, 48, [64, 80], 112
    OB = [32, 96, 160, 176, 192, 208, 224, 240]
    def O(db, rb): return OB[db >> 1] + 8 * rb + 4 * (db & 1)
    vH = 128
    vML, vInv, vStS1, vI, vWb = 128, [132, 133], 134, 136, 144
    aQ, aR, aPO = 0, 64, 128
    aH, aFP = 128, 192
    vF2a, vHw, vHr, vF2r = [100, 101, 102, 103], [104, 105], 106, 224
    sSide, sFst, sHp, sFw, sFp, sWd = 100, 101, 23, 25, 35, 77
    SWD, SX, SO, SPZ = 52, 48, 68, 56
    sIt, sRf, sRs = 26, 28, 29
    vLs8, vLo, vFp = 136, [134, 135], 131
    def aFL(q): return 192 + 4 * (q % nring)
    def aFA(m): return 192 + 4 * nring + 4 * m
    EV = [(int(x[0]), int(x[1]), x[2], int(x[3:] or 0)) for x in evs.split()]
    assert sum(x[3] for x in EV if x[2] == 's') == 4 * (6 - fdir) and sum(x[3] for x in EV if x[2] == 'l') == 28
    assert npz == 0 and aFA((27 - nring) >> 3) <= 252
    ps = {k: [4 * x[0] + x[1] for x in EV if x[2] == k for _ in range(max(x[3], 1))] for k in 'slfpucr'}
    assert ps['f'][0] > max(ps['s']) and all(ps['l'][q] > ps['l'][q - nring] for q in range(nring, 28))
    assert ps['f'][0] < ps['p'][0] < ps['c'][0] <= ps['l'][0] and max(ps['u'][0], ps['r'][0]) < ps['l'][0] and max(x[0] for x in EV) <= 6
    vDum, vE0, vE1_ = 128, 129, 130
    assert EV == sorted(EV, key=lambda x: x[:2])
    def ring(n): return aR + 4 * (n % 16)

    def kv_dma(isV, tile):
        sl = tile % 4
        unit_ = [2, 3, 0, 1][sl] if isV else 4 + sl
        so, sr, se, sn = (sVo, SV, sVend, sVnx) if isV else (sKo, SWS, sKend, sKnx)
        L = dma4(sWb, unit_ * 16384, [vDK] * 4, sr, so, 16384, (f"U{unit_}",), kvmod)
        if sl == 3:
            L.append(Chain(PL([f"s_cmp_eq_u32 s{so}, s{se}", f"s_cselect_b32 s{so}, s{sn}, s{so}",
                               f"s_cselect_b32 s{se}, s{sEnd2}, s{se}", f"s_cselect_b32 s{sn}, {OOB}, s{sn}"])))
        return L

    def lin(L):
        out = []
        for x in L:
            if isinstance(x, Chain):
                out += x.ops
            elif isinstance(x, Br):
                out += brl(x)
            else:
                out.append(x)
        return out

    def qk(tile, n0):
        L = []
        S = vS[tile % 2]
        for n in range(16):
            rd = [P(f"ds_read_b128 {a(ring(n0 + n), 4)}, v{vL16h} offset:{(tile % 4) * 16384 + n * 1024}")]
            m = []
            for rb in range(2):
                o = 8 * rb + 4 * (n & 1)
                m.append(P(f"{M16} {v(S + o, 4)}, {a(ring(n0 + n), 4)}, {a(aQ + 8 * (n >> 1) + 4 * rb, 4)}, {v((vC if n < 2 else S) + o, 4)}"))
            L.append((m, rd))
        return L

    def q_poll():
        return PL([f"s_xor_b32 s{sT}, s{sFl}, 0x3c00", f"buffer_load_dword v{vPl}, off, s[{SWS}:{SWS+3}], s{sT} offset:128 sc1"])

    def fstore(data, so, rb4, nph=1, tg='fs'):
        return PL([P(f"buffer_store_dwordx4 {data}, v{vStQ}, s[{SWS}:{SWS+3}], s{so} offen{fsm}", (tg,)),
                   f"s_add_u32 s{so}, s{so}, {16384 if rb4 < 3 else nph * PHS - 49152}" if nph else f"s_mov_b32 s{so}, {OOB}"])

    def wsignal(val, tmp):
        return PL([f"v_mov_b32 v{tmp}, {val}", f"s_mov_b64 exec, 1",
                   f"buffer_store_dword v{tmp}, off, s[{SWS}:{SWS+3}], s{sFw} sc1", f"s_mov_b64 exec, -1"])

    def w_poll(dst):
        return PL([f"v_and_b32 v{dst}, 0xf0, v{vL16}", f"v_lshlrev_b32 v{dst}, 10, v{dst}",
                   f"buffer_load_dword v{dst}, v{dst}, s[{SWS}:{SWS+3}], s{sFp} offen sc1"])

    def sel_setup(D, t, t2):
        L = [f"v_and_b32 v{t}, 16, v{vL16}", f"v_mov_b32 v{t2}, 0x3f80", f"v_lshlrev_b32 v{t}, v{t}, v{t2}", f"v_bfe_u32 v{t2}, v{vL16}, 5, 3"]
        for k in range(8):
            L += [f"v_cmp_eq_u32 vcc, {k}, v{t2}", f"v_cndmask_b32 v{D[k >> 2] + (k & 3)}, 0, v{t}, vcc"]
        return PL(L)

    def ro_setup():
        return PL([f"s_and_b32 s{sT}, s{sHead}, 1", f"s_lshl_b32 s{sT}, s{sT}, 10", f"v_add_u32 v{vLo[0]}, s{sT}, v{vL16}",
                   f"s_lshl_b32 s{sT}, s{sWr}, 9", f"s_add_u32 s{sT}, s{sT}, 1024", f"v_xor_b32 v{vLo[1]}, s{sT}, v{vLo[0]}",
                   f"v_and_b32 v{vE0}, 0x200, v{vL16}", f"v_lshl_add_u32 v{vLo[1]}, v{vE0}, 21, v{vLo[1]}"])

    def fld(q):
        j = q & 3
        L = [NT(f"buffer_load_dwordx4 {a(aFL(q), 4)}, v{vL16 if j < 2 else vLo[j - 2]}, s[{SWS}:{SWS+3}], s{sRf} offen offset:{min(j, 2) * 1024}{fmod}", ('fl', f"fl{q}"))]
        if q >= nring:
            r = q - nring
            d = a(aFA(r >> 3), 4)
            L = [WaitTag((f"fl{r}",)), f"{M16} {d}, {v(vLs8 + 4 * ((r >> 2) & 1), 4)}, {a(aFL(r), 4)}, {d if r & 7 else '0'}"] + L
        return PL(L + ([f"s_add_u32 s{sRf}, s{sRf}, {PHS}"] if j == 3 else []))

    def poison(n):
        return PL([f"buffer_store_dwordx4 {v(vL16h, 4)}, v{vStQ}, s[{SWS}:{SWS+3}], s{sPz} offen sc1",
                   f"s_add_u32 s{sPz}, s{sPz}, 65536"] * n)

    def maskchk(u, inloop=False):
        blk = [P(f"v_subrev_u32 v{vRWu[0]}, {32 * u}, v{vRW}"), P(f"v_add_u32 v{vRWu[1]}, 64, v{vRWu[0]}")]
        for r0 in range(0, 16, 4):
            for r in range(r0, r0 + 4):
                blk.append(P(f"v_cmp_gt_i32 s[{sMk[r % 4]}:{sMk[r % 4]+1}], {16 * ((r >> 2) & 1) + (r & 3)}, v{vRWu[r >> 3]}"))
            for r in range(r0, r0 + 4):
                blk.append(P(f"v_cndmask_b32 v{vC + r}, v{vNegM[r >> 3]}, v{vBig}, s[{sMk[r % 4]}:{sMk[r % 4]+1}]"))
        if u == 3:
            blk += q_poll()
        if not inloop:
            return sidecall(f"s_cmp_eq_u32 s{sRem}, s{sMaskAt}", blk, 'mask')
        if u == 0:
            blk += flat(code_touch(12, vPl, tid128(vPl)))
        return sidecall(f"s_cmp_eq_u32 s{sRem}, s{sMaskAt}", blk, 'mask')

    def events(it, u):
        S, cnt = [], {}
        for i2, uu, k, n in EV:
            m = cnt.get(k, 0)
            cnt[k] = m + n
            if (i2, uu) != (it, u):
                continue
            late = 4 * it + u == ps['c'][0]
            S.append(dict(s=lambda: (flat([fstore(a(aFP + 4 * x, 4), sHp, x % 4, tg='fe') for x in range(m, m + n)]), *ew),
                          l=lambda: (flat([fld(q) for q in range(m, m + n)]), 26 if late else ew[0], ew[1]),
                          f=lambda: ([WaitTag(('fs', 'fe')), wsignal(1, vE0)], 33, 62), p=lambda: (w_poll(vFp), 33, 62),
                          u=lambda: (sel_setup([vLs8, vLs8 + 4], vE0, vE1_), 45, 63), r=lambda: (ro_setup(), 45, 63),
                          t=lambda: (code_touch(12, vDum, tid128(vDum)), 33, 63),
                          c=lambda: (spin_check(vFp, 1, w_poll(vFp)), 2, 24))[k]())
        return S

    def mf2(j, i, jj):
        d = v(128 + 16 * i + 4 * jj, 4) if j < 14 else a(16 * i + 4 * jj, 4)
        return P(f"{M16} {d}, {v(fW2(j & 1, jj), 4)}, {v(fC(j & 1, i), 4)}, {'0' if j in (0, 14) else d}")
    B2 = 32 * 28
    FU = [4, 5, 0, 2, 6, 3, 7]
    def facc(n, rb4): return (64 if n & 1 else 32) + 8 * rb4
    def mf3(n, kk, c, rb4):
        d = v(facc(n, rb4) + 4 * c, 4)
        return P(f"{M16} {d}, {v(vF2r + 4 * (2 * kk + c), 4)}, {a(aH + 16 * rb4 + 4 * kk, 4)}, {'0' if kk == 0 else d}")
    G = Gaps([mf2(j, i, jj) for j in range(28) for i in range(8) for jj in range(4)] +
             [mf3(n, kk, c, rb4) for n in range(7) for kk in range(4) for c in range(2) for rb4 in range(4)])

    def gmark(nm, slot):
        if stamp and nm in marks:
            r_ = stp.sb + 6 + 2 * marks.index(nm)
            G.at(slot, [[P(f"{stp.op} s[{r_}:{r_+1}]"), P("s_waitcnt lgkmcnt(0)")]])

    def wd_dma(n):
        return [P(f"s_add_u32 s{sT2}, s{sWd}, {n * 128}")] + dma4(sWb, FU[n] * 16384, vDW, SWD, sT2, 0, (f"D{n}",))
    phA = qk(0, 0)
    for q in range(56):
        n, kk, c, u = q >> 3, (q >> 1) & 3, q & 1, FU[q >> 3]
        for h in range(2):
            G.at(B2 + 4 * (q - 4) + 2 * h, P(f"ds_read_b64_tr_b16 {v(vF2r + 4 * (q & 7) + 2 * h, 2)}, v{vF2a[2 * (u // 4) + c]} "
                                          f"offset:{(u % 4) * 16384 + kk * 4096 + 2048 * h}"))
        if q & 1 == 0:
            G.at(B2 + 4 * q - (2 if q & 7 == 4 else 1), WaitTag(tuple(keys('v', vF2r + 4 * ((q + 1) & 7), 4) + (keys('a', aH, 64) if q == 0 else []))))
    for n in range(7):
        G.at(B2 + 32 * n + 13, WaitTag((f"D{n + 1}",) if n < 6 else ("U4", "qx")))
        G.at(B2 + 32 * n + 15, P("s_barrier"))
    gmark('t2', B2 - 1)
    for j in range(28):
        b = 32 * j
        wt = []
        if j < 27:
            wt = [f"X{j + 1}"] + ([f"Y{(j + 1) // 2}"] if j & 1 else [])
        else:
            wt = keys('v', FR, 68) + ['hx', 'D0']
        if j == sig_k:
            wt.append('kv')
        G.at(b, WaitTag(tuple(wt)))
        if 'b' not in t2x or j & 1:
            G.at(b + 1, P("s_barrier"))
        if j == 14:
            gmark('f', b - 1)
        G.at(b + 19, WaitTag(keys('v', fC(0, 6), 4)))
        if j < 27:
            for i in range(7):
                G.at(b + 4 * i + 3, cread2(j + 1, i))
            for n, it in enumerate([cread2(j + 1, 7)] + wreads2(j + 1)):
                G.at(b + 2 + 2 * n + (n > 0), it)
            G.at(b + 31, WaitTag(keys('v', fC(0, 5), 4)))
        dl = []
        if j + 6 <= 27:
            dl += dmaW2(j + 6)
        if 2 <= j and j // 2 + 3 <= 13:
            dl += dmaA2(j // 2 + 3, (2, 3) if j & 1 else (0, 1))
        if 22 <= j <= 26:
            dl += wd_dma([0, 1, 3, 4, 2][j - 22])
        if 'd' in t2x:
            dl = []
        if 'a' in t2x:
            dl = dl[:6]
        G.place(dl, b + 2, b + 30)
    G.place([sidecall(f"s_cmp_eq_u32 s{sW}, 0", signal2(0, vT[0]))], 32 * sig_k + 2, 32 * sig_k + 12)
    comp = [sn for sn in range(32) if STK[sn] > 13]
    assert all(sn >= 16 for sn in comp)
    CK = {sn: k for k, sn in spread(comp, 0, 13)}
    n = 0
    L = []
    for j in range(14):
        for sn in range(32):
            if STK[sn] == j or CK.get(sn) == j:
                L += unit(sn, 100 + 8 * (n % 3), STK[sn] == j)
                n += 1
    drain = L if 'v' not in t2x else []
    for j in range(14, 28):
        G.place(flat([kvstore(sn, a(8 * sn, 4)) for sn in range(32) if STK[sn] == j]), 32 * j + 8, 32 * j + 31)
    t, t2 = vT[4], vT[5]
    L = [f"v_lshrrev_b32 v{t}, 3, v{vLane}", f"v_and_b32 v{t2}, 6, v{t}", f"v_mul_u32_u24 v{t}, 896, v{t}",
         f"v_xor_b32 v{t2}, v{t2}, v{vLane}", f"v_and_b32 v{t2}, 7, v{t2}", f"v_lshl_add_u32 v{t}, v{t2}, 4, v{t}",
         f"s_mul_i32 s{sT}, s{sW}, {32 * 896}", f"v_add_u32 v{vDW[0]}, s{sT}, v{t}"]
    L += [f"v_add_u32 v{vDW[q]}, {q * (8 * 896 - 1024)}, v{vDW[0]}" for q in range(1, 4)]
    G.place(PL(L), 32, 32 * 8)
    L = [f"v_add_u32 v{vL16h}, 0x10000, v{vL16}", f"v_mov_b32 v{vBig}, {NEG_BIG}",
         f"v_and_b32 v{t}, 15, v{vLane}", f"v_lshrrev_b32 v{t2}, 4, v{vLane}", f"v_lshlrev_b32 v{t2}, 2, v{t2}",
         f"v_sub_u32 v{t}, v{t}, v{t2}", f"s_lshl_b32 s{sT}, s{sW}, 4", f"v_add_u32 v{vRW}, s{sT}, v{t}",
         f"s_lshl_b32 s{sT}, s{sWc}, 14", f"s_lshl_b32 s{sT2}, s{sWr}, 17", f"s_add_u32 s{sT}, s{sT}, s{sT2}",
         f"v_add_u32 v{vQr}, s{sT}, v{vL16}"]
    G.place(PL(L), 32 * 8 + 1, 32 * 14 - 1)

    G.place(drain, 4, 32 * 14 - 1)

    def job_init():
        return PL([f"v_mov_b32 v{x}, 0" for x in vNegM + vLs + list(range(vC, vC + 16))])
    L = [f"s_lshl_b32 s{sT}, s{sW}, 11", f"v_add_u32 v{vQw[0]}, s{sT}, v{vL16}", f"v_add_u32 v{vQw[1]}, 0x20000, v{vQw[0]}"]
    L += [f"s_mov_b32 s{sIt}, 0", f"s_add_u32 s{sPz}, s{sSo}, {(7 - npz) * PHS}"]
    G.place(PL(L) + job_init(), 32 * 22, 32 * 27 - 1)
    G.place(poll_kv(vPl), B2 + 32 * (chk_ph - 1) + pk, B2 + 32 * (chk_ph - 1) + pk + 15)
    L = []
    for q in range(64 + 8):
        def reg(x): return 128 + 16 * (x >> 3) + (x & 7)
        def ok(x): return 0 <= x < 64
        if ok(q):
            L += [f"v_mul_f32 v{reg(q) + 8}, v{reg(q)}, v{reg(q) + 8}", f"v_mul_f32 v{reg(q)}, s{sBst}, v{reg(q)}"]
        if ok(q - 1):
            L += [f"v_exp_f32 v{reg(q - 1)}, v{reg(q - 1)}"]
        if ok(q - 7) and (q - 7) & 1:
            x = q - 7
            L += [f"v_cvt_pk_bf16_f32 v{vH + (x >> 1)}, v{reg(x) + 7}, v{reg(x) + 8}"]
        if ok(q - 3):
            L += [f"v_add_f32 v{reg(q - 3)}, 1.0, v{reg(q - 3)}"]
        if ok(q - 6):
            L += [f"v_mul_f32 v{reg(q - 6) + 8}, v{reg(q - 6)}, v{reg(q - 6) + 8}"]
        if ok(q - 4):
            L += [f"v_rcp_f32 v{reg(q - 4)}, v{reg(q - 4)}"]
    fe = PL(L) if 'v' not in t2x else []
    t, t2, c = vT[3], vT[4], vT[5]
    L = [f"v_lshrrev_b32 v{t}, 6, v{vL16}", f"v_bfe_u32 v{t2}, v{t}, 1, 2", f"v_lshlrev_b32 v{t}, 7, v{t}",
         f"v_bfe_u32 v{c}, v{vL16}, 1, 5", f"v_add_u32 v{t}, v{t}, v{c}", f"s_lshl_b32 s{sT}, s{sWc}, 1",
         f"v_xor_b32 v{t2}, s{sT}, v{t2}", f"v_lshl_add_u32 v{vF2a[0]}, v{t2}, 5, v{t}", f"v_xor_b32 v{vF2a[1]}, 32, v{vF2a[0]}",
         f"v_add_u32 v{vF2a[2]}, 0x10000, v{vF2a[0]}", f"v_add_u32 v{vF2a[3]}, 0x10000, v{vF2a[1]}",
         f"s_lshl_b32 s{sT}, s{sW}, 10", f"s_add_u32 s{sT}, s{sT}, {3 * 16384}", f"v_add_u32 v{vHw[0]}, s{sT}, v{vL16}",
         f"v_add_u32 v{vHw[1]}, 0x10000, v{vHw[0]}", f"s_lshl_b32 s{sT}, s{sWr}, 16", f"s_add_u32 s{sT}, s{sT}, {3 * 16384}",
         f"v_add_u32 v{vHr}, s{sT}, v{vL16}",
         f"s_mov_b32 s{SWD}, s100", f"s_and_b32 s{SWD+1}, s101, 0xffff", f"s_mov_b32 s{SWD+2}, {1792 * 896}",
         f"s_mul_i32 s{sWd}, s{sHead}, {128 * 896}",
         f"s_mov_b32 s{SX}, s56", f"s_and_b32 s{SX+1}, s57, 0xffff", f"s_mov_b32 s{SX+2}, {2048 * 896}",
         f"s_mov_b32 s{SO}, s28", f"s_and_b32 s{SO+1}, s29, 0xffff", f"s_mov_b32 s{SO+2}, {2048 * 896}", f"s_mov_b32 s{SO+3}, 0x00020000",
         f"s_add_u32 s{sHp}, s{sHo}, {fdir * PHS}",
         f"s_lshl_b32 s{sT}, s{sHead}, 1", f"s_add_u32 s{sT}, s{sT}, s{sWr}", f"s_lshl_b32 s{sT}, s{sT}, 12",
         f"s_mul_i32 s{sRs}, s{sU}, {US}", f"s_add_u32 s{sRs}, s{sRs}, s{sT}", f"s_lshl_b32 s{sT}, s{sWc}, 17",
         f"s_add_u32 s{sRs}, s{sRs}, s{sT}", f"s_add_u32 s{sRf}, s{sRs}, {F_PF}",
         f"s_add_u32 s{sRs}, s{sRs}, {F_PS}",
         *([f"s_mov_b32 s{sRf}, {OOB}"] if 'f' in tx else []),
         f"s_lshl_b32 s{sFw}, s{sW}, 7", f"s_add_u32 s{sFw}, s{sFw}, s{sFl}", f"s_add_u32 s{sFw}, s{sFw}, 512",
         f"s_bfe_u32 s{sFp}, s{sHead}, 0x20001", f"s_lshl_b32 s{sFp}, s{sFp}, 7", f"s_lshl_b32 s{sT}, s{sU}, 10",
         f"s_add_u32 s{sFp}, s{sFp}, s{sT}", f"s_add_u32 s{sFp}, s{sFp}, {F_FL + 512}"]
    G.place(chains(PL(L)), 32 * 14, 32 * 22 - 1)
    G.place([P(f"ds_read_b128 {a(aH + 16 * rb4 + 4 * kk, 4)}, v{vHr} offset:{rb4 * 4096 + kk * 1024}") for kk in range(4) for rb4 in range(4)],
            32 * 27 + 2, 32 * 27 + 22)
    kvl = {1: [(0, 0)], 2: [(0, 1)], 4: [(1, 0)], 5: [(0, 2)], 6: [(1, 1)]}
    pend = []
    for n in range(7):
        b = B2 + 32 * n
        L = wd_dma(5) + wd_dma(6) if n == 0 else []
        pend += kvl.get(n, [])
        if n == chk_ph:
            L += spin_check(vPl, 1, poll_kv(vPl))
        if n >= chk_ph:
            for x in pend:
                L += kv_dma(*x)
            pend = []
        if n == 6:
            qr = [P(f"ds_read_b128 {a(aQ + 4 * k, 4)}, v{vQr} offset:{k * 1024}") for k in range(16)]
            G.place(flat([[qr[k]] + (phA[k][1] if k < LA else []) for k in range(16)]), b + 16, b + 31)
        G.place(L, b + 16, b + (44 if n < 6 else 31))
    G.place([maskchk(0)], B2 + 32 * 3, B2 + 32 * 4)

    def fdrain(n):
        L = []
        for rb4 in range(4):
            s_ = facc(n, rb4)
            d = s_ if n < 6 else vH + 16 + 4 * rb4
            L += [f"v_cvt_pk_bf16_f32 v{d + r}, v{s_ + 2 * r}, v{s_ + 2 * r + 1}" for r in range(4)]
            if n < fdir:
                L += fstore(v(d, 4), sHo, rb4, 1 if n < fdir - 1 else 7 - fdir)
            elif n < 6:
                L += [f"v_accvgpr_write_b32 a{aFP + 16 * (n - fdir) + 4 * rb4 + r}, v{d + r}" for r in range(4)]
        return PL(L)
    for n in range(6):
        G.place(fdrain(n), B2 + 32 * n + 34, B2 + 32 * n + 63)
    G.place(fe, 32 * 14, 32 * fe_end + 27)

    def find(it):
        return [g for g in range(len(G.items)) if any(x is it for _, _, x in G.items[g])][0] - 1
    for i in range(8):
        src = [x for x in fe if ('v', vH + 4 * i + 3) in x.wr and x.op.startswith('v_cvt')][0]
        lo = max(find(src) + 1, 32 * (24 if i < 4 else 25) + 2 + 4 * (i & 3))
        G.place([P(f"ds_write_b128 v{vHw[i >> 2]}, {v(vH + 4 * i, 4)} offset:{(i & 3) * 4096}", ('hx',))], lo, 32 * 27 - 1, even=False)
    L, chkl = [], []
    for n, (i, c) in enumerate([(i, c) for i in (1, 2, 3, 5, 6, 7, 0, 4) for c in range(2)]):
        e = 160 + 8 * (n % 8)
        blk = [f"v_accvgpr_read_b32 v{e + r}, a{16 * i + 8 * c + r}" for r in range(8)]
        blk += [f"v_pk_mul_f32 {v(e + 2 * r, 2)}, {v(e + 2 * r, 2)}, s[{sSc}:{sSc+1}]" for r in range(4)]
        blk += [f"v_cvt_pk_bf16_f32 v{e + r}, v{e + 2 * r}, v{e + 2 * r + 1}" for r in range(4)]
        blk = PL(blk) + [P(f"ds_write_b128 v{vQw[(i >> 1) & 1]}, {v(e, 4)} offset:{(i & 1) * 16384 + c * 8192 + (i >> 2) * 1024}", ('qx',))]
        chkl.append((i, blk[0], blk[-1]))
        L += blk
    G.place(L, 32 * 27 + 10, B2 + 32 * 6 + 10)
    for i, x, y in chkl:
        assert find(x) > 32 * 27 + 4 * i + 4 and (i & 3 or find(y) > B2 + 32 * 3 + 15), (i, find(x), find(y))
    if verbose:
        print("T2 over:", G.over(), [sum(max(0, G.cost(g) - 2) for g in range(32 * j + 1, 32 * j + 33)) for j in range(35)])
    p.add(G.out())

    def pv(tile, first=False, Pr=vP):
        L = []
        for db in range(16):
            rd = [P(f"ds_read_b128 {a(ring(db), 4)}, v{vL16} offset:{[2, 3, 0, 1][tile % 4] * 16384 + db * 1024}")]
            m = [P(f"{M16} {v(O(db, rb), 4)}, {a(ring(db), 4)}, {v(Pr + 4 * rb, 4)}, {'0' if first else v(O(db, rb), 4)}") for rb in range(2)]
            L.append((m, rd))
        return L

    WU = [8, 4, 6, 2, 0, 8, 4]

    def wphase(i):
        L = []
        for hb in range(2):
            for dk in range(8):
                for c in range(2):
                    n = 16 * hb + 2 * dk + c
                    u = WU[i] + (dk >> 2)
                    rd = [P(f"ds_read_b64_tr_b16 {a(ring(n) + 2 * h, 2)}, v{vWb + 4 * (u // 4) + 2 * hb + c} offset:{(u % 4) * 16384 + (dk & 3) * 4096 + 2048 * h}")
                          for h in range(2)]
                    m = []
                    for rb in range(2):
                        o = v(vS[hb] + 8 * rb + 4 * c, 4)
                        m.append(P(f"{M16} {o}, {a(ring(n), 4)}, {v(OB[dk] + 8 * rb, 4)}, {'0' if dk == 0 else o}"))
                    L.append((m, rd))
        return L

    def wo_dma(i):
        L = []
        for h in range(2):
            L += [P(f"s_add_u32 s{sT2}, s{sWo}, {i * 128 + h * 128 * 896}")]
            L += dma4(sWb, (WU[i] + h) * 16384, vDW, SWO, sT2, 0, (f"U{WU[i] + h}",))
        return L

    def emit(seg, nxt, bar_tags, streams, nm=""):
        main, pos, fx = [], [], []
        for m, r, *x in seg:
            if r:
                pos.append(len(main))
            if x:
                fx.append((len(main), x[0]))
            main += m
        G = Gaps(main)
        for sl, x in fx:
            for k, y in enumerate(x):
                G.at(sl + k, y)
        R = [e[1] for e in seg if e[1]]
        N = len(R)
        R2 = R + ([x[1] for x in nxt[:LA]] if nxt is not None else [])
        bp = None
        if nxt is not None:
            bp = pos[N - LA] - 1
            G.at(bp - 1, WaitTag(tuple(bar_tags)))
            G.at(bp, P("s_barrier"))
        for k in range(LA, len(R2)):
            for x in R2[k]:
                G.at(pos[k - LA], x)
        for k in range(WG, N + 1, WG):
            kk = min(k + WG - 1, len(R2) - 1)
            if kk >= k:
                sl = (pos[k] if k < N else len(main)) - 1
                if sl == bp:
                    sl -= 1
                G.at(sl, WaitTag(tuple(R2[kk][-1].wr)))
        for items, lo, hi in streams:
            if lo == 'sp':
                G.at(hi[0], items[0])
                for q in range(4):
                    G.at(hi[q], items[1 + q])
        for items, lo, hi in streams:
            if lo == 'sp':
                items, lo, hi = items[5:], hi[3] + 1, None
            lo = bp + 1 if lo == 'bar' else lo
            G.place(items, lo, len(main) - 1 if hi is None else hi)
        if verbose:
            print("phase", nm, "over", G.over())
        p.add(G.out())

    def ml_poll():
        return [P(f"buffer_load_dwordx4 {v(vML, 4)}, v{vL16}, s[{SWS}:{SWS+3}], s{sMl} offen sc1")]

    def xlane(op, R, T):
        return PL([f"v_permlane32_swap_b32 v{R[0]}, v{R[1]}", f"{op} v{R[0]}, v{R[0]}, v{R[1]}",
                   f"v_mov_b32 v{T}, v{R[0]}", f"v_permlane16_swap_b32 v{R[0]}, v{T}", f"{op} v{R[0]}, v{R[0]}, v{T}",
                   f"v_mov_b32 v{R[1]}, v{R[0]}", f"v_permlane32_swap_b32 v{R[0]}, v{R[1]}"])

    def rowmax(S):
        L = [f"v_max3_f32 v{vMx[rb]}, v{S + 8 * rb}, v{S + 8 * rb + 1}, v{S + 8 * rb + 2}" for rb in range(2)]
        for k in (3, 5):
            L += [f"v_max3_f32 v{vMx[rb]}, v{vMx[rb]}, v{S + 8 * rb + k}, v{S + 8 * rb + k + 1}" for rb in range(2)]
        L += [f"v_max_f32 v{vMx[rb]}, v{vMx[rb]}, v{S + 8 * rb + 7}" for rb in range(2)]
        return PL(L) + xlane("v_max_f32", vMx, vMx2[0])

    EO = [0, 1, 2, 3, 8, 9, 10, 11, 4, 5, 6, 7, 12, 13, 14, 15]

    def exps(S, sub=False, inplace=False):
        L, pend, cnt = [], [], [0, 0]
        def flush(n):
            while len(pend) > n:
                r = pend.pop(0)
                rb = r >> 3
                cnt[rb] += 1
                if cnt[rb] == 2:
                    L.append(f"v_add_f32 v{vPs[rb]}, v{vE + r - 1}, v{vE + r}")
                elif cnt[rb] > 2:
                    L.append(f"v_add_f32 v{vPs[rb]}, v{vPs[rb]}, v{vE + r}")
        for r in EO:
            if inplace:
                L.append(f"v_add_f32 v{S + r}, v{S + r}, v{vNegM[r >> 3]}")
            if sub:
                L += [f"v_sub_f32 v{vE + r}, v{S + r}, v{vMx[r >> 3]}", f"v_exp_f32 v{vE + r}, v{vE + r}"]
            else:
                L.append(f"v_exp_f32 v{vE + r}, v{S + r}")
            pend.append(r)
            flush(1)
        flush(0)
        return PL(L)

    def cvts(Pr=vP):
        return PL([f"v_cvt_pk_bf16_f32 v{Pr + r}, v{vE + 2 * r}, v{vE + 2 * r + 1}" for r in range(8)])

    def lsadd():
        return PL([f"v_add_f32 v{vLs[rb]}, v{vLs[rb]}, v{vPs[rb]}" for rb in range(2)])

    shared = {}
    def check(tile, has_qk, recvt=None, it=None):
        S, Sn = vS[tile % 2], vS[(tile + 1) % 2]
        blk = rowmax(S)
        for rb in range(2):
            blk += PL([f"v_max_f32 v{vMx[rb]}, 0, v{vMx[rb]}", f"v_exp_f32 v{vMx2[rb]}, -v{vMx[rb]}",
                       f"v_sub_f32 v{vNegM[rb]}, v{vNegM[rb]}, v{vMx[rb]}", f"v_mul_f32 v{vLs[rb]}, v{vLs[rb]}, v{vMx2[rb]}"])
        for dk in range(8):
            blk += PL([f"v_mul_f32 v{OB[dk] + r}, v{OB[dk] + r}, v{vMx2[r >> 3]}" for r in range(16)])
        if has_qk:
            for r in range(16):
                blk += PL([f"v_sub_f32 v{vC + r}, v{vC + r}, v{vMx[r >> 3]}", f"v_sub_f32 v{Sn + r}, v{Sn + r}, v{vMx[r >> 3]}"])
        blk += exps(S, sub=True)
        if recvt is not None:
            blk += cvts(recvt)
        if it is not None:
            if tile not in shared:
                shared[tile] = [Label(p.newlabel('rare'))] + blk + [P("s_waitcnt vmcnt(0)")]
                side.append(shared[tile])
            lr = p.newlabel('rarer')
            shared[tile] += PL([f"s_cmp_eq_u32 s{sIt}, {it}", f"s_cbranch_scc1 {lr}"] if it else [f"s_branch {lr}"])
            return [P(f"v_add_f32 v{vMx[0]}, v{vPs[0]}, v{vPs[1]}"),
                    Br(P(f"v_cmp_nge_f32 vcc, {THRESH}, v{vMx[0]}"), P(f"s_cbranch_vccnz {shared[tile][0].name}"), Label(lr))]
        return [P(f"v_add_f32 v{vMx[0]}, v{vPs[0]}, v{vPs[1]}"),
                sidecall(f"v_cmp_nge_f32 vcc, {THRESH}, v{vMx[0]}", blk, 'rare', 's_cbranch_vccnz')]

    def lin_io(op, reg, so, n, tags=()):
        L = [P(f"{op} {reg}, v{vL16}, s[{SWS}:{SWS+3}], s{so} offen offset:{(n & 3) * 1024}{qsm if 'store' in op else ' sc1'}", tags)]
        if n & 3 == 3:
            L.append(P(f"s_add_u32 s{so}, s{so}, 4096"))
        return L

    mark('att')
    lJob = p.newlabel('job')
    p.label(lJob)
    ph0 = qk(1, 0)
    qst = [lin_io("buffer_store_dwordx4", a(aQ + 4 * n, 4), sQo, n) for n in range(16)]
    emit(phA, ph0, ["U5"], [([maskchk(1)], 6, 20), (kv_dma(0, 3), 'bar', None), (fdrain(6), 2, 31), (flat(qst[:10]), 4, 31)], "A")

    mark('jA')
    def full(t, first=False):
        return pv(t - 1, first) + qk(t + 1, 16)
    ph1 = full(1, True)
    emit(ph0, ph1, ["U2", "U6"],
         [(flat(qst[10:]) + [P(f"s_mov_b32 s{sQo}, {OOB}")] + kv_dma(1, 2) + kv_dma(0, 4), 'bar', None),
          (rowmax(vS[0]) + PL([f"v_sub_f32 v{vNegM[rb]}, 0, v{vMx[rb]}" for rb in range(2)]) + exps(vS[0], sub=True) + lsadd() + cvts(), 1, 30)], "0")

    mark('j0')
    def hstore(i):
        return fstore(v(vH + 4 * i, 4), sHo, i & 3, int(i < 7))

    def std(t, first=False, pre=(), extra=(), it=None):
        sh = 0
        S = [([maskchk((t + 1) % 4, t >= 3)], 26 + sh, 31 + sh), (list(pre) + kv_dma(1, t + 2), vwin[0] + 3 * sh, vwin[1] + sh), (kv_dma(0, t + 4), 'bar', None)]
        if dsp and t >= 3:
            S[1:] = [(kv_dma(1, t + 2), 'sp', dsp[0]), (kv_dma(0, t + 4), 'sp', dsp[1])]
        if first:
            S.append((PL([f"v_mov_b32 v{vC + r}, v{vNegM[r >> 3]}" for r in range(16)]), 0, 25))
        ck = check(t, True, it=it)
        S += list(extra)
        S.insert(1, (exps(vS[t % 2], inplace=first) + ck[:1], 1, chk - 1 + sh))
        S.append((ck[1:], chk, chk + 4))
        S.append((lsadd() + cvts(), chk + 4, 62))
        if it:
            S += events(it, (t + 1) % 4)
        return S

    def btags(t):
        return [f"U{[2, 3, 0, 1][(t - 1) % 4]}", f"U{4 + (t + 1) % 4}"]

    emit(ph1, full(2), btags(2), std(1, first=True, extra=[(flat([hstore(i) for i in range(4, 5)]), 32, 63)]), "1")
    mark('j1')
    sig7 = sidecall(f"s_cmp_eq_u32 s{sW}, 0", signal2(128, vRWu[0]))
    emit(full(2), full(3), btags(3), std(2, pre=wo_dma(0), extra=[([sig7], 'bar', None), (flat([hstore(i) for i in range(5, 8)]), 20, 63)]), "2")
    mark('j2')
    lTail, lLoop = p.newlabel('tail'), p.newlabel('loop')
    p(f"s_cmp_eq_u32 s{sRem}, 0")
    p(f"s_cbranch_scc1 {lTail}")
    lC = [lLoop] + [p.newlabel('it') for _ in range(6)]
    lD = p.newlabel('disp')
    p(f"s_cmp_lg_u32 s{sIt}, 0")
    p(f"s_cbranch_scc1 {lD}")
    side.append(PL([Label(lD)] + [x for k in range(1, 5) for x in (f"s_cmp_eq_u32 s{sIt}, {k}", f"s_cbranch_scc1 {lC[k + 1]}")] + [f"s_branch {lC[6]}"]))
    for it in (1, 2, 3, 4, 5, 6, 0):
        if it == 0:
            p.raw(".p2align 6")
        p.label(lC[it])
        for t in (3, 4, 5, 6):
            ex = [(PL([f"s_sub_u32 s{sRem}, s{sRem}, 1", f"s_add_u32 s{sIt}, s{sIt}, 1"]), 0, 20)] if t == 3 else []
            emit(full(t), full(t + 1), btags(t + 1), ex + std(t, it=it), f"{it}.{t}")
        if it:
            p(f"s_cmp_eq_u32 s{sRem}, 0")
            p(f"s_cbranch_scc1 {lTail}")
    p(f"s_cmp_lg_u32 s{sRem}, 0")
    p(f"s_cbranch_scc1 {lLoop}")
    p.label(lTail)

    def lsum(): return xlane("v_add_f32", vLs, vMx2[0])

    def ocvt(dk, rb):
        b = OB[dk] + 8 * rb
        return PL([f"v_cvt_pk_bf16_f32 v{b + r}, v{b + 2 * r}, v{b + 2 * r + 1}" for r in range(4)])

    vP2 = vS[0]

    def phaseD(streams, nm):
        ck = check(3, False, vP2)
        emit(pv(2), pv(3, Pr=vP2), ["U1"], streams + [(exps(vS[1]) + cvts(vP2) + ck[:1] + [ck[1].cond], 1, 30)], nm)
        p.add([ck[1].br, ck[1].lab])

    def w_setup():
        t, t2, c = vML + 1, vML + 2, vML + 3
        L = [f"v_lshrrev_b32 v{t}, 6, v{vL16}", f"v_bfe_u32 v{t2}, v{t}, 1, 2", f"v_lshlrev_b32 v{t}, 7, v{t}",
             f"v_bfe_u32 v{c}, v{vL16}, 1, 5", f"v_add_u32 v{t}, v{t}, v{c}"]
        for nb in range(4):
            L += [f"v_xor_b32 v{c}, {nb}, v{t2}", f"v_lshl_add_u32 v{vWb + nb}, v{c}, 5, v{t}"]
        L += [f"v_add_u32 v{vWb + 8 + nb}, 0x20000, v{vWb + nb}" for nb in range(4)]
        L += [f"v_add_u32 v{vWb + 4 + nb}, 0x10000, v{vWb + nb}" for nb in range(4)]
        return PL(L)

    lFin, lPart, lM, lW = (p.newlabel(x) for x in ('fin', 'part', 'merge', 'wo'))
    p(f"s_cmp_lg_u32 s{sKind}, {HOLD}")
    p(f"s_cbranch_scc1 {lFin}")
    ql = PL([f"s_xor_b32 s{sOut}, s{sF}, 15", f"s_lshl_b32 s{sOut}, s{sOut}, 2", f"s_add_u32 s{sOut}, s{sOut}, s{sW}",
             f"s_lshl_b32 s{sOut}, s{sOut}, 14", f"s_add_u32 s{sOut}, s{sOut}, {F_Q}"])
    mark('h0')
    p.add(ql + lin(spin_check(vPl, 1, q_poll())))
    qld = [lin_io("buffer_load_dwordx4", a(aQ + 4 * n, 4), sOut, n) for n in range(16)]
    phaseD([(flat(qld[:qd]), 0, 20 if qd == 16 else 31)] + ([(kv_dma(1, 5), 'bar', None)] if qd == 16 else []), "Dh")
    mark('h1')
    def hold(dk):
        L = []
        for rb in range(2):
            L += ocvt(dk, rb) + PL([f"v_accvgpr_write_b32 a{aPO + 8 * dk + 4 * rb + r}, v{OB[dk] + 8 * rb + r}" for r in range(4)])
        return L
    S = [(lsadd() + lsum() + PL([f"v_rcp_f32 v{vInv[rb]}, v{vLs[rb]}" for rb in range(2)]) + job_init(), 0, 12),
         (PL([f"s_mov_b32 s{sKind}, {PART}", f"s_mov_b32 s{sMaskAt}, -1", f"s_sub_u32 s{sRem}, 6, s{sU}"]), 0, 12)]
    if qd < 16:
        S.insert(0, (flat(qld[qd:]) + kv_dma(1, 5), 0, 31))
    S += [(hold(dk), 4 * dk + 6, min(4 * dk + 11, 31)) for dk in range(7)]
    emit(pv(3, Pr=vP2), phA, ["U4"], S, "Eh")
    p.add(hold(7))
    mark('h2')
    p(f"s_branch {lJob}")
    p.label(lFin)
    mark('fin')
    W = [wphase(i) for i in range(7)]
    phaseD([(wo_dma(1), 0, 30), (w_setup() + ml_poll(), 0, 24)], "D")
    mark('d')
    p(f"s_cmp_eq_u32 s{sKind}, {MERGE}")
    p(f"s_cbranch_scc1 {lM}")
    p(f"s_cmp_eq_u32 s{sKind}, {PART}")
    p(f"s_cbranch_scc1 {lPart}")
    S = [(wo_dma(2), 0, 30), (lsadd() + lsum() + PL([f"v_rcp_f32 v{vInv[rb]}, v{vLs[rb]}" for rb in range(2)]), 0, 8)]
    S += [(ocvt(dk, 0) + ocvt(dk, 1), 4 * dk + 6, min(4 * dk + 11, 31)) for dk in range(6)]
    emit(pv(3, Pr=vP2), W[0], ["U8", "U9"], S, "Ef")
    p(f"s_branch {lW}")
    p.label(lPart)
    def postore(dk):
        L = []
        for rb in range(2):
            b = OB[dk] + 8 * rb
            L += ocvt(dk, rb) + lin_io("buffer_store_dwordx4", v(b, 4), sPo, 2 * dk + rb, ('po',))
        return L
    def unhold(dk):
        return PL([f"v_accvgpr_read_b32 v{OB[dk] + 8 * rb + r}, a{aPO + 8 * dk + 4 * rb + r}" for rb in range(2) for r in range(4)])
    S = [(lsadd() + lsum() + PL([f"v_mov_b32 v{vML + 2 * rb + k}, v{(vNegM, vLs)[k][rb]}" for rb in range(2) for k in range(2)]), 0, 8)]
    S += [(postore(dk), 4 * dk + 6, min(4 * dk + 9, 31)) for dk in range(7)]
    emit(pv(3, Pr=vP2), W[0], ["U8", "U9"], S, "Ep")
    p.add(postore(7))
    mark('ep')
    p.add(wo_dma(2))
    for dk in range(8):
        p.add(unhold(dk))
    lW1 = p.newlabel('wo1')

    def sout(hb, tags=()):
        S = vS[hb]
        tb = vE if hb else vC
        L = []
        for rb in range(2):
            L += [f"v_mul_f32 v{S + 8 * rb + r}, v{S + 8 * rb + r}, v{vInv[rb]}" for r in range(8)]
            L += [f"v_cvt_pk_bf16_f32 v{tb + 4 * rb + r}, v{S + 8 * rb + 2 * r}, v{S + 8 * rb + 2 * r + 1}" for r in range(4)]
            L.append(P(f"buffer_store_dwordx4 {v(tb + 4 * rb, 4)}, v{vStQ}, s[{SWS}:{SWS+3}], s{sSo} offen{smod}", tags))
            L.append(f"s_add_u32 s{sSo}, s{sSo}, 65536")
        return PL(L)

    def wemit(i, extra, tail=()):
        S = list(extra)
        if i <= 3:
            S.append((wo_dma(i + 3), 0, 62))
        if i > 0:
            S.append((sout(1, (f"s{i - 1}",)), 3, 31))
        S.append((sout(0), 35 + (len(tail[0][0]) if tail else 0), None))
        emit(W[i][:2] + list(tail[:1]) + W[i][2:20] + list(tail[1:]) + W[i][20:], W[i + 1] if i < 6 else None, [f"U{WU[i + 1]}", f"U{WU[i + 1] + 1}"] if i < 6 else [], S, f"W{i}")
    wemit(0, [([WaitTag(('po',)), P(f"buffer_store_dwordx4 {v(vML, 4)}, v{vL16}, s[{SWS}:{SWS+3}], s{sMl} offen sc1")], posig, 63)])
    mark('pw0')
    p(f"s_branch {lW1}")
    p.label(lM)
    ok, spin = p.newlabel('mok'), p.newlabel('mspin')
    p(f"s_mov_b32 s{sT2}, 0")
    p.label(spin)
    p(f"v_min_u32 v{vMx[0]}, v{vML + 1}, v{vML + 3}")
    p(f"v_cmp_eq_u32 vcc, 0, v{vMx[0]}")
    p(f"s_cbranch_vccz {ok}")
    p(f"s_add_u32 s{sT2}, s{sT2}, 1")
    p(f"s_cmp_gt_u32 s{sT2}, 0x40000")
    p(f"s_cbranch_scc1 {ok}")
    p("s_sleep 2")
    p.add(ml_poll())
    p(f"s_branch {spin}")
    p.label(ok)
    mark('mok')
    for n in range(16):
        p.add(lin_io("buffer_load_dwordx4", a(aPO + 4 * n, 4), sPo, n))
    idm = [([P(f"{M16} {v(O(db, rb), 4)}, {v(vI + 2 - 2 * (db & 1), 4)}, {a(aPO + 8 * (db >> 1) + 4 * rb, 4)}, {v(O(db, rb), 4)}")
             for rb in range(2)], []) for db in range(16)]
    vF = vMx
    L = lsadd() + lsum()
    for rb in range(2):
        L += PL([f"v_sub_f32 v{vF[rb]}, v{vML + 2 * rb}, v{vNegM[rb]}", f"v_min_f32 v{vF[rb]}, {f2u(60.0)}, v{vF[rb]}",
                 f"v_exp_f32 v{vF[rb]}, v{vF[rb]}"])
    L2 = []
    for rb in range(2):
        L2 += PL([f"v_fma_f32 v{vLs[rb]}, v{vLs[rb]}, v{vF[rb]}, v{vML + 2 * rb + 1}", f"v_rcp_f32 v{vInv[rb]}, v{vLs[rb]}"])
    t, lo, hi = vRWu[0], vPs[0], vPs[1]
    L3 = [f"s_lshl_b32 s{sT}, s{sW}, 4", f"v_subrev_u32 v{t}, s{sT}, v{vRW}", f"v_mov_b32 v{lo}, 0x3f80", f"v_mov_b32 v{hi}, 0x3f800000"]
    L3 += [f"v_mov_b32 v{vI + k}, 0" for k in (0, 1, 4, 5)]
    for k in range(2):
        L3 += [f"v_cmp_eq_u32 vcc, {2 * k}, v{t}", f"v_cndmask_b32 v{vI + 2 + k}, 0, v{lo}, vcc",
               f"v_cmp_eq_u32 vcc, {2 * k + 1}, v{t}", f"v_cndmask_b32 v{vI + 2 + k}, v{vI + 2 + k}, v{hi}, vcc"]
    S = [(wo_dma(2), 0, 60), (L + PL(L3), 0, 7)]
    for dk in range(8):
        S.append((PL([f"v_mul_f32 v{OB[dk] + r}, v{OB[dk] + r}, v{vF[r >> 3]}" for r in range(16)]), max(8 + 6 * dk, 4 * dk + 6), min(13 + 6 * dk, 30 + 4 * dk)))
    S.append((L2, 50, 63))
    S += [(ocvt(dk, 0) + ocvt(dk, 1), 38 + 4 * dk, min(43 + 4 * dk, 63)) for dk in range(6)]
    emit(pv(3, Pr=vP2) + idm, W[0], ["U8", "U9"], S, "Em")
    p.label(lW)
    mark('wo')
    wemit(0, [(ocvt(6, 0) + ocvt(6, 1) + ocvt(7, 0) + ocvt(7, 1), 3, 20)])
    p.label(lW1)
    def ch(dk, rb): return OB[dk] + 8 * rb + 4
    vSa, vSel = [ch(0, 0), ch(0, 1), ch(1, 0), ch(1, 1)], [24, 28]
    vX, vXo = [156, 158, 128, 130], 135
    sXo = sKend
    t, t2 = vRWu
    L = [f"s_lshl_b32 s{sXo}, s{sHead}, 1", f"s_add_u32 s{sXo}, s{sXo}, s{sWr}",
         f"s_lshl_b32 s{sT}, s{sU}, 5", f"s_add_u32 s{sXo}, s{sXo}, s{sT}", f"s_mul_i32 s{sXo}, s{sXo}, {4 * 896}",
         f"s_lshl_b32 s{sT}, s{sWc}, 6", f"s_add_u32 s{sXo}, s{sXo}, s{sT}",
         f"v_bfe_u32 v{t}, v{vL16}, 6, 2", f"v_mul_u32_u24 v{vXo}, 896, v{t}",
         f"v_bfe_u32 v{t}, v{vL16}, 9, 1", f"v_lshl_add_u32 v{vXo}, v{t}, 7, v{vXo}",
         f"v_bfe_u32 v{t}, v{vL16}, 8, 1", f"v_lshl_add_u32 v{vXo}, v{t}, 5, v{vXo}",
         f"v_bfe_u32 v{t}, v{vL16}, 4, 2", f"v_lshl_add_u32 v{vXo}, v{t}, 3, v{vXo}"]
    if 's' in tx:
        L.append(f"s_mov_b32 s{sRs}, {OOB}")
    def xio(op, reg, sr, m):
        x = P(f"{op} {v(reg, 2)}, v{vXo}, s[{sr}:{sr+3}], s{sXo} offen offset:{256 * m}")
        return [x] if m < 3 else [[P("s_mov_b32 exec_hi, 0"), x, P("s_mov_b32 exec_hi, -1")]]
    rs2 = PL(L) + [y for m in range(4) for y in xio("buffer_load_dwordx2", vX[m], SX, m)]
    def sreg(i, j): return 160 + 16 * i + 4 * j if i < 6 else 140 + 4 * j

    def rload(i, j):
        return P(f"buffer_load_dwordx4 {v(sreg(i, j), 4)}, v{vL16}, s[{SWS}:{SWS+3}], s{sT} offen offset:{j * 1024}{rmod}")

    def rbase(i): return P(f"s_add_u32 s{sT}, s{sRs}, {i * PHS}")

    def rmf(I):
        return [P(f"{M16} {v(vSa[i >> 1], 4)}, {v(vSel[i & 1], 4)}, {v(sreg(i, j), 4)}, {'0' if j == 0 and i & 1 == 0 else v(vSa[i >> 1], 4)}")
                for i in I for j in range(4)]

    def settle(I):
        top, redo, fb, ok = (p.newlabel(x) for x in ('st', 'sr', 'sf', 'so'))
        R = [sreg(i, j) + 2 for i in I for j in range(4)]
        p(f"s_mov_b32 s{sKnx}, 0")
        p.label(top)
        for n, r in enumerate(R):
            p(f"v_cmp_eq_u32 {'vcc' if n == 0 else f's[{sMk[n % 4]}:{sMk[n % 4]+1}]'}, v{vBig}, v{r}")
            if n >= 2:
                p(f"s_or_b64 vcc, vcc, s[{sMk[(n - 1) % 4]}:{sMk[(n - 1) % 4]+1}]")
        p(f"s_or_b64 vcc, vcc, s[{sMk[(len(R) - 1) % 4]}:{sMk[(len(R) - 1) % 4]+1}]")
        p(f"s_cbranch_scc1 {redo}")
        p.label(ok)
        B = [Label(redo), f"s_add_u32 s{sKnx}, s{sKnx}, 1", f"s_cmp_gt_u32 s{sKnx}, 400", f"s_cbranch_scc1 {fb}"] + ([f"s_sleep {rsleep}"] if rsleep else [])
        for i in I:
            B.append(rbase(i))
            for j in range(4):
                sk = p.newlabel('sk')
                B += [f"v_cmp_eq_u32 vcc, v{vBig}, v{sreg(i, j) + 2}", f"s_cbranch_vccz {sk}", "s_mov_b64 exec, vcc", rload(i, j),
                      "s_mov_b64 exec, -1", Label(sk)]
        B += ["s_waitcnt vmcnt(0)", f"s_branch {top}", Label(fb)] + w_poll(vPl) + lin(spin_check(vPl, 4, w_poll(vPl)))
        for i in I:
            B += [rbase(i)] + [rload(i, j) for j in range(4)]
        side.append(PL(B + ["s_waitcnt vmcnt(0)", f"s_branch {ok}"]))
    EX = {1: [], 2: [], 3: [], 4: [(rs2, 0, 63)], 5: [(sel_setup(vSel, t, t2), 0, 63)], 6: []}
    if npz or two:
        EX[fl[0]].insert(0, ([WaitTag((f"s{6 - npz - two}",)), wsignal(3, vMx[0])], fl[1], 63))
        EX[6].append((w_poll(vPl), pl6, 63))
    for i in range(1, 7):
        wemit(i, EX[i])
    p.add(sout(1, ("s6",)))
    mark('end')

    def sloads(I=range(7), bit=2 if npz else 4, mk='e0'):
        p.add(lin(spin_check(vPl, bit, w_poll(vPl))))
        mark(mk)
        for i in I:
            p.add([rbase(i)] + [rload(i, j) for j in range(4)])
    if npz:
        sloads()
    else:
        if two:
            sloads(range(7 - two), 2, 'ea')
        p.wait_tags("s6")
        p.add(wsignal(7, t))
        p.add(w_poll(vPl))
    vG, vXf, F = 64, 112, 32
    F = [OB[k >> 3] + 8 * ((k >> 2) & 1) + (k & 3) for k in range(16)]
    for m in range(4):
        for k in range(2):
            p.add([f"v_lshlrev_b32 v{vXf + 4 * m + 2 * k}, 16, v{vX[m] + k}", f"v_and_b32 v{vXf + 4 * m + 2 * k + 1}, 0xffff0000, v{vX[m] + k}"])
    p.wait_tags('fl')
    p.add([f"v_accvgpr_read_b32 v{F[k]}, a{aFA(0) + k}" for k in range(4 * ((27 - nring) >> 3) + 4)])
    for q in range(28 - nring, 28):
        d = v(F[4 * (q >> 3)], 4)
        p(f"{M16} {d}, {v(vSel[(q >> 2) & 1], 4)}, {a(aFL(q), 4)}, {d if q & 7 else '0'}")
    if not npz:
        sloads(range(7 - two, 7) if two else range(7))
    p.add([f"v_mul_f32 v{vG + k}, {f2u(-LOG2E)}, v{F[k]}" for k in range(16)])
    p.add([f"v_exp_f32 v{vG + k}, v{vG + k}" for k in range(16)])
    p.add([f"v_add_f32 v{vG + k}, 1.0, v{vG + k}" for k in range(16)])
    p.add([f"v_rcp_f32 v{vG + k}, v{vG + k}" for k in range(16)])
    p.add([f"v_mul_f32 v{vG + k}, v{vG + k}, v{F[k]}" for k in range(16)])
    if npz:
        p.wait_tags("s6")
        mark('e1')
        p.add(wsignal(7, t))

    def fin(m):
        p.add([f"v_fmac_f32 v{vXf + 4 * m + q}, v{vSa[m] + q}, v{vG + 4 * m + q}" for q in range(4)])
        p.add([f"v_cvt_pk_bf16_f32 v{vX[m] + k}, v{vXf + 4 * m + 2 * k}, v{vXf + 4 * m + 2 * k + 1}" for k in range(2)])
        p.add(xio("buffer_store_dwordx2", vX[m], SO, m))
    ne = 7 - npz
    p.add(rmf(range(ne)))
    for m in range(ne // 2 if npz else 4):
        fin(m)
    if npz:
        mark('e2')
        settle(range(ne, 7))
        mark('ok')
        p.add(rmf(range(ne, 7)))
        for m in range(ne // 2, 4):
            fin(m)
    stp.finish()
    p.label(done)
    p("s_endpgm")
    for b in side:
        p.add(b)
    return p
```

```python
from build9 import *
L = ' 32l2 33l2 40l2 41l2 42l2 43l2 50l2 51l2 52l2 53l2 60l2 61l2 62l2 63l2'
C = '10t 10s3 11s3 12s3 13s3 20u 21r 21f 30p 32c' + L
B = dict(verbose=False, posig=0, vmap=1, evs=C)
build("v6c.s", stamp=False, kw=dict(tmask=0xf8, tsh=3, **B))
build("v6d.s", stamp=False, kw=dict(tmask=0x78, tsh=2, **B))
build("v6e.s", stamp=False, kw=dict(tmask=0x78, **B))
build("v6f.s", stamp=False, kw=dict(tmask=0xf8, tsh=3, tlate=1, **B))
build("v6g.s", stamp=False, kw=dict(tmask=0x38, tlate=1, **B))
```

```python
from common import *


def ln_load(p, vLane, sW, R, sx=60, sid=2):
    srd(p, sx + 4, sx, 2048 * 896)
    p(f"s_lshl_b32 s{sx+2}, s{sid}, 2")
    p(f"s_add_u32 s{sx+2}, s{sx+2}, s{sW}")
    p(f"s_mul_i32 s{sx+3}, s{sx+2}, 1792")
    for r in range(8):
        p(f"v_mov_b32 v{R + r}, 0")
    p(f"v_lshlrev_b32 v{R + 8}, 4, v{vLane}")
    p(f"s_mov_b32 exec_hi, 0x00ffffff")
    p(f"buffer_load_dwordx4 {v(R, 4)}, v{R + 8}, s[{sx+4}:{sx+7}], s{sx+3} offen")
    p(f"buffer_load_dwordx4 {v(R + 4, 4)}, v{R + 8}, s[{sx+4}:{sx+7}], s{sx+3} offen offset:896")
    p(f"s_mov_b32 exec_hi, -1")


def wave_sum(p, regs, tmp):
    for mod in ("quad_perm:[1,0,3,2]", "quad_perm:[2,3,0,1]", "row_half_mirror", "row_mirror"):
        for r in regs:
            p(f"v_add_f32_dpp v{r}, v{r}, v{r} {mod} row_mask:0xf bank_mask:0xf")
    for op in ("v_permlane16_swap_b32", "v_permlane32_swap_b32"):
        for r, t in zip(regs, tmp):
            p(f"v_mov_b32 v{t}, v{r}")
        for r, t in zip(regs, tmp):
            p(f"{op} v{r}, v{t}")
        for r, t in zip(regs, tmp):
            p(f"v_add_f32 v{r}, v{r}, v{t}")


def ln_compute(p, vLane, R, sws, sx=60, rowmajor=False, scale=None):
    X = [R + 10, R + 18]
    Sm = [R + 26, R + 27]
    Tm = [R + 28, R + 29]
    D = [R + 30, R + 38]
    Q = [R + 46, R + 47]
    for j in range(2):
        for r in range(4):
            p(f"v_lshlrev_b32 v{X[j] + 2 * r}, 16, v{R + 4 * j + r}")
            p(f"v_and_b32 v{X[j] + 2 * r + 1}, 0xffff0000, v{R + 4 * j + r}")
    for j in range(2):
        p(f"v_add_f32 v{Sm[j]}, v{X[j]}, v{X[j] + 1}")
    for r in range(2, 8):
        for j in range(2):
            p(f"v_add_f32 v{Sm[j]}, v{Sm[j]}, v{X[j] + r}")
    wave_sum(p, Sm, Tm)
    for j in range(2):
        p(f"v_mul_f32 v{Sm[j]}, {f2u(1.0 / 448)}, v{Sm[j]}")
        p(f"v_mov_b32 v{Q[j]}, 0")
    p(f"s_mov_b32 exec_hi, 0x00ffffff")
    for r in range(8):
        for j in range(2):
            p(f"v_sub_f32 v{D[j] + r}, v{X[j] + r}, v{Sm[j]}")
        for j in range(2):
            p(f"v_fmac_f32 v{Q[j]}, v{D[j] + r}, v{D[j] + r}")
    p(f"s_mov_b32 exec_hi, -1")
    wave_sum(p, Q, Tm)
    def rbf(r):
        p(f"v_cvt_pk_bf16_f32 v{r}, v{r}, v{r}")
        p(f"v_lshlrev_b32 v{r}, 16, v{r}")
    for j in range(2):
        rbf(Sm[j])
        p(f"v_mul_f32 v{Q[j]}, {f2u(1.0 / 448)}, v{Q[j]}")
        rbf(Q[j])
        p(f"v_add_f32 v{Q[j]}, {f2u(1e-5)}, v{Q[j]}")
        rbf(Q[j])
        p(f"v_sqrt_f32 v{Q[j]}, v{Q[j]}")
        rbf(Q[j])
        p(f"v_rcp_f32 v{Q[j]}, v{Q[j]}")
    for j in range(2):
        for r in range(8):
            p(f"v_sub_f32 v{D[j] + r}, v{X[j] + r}, v{Sm[j]}")
        for r in range(4):
            p(f"v_cvt_pk_bf16_f32 v{X[j] + r}, v{D[j] + 2 * r}, v{D[j] + 2 * r + 1}")
        for r in range(4):
            p(f"v_lshlrev_b32 v{D[j] + 2 * r}, 16, v{X[j] + r}")
            p(f"v_and_b32 v{D[j] + 2 * r + 1}, 0xffff0000, v{X[j] + r}")
        for r in range(8):
            p(f"v_mul_f32 v{D[j] + r}, v{D[j] + r}, v{Q[j]}")
        for r in range(4):
            p(f"v_cvt_pk_bf16_f32 v{R + 4 * j + r}, v{D[j] + 2 * r}, v{D[j] + 2 * r + 1}")
    if scale:
        for j in range(2):
            for r in range(8):
                p(f"v_mul_f32 v{D[j] + r}, {f2u(scale)}, v{D[j] + r}")
            for r in range(4):
                p(f"v_cvt_pk_bf16_f32 v{X[j] + r}, v{D[j] + 2 * r}, v{D[j] + 2 * r + 1}")
        srd_off(p, sx + 4, sws, WS_XN - 2 * MB, XN_BYTES + 2 * MB)
        p(f"s_add_u32 s{sx+2}, s{sx+3}, {2 * MB}")
        p(f"s_mov_b32 exec_hi, 0x00ffffff")
        for j in range(2):
            p(f"buffer_store_dwordx4 {v(R + 4 * j, 4)}, v{R + 8}, s[{sx+4}:{sx+7}], s{sx+2} offen offset:{896 * j} sc1")
        for j in range(2):
            p(f"buffer_store_dwordx4 {v(X[j], 4)}, v{R + 8}, s[{sx+4}:{sx+7}], s{sx+3} offen offset:{896 * j} sc1")
        p(f"s_mov_b32 exec_hi, -1")
        return
    srd_off(p, sx + 4, sws, WS_XN, XN_BYTES)
    if rowmajor:
        p(f"s_mov_b32 exec_hi, 0x00ffffff")
        p(f"buffer_store_dwordx4 {v(R, 4)}, v{R + 8}, s[{sx+4}:{sx+7}], s{sx+3} offen sc1")
        p(f"buffer_store_dwordx4 {v(R + 4, 4)}, v{R + 8}, s[{sx+4}:{sx+7}], s{sx+3} offen offset:896 sc1")
        p(f"s_mov_b32 exec_hi, -1")
        return
    p(f"s_lshr_b32 s{sx+3}, s{sx+2}, 4")
    p(f"s_mul_i32 s{sx+3}, s{sx+3}, 28672")
    p(f"s_and_b32 s{sx+2}, s{sx+2}, 15")
    p(f"s_lshl_b32 s{sx+2}, s{sx+2}, 5")
    p(f"s_add_u32 s{sx+3}, s{sx+3}, s{sx+2}")
    p(f"v_lshlrev_b32 v{R + 8}, 9, v{vLane}")
    p(f"s_mov_b32 exec_hi, 0x00ffffff")
    p(f"buffer_store_dwordx4 {v(R, 4)}, v{R + 8}, s[{sx+4}:{sx+7}], s{sx+3} offen")
    p(f"buffer_store_dwordx4 {v(R + 4, 4)}, v{R + 8}, s[{sx+4}:{sx+7}], s{sx+3} offen offset:16")
    p(f"s_mov_b32 exec_hi, -1")


def gen_k1(name="kvproj_kernel", NW=4, dma_pos=None, rd_pos=None, stamp=False, ln=True, touch=0, stmod=""):
    p = Prog(name)
    assert NW in (4, 8)
    CB = 4
    WB = 4 if NW == 4 else 2
    NP = 64 // NW // 2
    NM = CB * WB
    vLane = 1
    vT = [2, 3, 4, 5, 6, 7]
    vA = [8, 9, 10, 11]
    vB = [12, 13]
    vDA = list(range(16, 16 + NP))
    vDB = list(range(24, 24 + NP))
    vSt = 14
    FR = 32
    fsz = (CB + WB) * 4
    def fC(st, i): return FR + st * fsz + i * 4
    def fW(st, j): return FR + st * fsz + CB * 4 + j * 4
    vE = FR + 2 * fsz
    def acc(ci, wi): return (ci * WB + wi) * 16
    sW, sWr, sWc, sRb, sHead, sIsV = 20, 21, 22, 23, 24, 25
    sA, sB, sM0, sKt, sT, sT2, sOut = 26, 27, 28, 29, 30, 31, 32
    sNA, sNB = 33, 34

    done = p.newlabel('done')
    p(f"s_cmp_ge_u32 s2, 256")
    p(f"s_cbranch_scc1 {done}")
    p("s_load_dwordx2 s[4:5], s[0:1], 8")
    p("s_load_dwordx4 s[36:39], s[0:1], 24")
    p("s_load_dwordx2 s[6:7], s[0:1], 96")
    p("s_load_dwordx2 s[60:61], s[0:1], 0")
    p("s_load_dwordx2 s[58:59], s[0:1], 96")
    stp = Stamps(p, stamp, 0)
    stp.start()
    p(f"v_and_b32 v{vLane}, 63, v0")
    p(f"v_lshrrev_b32 v{vT[0]}, 6, v0")
    p(f"v_readfirstlane_b32 s{sW}, v{vT[0]}")
    p(f"s_lshr_b32 s{sRb}, s2, 5")
    p(f"s_lshr_b32 s{sT}, s2, 3")
    p(f"s_and_b32 s{sT2}, s{sT}, 1")
    p(f"s_lshr_b32 s{sIsV}, s{sT}, 1")
    p(f"s_and_b32 s{sIsV}, s{sIsV}, 1")
    p(f"s_and_b32 s{sHead}, s2, 7")
    p(f"s_lshl_b32 s{sHead}, s{sHead}, 1")
    p(f"s_add_u32 s{sHead}, s{sHead}, s{sT2}")
    if NW == 4:
        p(f"s_lshr_b32 s{sWr}, s{sW}, 1")
        p(f"s_and_b32 s{sWc}, s{sW}, 1")
    else:
        p(f"s_lshr_b32 s{sWr}, s{sW}, 2")
        p(f"s_and_b32 s{sWc}, s{sW}, 3")
    i3, i7, i4 = vT[0], vT[1], vT[2]
    p(f"v_lshrrev_b32 v{i3}, 3, v{vLane}")
    p(f"v_and_b32 v{i7}, 7, v{vLane}")
    p(f"v_lshrrev_b32 v{i4}, 4, v{vLane}")
    p(f"s_lshl_b32 s{sT}, s{sW}, {14 + (3 if NP == 8 else 2)}")
    for q in range(NP):
        t = vT[3]
        p(f"v_add_u32 v{t}, {4 * (q & 1)}, v{i4}")
        p(f"v_xor_b32 v{t}, v{t}, v{i7}")
        p(f"v_lshlrev_b32 v{t}, 4, v{t}")
        p(f"v_lshl_add_u32 v{t}, v{i3}, 11, v{t}")
        p(f"v_add_u32 v{t}, s{sT}, v{t}")
        p(f"v_add_u32 v{vDA[q]}, {q * 16384 - (q & 3) * 1024}, v{t}")
    t, t2 = vT[3], vT[4]
    p(f"v_and_b32 v{t}, 2, v{i3}")
    p(f"v_lshlrev_b32 v{t}, 1, v{t}")
    p(f"v_xor_b32 v{t}, v{t}, v{i7}")
    p(f"v_lshlrev_b32 v{t}, 4, v{t}")
    p(f"v_lshl_add_u32 v{t}, v{i3}, 13, v{t}")
    if NW == 4:
        p(f"s_lshl_b32 s{sT}, s{sW}, 7")
    else:
        p(f"s_lshr_b32 s{sT}, s{sW}, 1")
        p(f"s_lshl_b32 s{sT}, s{sT}, 7")
        p(f"s_and_b32 s{sT2}, s{sW}, 1")
        p(f"s_lshl_b32 s{sT2}, s{sT2}, 18")
        p(f"s_add_u32 s{sT}, s{sT}, s{sT2}")
    p(f"v_add_u32 v{t}, s{sT}, v{t}")
    for q in range(NP):
        p(f"v_add_u32 v{vDB[q]}, {q * 65536 - (q & 3) * 1024}, v{t}")
    r, hf, f = vT[0], vT[1], vT[2]
    p(f"v_and_b32 v{r}, 31, v{vLane}")
    p(f"v_lshrrev_b32 v{hf}, 5, v{vLane}")
    p(f"v_bfe_u32 v{f}, v{vLane}, 1, 3")
    p(f"s_lshl_b32 s{sT}, s{sWr}, 14")
    for ks in range(4):
        t = vT[3]
        p(f"v_add_u32 v{t}, {2 * ks}, v{hf}")
        p(f"v_xor_b32 v{t}, v{t}, v{f}")
        p(f"v_lshlrev_b32 v{t}, 4, v{t}")
        p(f"v_lshl_add_u32 v{t}, v{r}, 7, v{t}")
        p(f"v_add_u32 v{vA[ks]}, s{sT}, v{t}")
    r4, g1, c = vT[0], vT[2], vT[3]
    p(f"v_bfe_u32 v{r4}, v{vLane}, 2, 2")
    p(f"v_bfe_u32 v{g1}, v{vLane}, 4, 1")
    p(f"v_and_b32 v{c}, 3, v{vLane}")
    t, t2 = vT[4], vT[5]
    p(f"v_lshl_add_u32 v{t}, v{hf}, 3, v{r4}")
    p(f"v_lshlrev_b32 v{t}, 7, v{t}")
    p(f"v_lshl_add_u32 v{t}, v{g1}, 5, v{t}")
    p(f"v_lshl_add_u32 v{t}, v{c}, 3, v{t}")
    p(f"s_lshl_b32 s{sT}, s{sWc}, {14 if NW == 4 else 13}")
    p(f"s_add_u32 s{sT}, s{sT}, 32768")
    p(f"v_add_u32 v{t}, s{sT}, v{t}")
    p(f"v_lshrrev_b32 v{t2}, 1, v{r4}")
    p(f"v_lshl_add_u32 v{vB[0]}, v{t2}, 6, v{t}")
    p(f"v_xor_b32 v{t2}, 1, v{t2}")
    p(f"v_lshl_add_u32 v{vB[1]}, v{t2}, 6, v{t}")
    p(f"v_lshlrev_b32 v{vSt}, 4, v{vLane}")
    if ln:
        assert NW == 4
        ln_load(p, vLane, sW, vE)
    srd(p, 8, 4, 4194304)
    p(f"s_cmp_eq_u32 s{sIsV}, 0")
    p(f"s_cselect_b32 s36, s36, s38")
    p(f"s_cselect_b32 s37, s37, s39")
    srd(p, 12, 36, 8388608)
    p(f"s_lshl_b32 s{sT}, s{sIsV}, 24")
    p(f"s_add_u32 s6, s6, s{sT}")
    p(f"s_addc_u32 s7, s7, 0")
    srd(p, 16, 6, KV_BYTES)
    p(f"s_lshl_b32 s{sA}, s{sRb}, 19")
    p(f"s_lshl_b32 s{sB}, s{sHead}, 9")
    p(f"s_lshl_b32 s{sM0}, s{sW}, {13 if NW == 4 else 12}")

    def dma_list(tag):
        L = []
        for op, vD, soff, srdn, reg in (('B', vDB, sB, 12, 32768), ('A', vDA, sA, 8, 0)):
            for q in range(NP):
                it = []
                if q % 4 == 0:
                    it.append(parse(f"s_add_u32 m0, s{sM0}, {reg + q * 1024}"))
                it.append(parse(f"buffer_load_dwordx4 v{vD[q]}, s[{srdn}:{srdn+3}], s{soff} offen "
                                f"offset:{(q & 3) * 1024} lds", tags=(tag,)))
                L.append(it)
        return L

    def next_tile():
        return [parse(f"s_add_u32 s{sA}, s{sA}, 128"), parse(f"s_add_u32 s{sB}, s{sB}, 524288"),
                parse(f"s_xor_b32 s{sM0}, s{sM0}, 0x10000")]

    def reads(st, ks):
        L = []
        cr = [parse(f"ds_read_b128 {v(fC(st, i), 4)}, v{vA[ks]} offset:{i * 4096}") for i in range(CB)]
        wr = []
        for j in range(WB):
            off = (j >> 1) * 8192 + ks * 2048
            wr.append([parse(f"ds_read_b64_tr_b16 {v(fW(st, j), 2)}, v{vB[j & 1]} offset:{off}"),
                       parse(f"ds_read_b64_tr_b16 {v(fW(st, j) + 2, 2)}, v{vB[j & 1]} offset:{off + 512}")])
        L.append(cr[0])
        for j in range(WB):
            L += wr[j]
        L += cr[1:]
        return L

    def toggle():
        return [parse(f"v_xor_b32 v{x}, 0x10000, v{x}") for x in vA + vB]

    ND = 2 * NP
    TOT = 4 * NM
    BAR = 3 * NM
    if dma_pos is None:
        dma_pos = [BAR + d * NM // ND for d in range(ND)]
    nlate = sum(1 for x in dma_pos if x >= BAR)
    for it in dma_list('t0'):
        p.add(it)
    p.add(next_tile())
    for it in dma_list('t1')[:nlate]:
        p.add(it)
    if touch:
        G = touch & 0xff
        p(f"s_lshl_b32 s{sT}, s2, 2")
        p(f"s_add_u32 s{sT}, s{sT}, s{sW}")
        p(f"v_lshlrev_b32 v{vT[0]}, {G}, v{vLane}")
        p(f"s_lshl_b32 s{sT2}, s{sT}, 12")
        n = max(1, 4096 >> (G + 6))
        if (4096 >> G) < 64:
            p(f"s_mov_b32 exec_hi, 0")
        for k in range(n):
            p(f"buffer_load_dword v{200 + k}, v{vT[0]}, s[8:11], s{sT2} offen")
            p(f"s_add_u32 s{sT2}, s{sT2}, {64 << G}")
        p(f"s_mov_b32 exec_hi, -1")
        if touch & 0x100:
            p(f"s_lshr_b32 s{sT2}, s2, 5")
            p(f"s_lshl_b32 s{sT2}, s{sT2}, 4")
            p(f"s_and_b32 s{sT}, s2, 15")
            p(f"s_add_u32 s{sT2}, s{sT2}, s{sT}")
            p(f"s_lshl_b32 s{sT2}, s{sT2}, 2")
            p(f"s_add_u32 s{sT2}, s{sT2}, s{sW}")
            p(f"s_lshl_b32 s{sT2}, s{sT2}, 14")
            for k in range(16384 >> (G + 6)):
                p(f"buffer_load_dword v{210 + k}, v{vT[0]}, s[12:15], s{sT2} offen")
                p(f"s_add_u32 s{sT2}, s{sT2}, {64 << G}")
    for i in range(NM * 16):
        p(f"v_accvgpr_write_b32 a{i}, 0")
    p(f"s_mov_b32 s{sKt}, 0")
    if ln:
        ln_compute(p, vLane, vE, 58)
    p.wait_tags('t0')
    p("s_barrier")
    stp.mark(0)
    p.add(reads(0, 0))
    lV = p.newlabel('vpath')
    lEp = p.newlabel('epi')
    p(f"s_cmp_lg_u32 s{sIsV}, 0")
    p(f"s_cbranch_scc1 {lV}")

    def loop(isV):
        lab = p.newlabel('loop')
        p.raw(".p2align 6")
        p.label(lab)
        mf = []
        for ks in range(4):
            st = ks & 1
            for i in range(CB):
                for j in range(WB):
                    c_, w_ = v(fC(st, i), 4), v(fW(st, j), 4)
                    x, y = (c_, w_) if isV else (w_, c_)
                    mf.append(parse(f"v_mfma_f32_32x32x16_bf16 {a(acc(i, j), 16)}, {x}, {y}, {a(acc(i, j), 16)}"))
        fill = []
        nr = CB + 2 * WB
        for ks in range(4):
            rl = reads((ks + 1) & 1, (ks + 1) & 3)
            for n, it in enumerate(rl):
                pos = ks * NM + (rd_pos[n] if rd_pos else (n * (NM - NM // 4)) // nr)
                if ks == 3 and n == 0:
                    pass
                fill.append((pos, it))
        pre = [WaitTag(('t1',)), parse("s_waitcnt lgkmcnt(0)"), parse("s_barrier")] + toggle() + next_tile()
        pre += [parse(f"s_cmp_lt_u32 s{sKt}, 14"), parse(f"s_cselect_b32 s10, s10, 0"),
                parse(f"s_cselect_b32 s14, s14, 0")]
        fill = [(BAR - 1, it) for it in pre] + fill
        dl = dma_list('t1')
        for d in range(ND):
            fill.append((dma_pos[d] % TOT, dl[d]))
        fill.sort(key=lambda x: x[0])
        p.add(interleave(mf, fill))
        p(f"s_add_u32 s{sKt}, s{sKt}, 1")
        p(f"s_cmp_lt_u32 s{sKt}, 16")
        p(f"s_cbranch_scc1 {lab}")

    def epilogue(isV):
        p(f"s_lshl_b32 s{sT}, s{sHead}, 6")
        p(f"s_lshl_b32 s{sT2}, s{sRb}, 3")
        p(f"s_add_u32 s{sT}, s{sT}, s{sT2}")
        p(f"s_lshl_b32 s{sT2}, s{sWr}, 2")
        p(f"s_add_u32 s{sT}, s{sT}, s{sT2}")
        p(f"s_lshl_b32 s{sOut}, s{sT}, 14")
        p(f"s_mul_i32 s{sT2}, s{sWc}, {WB * (1024 if isV else 2048)}")
        p(f"s_add_u32 s{sOut}, s{sOut}, s{sT2}")
        n = 0
        for ci in range(CB):
            for wi in range(WB):
                for half in range(2):
                    e = vE + (n % 4) * 12
                    n += 1
                    for r in range(8):
                        p(f"v_accvgpr_read_b32 v{e + 4 + r}, a{acc(ci, wi) + half * 8 + r}")
                    for r in range(4):
                        p(f"v_cvt_pk_bf16_f32 v{e + r}, v{e + 4 + 2 * r}, v{e + 5 + 2 * r}")
                    off = ci * 16384 + ((half * 8 + wi) * 1024 if isV else (2 * wi + half) * 1024)
                    p(f"s_add_u32 s{sT}, s{sOut}, {off & ~4095}")
                    p(f"buffer_store_dwordx4 {v(e, 4)}, v{vSt}, s[16:19], s{sT} offen offset:{off & 4095}{stmod}")

    loop(False)
    stp.mark(1)
    epilogue(False)
    p(f"s_branch {lEp}")
    p.label(lV)
    loop(True)
    stp.mark(1)
    epilogue(True)
    p.label(lEp)
    stp.finish()
    p.label(done)
    p("s_endpgm")
    return p


if __name__ == '__main__':
    import sys
    def mk(tag, NW, **kw):
        p = gen_k1(NW=NW, stamp=True, **kw)
        build_file(["; test K1"], [("kvproj_kernel", 256, 64 * NW, 131072)], [p], f"k1_{tag}.s")
    mk('4a', 4)
    mk('4b', 4, dma_pos=[48 + 2 * d for d in range(8)] + [2 * d for d in range(8)])
    mk('4c', 4, dma_pos=[48 + 3 * d for d in range(6)] + [2 + 3 * d for d in range(10)])
    mk('8a', 8)
    mk('8b', 8, dma_pos=[24 + 2 * d for d in range(4)] + [2 * d for d in range(4)])
```

```python
from common import *
from sched import *
from k1 import ln_load, ln_compute

M16 = "v_mfma_f32_16x16x32_bf16"
NEG_BIG = f2u(-1.0e30)
THRESH = f2u(2.0 ** 24)
OOB = 0x40000000
F_ML = 32 * MB
F_FL = 33 * MB
F_PO = 96 * MB
F_Q = 112 * MB
WS_SPAN = 128 * MB
F_PF = 38 * MB
F_PS = 66 * MB
PHS = 262144
US = 7 * PHS


class Col:
    def __init__(self): self.L = []
    def __call__(self, t, tags=()): self.L.append(P(t, tags))


def PL(L):
    return [P(x) if isinstance(x, str) else x for x in L]


def keys(kind, base, n):
    return [(kind, base + k) for k in range(n)]


def gen_kl(name="main_kernel", stamp=False, marks=('t1', 't2', 'att', 'fin', 'wo'), bar=1, wr0=2, wr_step=3, dma0=4, dma_step=7,
           st0=-1, st1=24, sig_k=26, LA=8, WG=4, chk=40, vwin=(2, 30), posig=0, verbose=True, nokv=False, t2x='', ctouch=True, wtouch=0, wmod=' nt', amod='', notch=False,
           fe_end=26, chk_ph=1, fdir=3, tx='', rmod=' sc1', kvmod=' sc1', xnmod=' sc1', rsleep=0, psleep=2,
           wdl=49, c2=1, tm0=0x38, ptch=0, pls=0, otch=0, omod='', tdel=(11, 6, 11, 13), tn=24, t2s=(), at0=0, wt0=0, et=0, eta=1, etw=16, lnp=32, lnf=1, peel=0, emw=1, mlp=25, xsc=0, fsp=0, fsl=2, fuse=10, mle=1, fw=6, fp0=26, fps=5, tmask=0x38, tsh=0, tlate=0, dsp=None, npz=0, two=0, pk=-16, fl=(6, 8), pl6=48, evs='10t 10s3 11s3 12s3 13s3 20u 21r 21f 30p 32c 32l2 33l2 40l2 41l2 42l2 43l2 50l2 51l2 52l2 53l2 60l2 61l2 62l2 63l2', ew=(2, 62), nring=14, qd=10, opx=0, vmap=1, krot=0, atouch=False, npre=2, lnh=50, smod=' sc1', fmod=' sc1', ksm=' sc1', fsm=' sc1', qsm=' sc1'):
    p = Prog(name)
    assert tn % 4 == 0 and all(d >= 40 or (16 + len(t2s) - d) * tn >= n for d, n in zip(tdel, (112, 112, 112, wdl)))
    stp = Stamps(p, stamp, 0)

    def mark(nm):
        if nm in marks:
            stp.mark(marks.index(nm))
    vDK, vLane = 0, 1
    vT = [2, 3, 4, 5, 6, 7]
    vA, vA0 = [8, 9], [28, 29]
    vB = [10, 11, 12, 13]
    vL16, vStQ = 14, 15
    vDA = list(range(16, 24))
    vDB = list(range(24, 28))
    vPoll, vI3 = 30, 31
    vB2 = [[30, 31], [8, 9]]
    FR = 32
    def fC(st, i): return FR + i * 4 + (4 * st if i == 7 else 0)
    def fW(st, j): return FR + 36 + st * 32 + j * 4
    def fW2(st, j): return FR + 36 + st * 16 + j * 4
    vE1 = 148
    vTch = 250
    def acc(isV, ci, wi):
        return 8 * (8 * (ci >> 1) + wi) + 4 * (ci & 1) if isV else 8 * (8 * (ci >> 1) + (wi & 6) + (ci & 1)) + 4 * (wi & 1)
    sTs, sEv, STT = 79 if t2s else 44, 7, 96
    sW, sWr, sWc, sRb, sHead, sIsV = 20, 21, 22, 23, 24, 25
    sA, sB, sMW, sKt, sT, sT2, sOut = 26, 27, 28, 29, 30, 31, 32
    sMA, sAr, sWA, sBst, sU, sC2, sF = 33, 34, 35, 40, 41, 42, 43
    sSc, sWb, sBf, sTo, sFl = 44, 76, 77, 78, 3
    SA, SB, SWS, SD, ST = 8, 12, 16, 48, 52
    SF, SWQ, SWO, SV = 52, 12, 8, 64
    sKind, sRem, sMaskAt, sKo, sVo, sKend, sKnx, sVend = 36, 37, 38, 39, 60, 61, 62, 63
    sVnx, sEnd2, sQo, sSo, sPo, sMl, sWo, sHo = 4, 5, 6, 7, 46, 47, 33, 34
    sMk = [52, 54, 72, 74]
    sPz = 27
    FULL, HOLD, MERGE, PART = 0, 1, 2, 3
    side = []
    done = p.newlabel('done')
    p(f"s_cmp_ge_u32 s2, 256")
    p(f"s_cbranch_scc1 {done}")
    p("s_load_dwordx4 s[60:63], s[0:1], 0")
    p("s_load_dwordx4 s[36:39], s[0:1], 24")
    p("s_load_dwordx4 s[56:59], s[0:1], 88")
    p("s_load_dwordx2 s[68:69], s[0:1], 16")
    p("s_load_dwordx4 s[72:75], s[0:1], 56")
    p("s_load_dwordx2 s[70:71], s[0:1], 40")
    p("s_load_dwordx2 s[100:101], s[0:1], 72")
    if ptch & 1:
        p(f"s_load_dwordx2 s[{STT}:{STT+1}], s[0:1], 80")
    stp.start()

    def code_touch(sr, tv, tid, tmask=tmask):
        if not ctouch:
            return []
        lp = p.newlabel('pc')
        return [[P(f"s_getpc_b64 s[{sr}:{sr+1}]"), Label(lp), P(f"s_sub_u32 s{sr}, s{sr}, {lp}-{name}"), P(f"s_subb_u32 s{sr+1}, s{sr+1}, 0")]] + \
            PL([f"s_and_b32 s{sr+1}, s{sr+1}, 0xffff", f"s_mov_b32 s{sr+2}, .Ltext_end-{name}", f"s_mov_b32 s{sr+3}, 0x00020000",
                f"s_and_b32 s{sT}, s2, {tmask}", f"s_lshl_b32 s{sT}, s{sT}, {12 - tsh}"] + tid +
               ([f"v_lshrrev_b32 v{tv}, {7 + tsh}, v{tv}", f"v_lshlrev_b32 v{tv}, 7, v{tv}"] if tsh else []) +
               [NT(f"buffer_load_dword v{tv}, v{tv}, s[{sr}:{sr+3}], s{sT} offen")])
    if not tlate and tm0 >= 0:
        p.add(code_touch(ST, 254, [f"v_lshlrev_b32 v254, 7, v0"], tm0))
    p(f"v_and_b32 v{vLane}, 63, v0")
    p(f"v_lshrrev_b32 v{vT[0]}, 6, v0")
    p(f"v_readfirstlane_b32 s{sW}, v{vT[0]}")
    p(f"s_lshr_b32 s{sU}, s2, 4")
    if vmap:
        p(f"s_and_b32 s{sRb}, s{sU}, 7")
        p(f"s_lshr_b32 s{sIsV}, s{sU}, 3")
        if vmap == 1:
            p(f"s_xor_b32 s{sIsV}, s{sIsV}, 1")
    else:
        p(f"s_lshr_b32 s{sRb}, s2, 5")
        p(f"s_and_b32 s{sIsV}, s{sU}, 1")
    p(f"s_bfe_u32 s{sT2}, s2, 0x10003")
    p(f"s_and_b32 s{sHead}, s2, 7")
    p(f"s_lshl_b32 s{sHead}, s{sHead}, 1")
    p(f"s_add_u32 s{sHead}, s{sHead}, s{sT2}")
    p(f"s_lshl_b32 s{sF}, s{sHead}, 4")
    p(f"s_add_u32 s{sF}, s{sF}, s{sU}")
    p(f"s_lshr_b32 s{sWr}, s{sW}, 1")
    p(f"s_and_b32 s{sWc}, s{sW}, 1")
    i7, i4 = vT[1], vT[2]

    def a_voffs(stride, dst):
        n = len(dst)
        L = [f"v_and_b32 v{i7}, 7, v{vLane}", f"v_lshrrev_b32 v{i4}, 4, v{vLane}",
             f"s_mul_i32 s{sT}, s{sW}, {8 * n * stride}",
             f"v_mul_u32_u24 v{vT[4]}, {stride}, v{vI3}", f"v_add_u32 v{vT[4]}, s{sT}, v{vT[4]}"]
        for par in range(2):
            t = vT[3]
            L += [f"v_add_u32 v{t}, {4 * par}, v{i4}", f"v_xor_b32 v{t}, v{t}, v{i7}",
                  f"v_lshl_add_u32 v{t}, v{t}, 4, v{vT[4]}"]
            for q in range(par, n, 2):
                L.append(f"v_add_u32 v{dst[q]}, {q * 8 * stride - (q & 3) * 1024}, v{t}")
        return PL(L)

    def w_voffs(scol, stride, dst):
        d = 8 * stride - 1024
        L = [f"v_and_b32 v{i7}, 7, v{vLane}", f"v_mul_u32_u24 v{vT[4]}, {stride}, v{vI3}",
             f"v_add_u32 v{vT[4]}, s{scol}, v{vT[4]}",
             f"v_and_b32 v{vT[3]}, 2, v{vI3}", f"v_xor_b32 v{vT[3]}, v{vT[3]}, v{i7}",
             f"v_lshl_add_u32 v{dst[0]}, v{vT[3]}, 4, v{vT[4]}",
             f"v_xor_b32 v{vT[3]}, 4, v{vT[3]}", f"v_lshl_add_u32 v{dst[1]}, v{vT[3]}, 4, v{vT[4]}",
             f"v_add_u32 v{dst[1]}, {d}, v{dst[1]}",
             f"v_add_u32 v{dst[2]}, {2 * d}, v{dst[0]}", f"v_add_u32 v{dst[3]}, {2 * d}, v{dst[1]}"]
        return PL(L)

    p(f"v_lshrrev_b32 v{vI3}, 3, v{vLane}")
    p.add(a_voffs(2048, vDA))
    p(f"s_lshl_b32 s{sC2}, s{sW}, 7")
    p.add(w_voffs(sC2, 8192, vDB))
    srd(p, SA, 62, 4194304)
    p(f"s_cmp_eq_u32 s{sIsV}, 0")
    p(f"s_cselect_b32 s36, s36, s38")
    p(f"s_cselect_b32 s37, s37, s39")
    srd(p, SB, 36, 8388608)
    p(f"s_lshl_b32 s{sA}, s{sRb}, 19")
    p(f"s_lshl_b32 s{sB}, s{sHead}, 9")
    if krot:
        p(f"s_and_b32 s{sT}, s2, 7" if krot == 1 else f"s_lshr_b32 s{sT}, s2, 5" if krot == 2 else f"s_bfe_u32 s{sT}, s2, 0x20003")
        p(f"s_lshl_b32 s{sT2}, s{sT}, {8 + (krot == 3)}")
        p(f"s_add_u32 s{sA}, s{sA}, s{sT2}")
        p(f"s_lshl_b32 s{sT2}, s{sT}, {20 + (krot == 3)}")
        p(f"s_add_u32 s{sB}, s{sB}, s{sT2}")
    p(f"s_lshl_b32 s{sMW}, s{sW}, 12")
    p(f"s_lshl_b32 s{sWb}, s{sW}, 12")
    p(f"s_lshl_b32 s{sWA}, s{sW}, 13")
    p(f"s_add_u32 s{sWA}, s{sWA}, 65536")
    p(f"s_mov_b32 s{sMA}, s{sWA}")

    def dma4(sm0, madd, voff, sr, so, inc, tags=(), mod="", qs=range(4)):
        L = [P(f"s_add_u32 m0, s{sm0}, {madd}")]
        for q in qs:
            L.append(P(f"buffer_load_dwordx4 v{voff[q]}, s[{sr}:{sr+3}], s{so} offen offset:{q * 1024}{mod} lds", tags))
        if inc:
            L.append(P(f"s_add_u32 s{so}, s{so}, {inc}"))
        return L

    def wrap(r, b): return [P(f"s_and_b32 s{r}, s{r}, {0xffffffff ^ (1 << b)}")] if krot else []
    def dmaW(add, tags=()): return dma4(sMW, add, vDB, SB, sB, 32 * 8192, tags, wmod) + wrap(sB, 23)
    def dmaA(half, tags=(), ma=0): return dma4(sMA, half * 4096 + ma, vDA[4 * half:], SA, sA, 128 if half else 0, tags, amod) + (wrap(sA, 11) if half else [])

    def early_touch(aoff):
        L = [f"v_lshlrev_b32 v253, 11, v0", f"s_and_b32 s{sT}, s{sHead}, 1", f"s_lshl1_add_u32 s{sT}, s{sIsV}, s{sT}",
             f"s_lshl_b32 s{sT}, s{sT}, 7", f"s_add_u32 s{sT}, s{sT}, s{sA}"]
        L += [NT(f"buffer_load_dword v255, v253, s[{SA}:{SA+3}], s{sT} offen offset:{aoff + 512 * k}") for k in range(eta)]
        if etw:
            L += [f"v_bfe_u32 v252, v0, {2 if etw == 16 else 3}, {4 if etw == 16 else 3}", f"v_and_b32 v251, 3, v0",
                  f"v_lshlrev_b32 v252, 13, v252", f"v_lshl_add_u32 v252, v251, 7, v252",
                  f"s_lshl2_add_u32 s{sT}, s{sRb}, s{sW}", f"s_mul_i32 s{sT}, s{sT}, {etw * 8192}", f"s_lshl_b32 s{sT2}, s{sHead}, 9",
                  f"s_add_u32 s{sT}, s{sT}, s{sT2}", f"s_add_u32 s{sT}, s{sT}, {64 * 8192}",
                  NT(f"buffer_load_dword v255, v252, s[{SB}:{SB+3}], s{sT} offen")]
        return PL(L)
    def lin_touch():
        L = [f"v_lshlrev_b32 v253, 6, v0"]
        if at0:
            L += [f"s_lshl_b32 s{sT}, s2, 14", NT(f"buffer_load_dword v255, v253, s[{SA}:{SA+3}], s{sT} offen")]
        if wt0:
            L += [f"s_and_b32 s{sT}, s2, 127", f"s_lshl_b32 s{sT}, s{sT}, {14 if wt0 == 1 else 15}", f"s_add_u32 s{sT}, s{sT}, {64 * 8192}"]
            L += [f"v_lshlrev_b32 v252, 7, v0"] if wt0 == 2 else []
            L += [NT(f"buffer_load_dword v255, v{253 if wt0 == 1 else 252}, s[{SB}:{SB+3}], s{sT} offen")]
        return PL(L)
    mark('d0')
    if at0 == 1:
        p.add(lin_touch())
    if et == 1:
        p.add(early_touch(128))
    if lnf:
        ln_load(p, vLane, sW, vE1, sid=sF)
    p.add(dmaW(0, ('p0',)))
    p.add(dmaA(0, ('p0',)))
    p.add(dmaA(1, ('p0',)))
    if at0 != 1 and (at0 or wt0):
        p.add(lin_touch())
    if et == 2:
        p.add(early_touch(0))
    if tlate == 1:
        p.add(code_touch(ST, 254, [f"v_lshlrev_b32 v254, 7, v0"]))
    if not lnf:
        ln_load(p, vLane, sW, vE1, sid=sF)
    p.add(dmaW(16384, ('p1',)))
    p(f"s_add_u32 s{sMA}, s{sMA}, 65536")
    def pre_dma():
        return [dmaA(0, ('p2',), -32768), dmaA(1, ('p2',), -32768), dmaW(32768, ('p2',)), dmaW(49152), dmaA(0)]
    p.add(pre_dma()[:npre])
    if tlate == 2:
        p.add(code_touch(ST, 254, [f"v_lshlrev_b32 v254, 7, v0"]))
    p(f"s_lshl_b32 s{sT}, s2, 2")
    p(f"s_add_u32 s{sT}, s{sT}, s{sW}")
    p(f"v_lshlrev_b32 v{vT[0]}, 6, v{vLane}")
    p(f"s_lshl_b32 s{sT2}, s{sT}, 12")
    if atouch:
        p.add(NT(f"buffer_load_dword v255, v{vT[0]}, s[{SA}:{SA+3}], s{sT2} offen"))
    if ptch & 1:
        p.add(PL([f"s_and_b32 s{STT+1}, s{STT+1}, 0xffff", f"s_mov_b32 s{STT+2}, {2048 * 896}", f"s_mov_b32 s{STT+3}, 0x00020000",
                  f"s_mul_i32 s{sT2}, s{sT}, 1792"]) + [NT(f"buffer_load_dword v255, off, s[{STT}:{STT+3}], s{sT2}")])
    if ptch & 2:
        srd(p, SWS, 58, WS_SPAN)
        p.add(PL([f"s_lshr_b32 s{sT}, s2, 3", f"s_lshl_b32 s{sT}, s{sT}, 2", f"s_add_u32 s{sT}, s{sT}, s{sW}",
                  f"s_lshl_b32 s{sT}, s{sT}, 20", f"v_lshlrev_b32 v{vT[0]}, {pls}, v{vLane}"]) +
              [NT(f"buffer_load_dword v255, v{vT[0]}, s[{SWS}:{SWS+3}], s{sT} offen")])
    mark('d1')
    if wtouch:
        p(f"v_lshrrev_b32 v{vT[0]}, 2, v{vLane}")
        p(f"v_and_b32 v{vT[1]}, 3, v{vLane}")
        p(f"v_lshlrev_b32 v{vT[0]}, 13, v{vT[0]}")
        p(f"v_lshl_add_u32 v{vT[0]}, v{vT[1]}, 7, v{vT[0]}")
        p(f"s_lshl_b32 s{sT}, s{sW}, 3")
        p(f"s_add_u32 s{sT}, s{sT}, s{sRb}")
        p(f"s_lshl_b32 s{sT}, s{sT}, 18")
        p(f"s_lshl_b32 s{sT2}, s{sHead}, 9")
        p(f"s_add_u32 s{sT}, s{sT}, s{sT2}")
        p.add(NT(f"buffer_load_dword v255, v{vT[0]}, s[{SB}:{SB+3}], s{sT} offen"))
        p(f"s_add_u32 s{sT}, s{sT}, {16 * 8192}")
        p.add(NT(f"buffer_load_dword v255, v{vT[0]}, s[{SB}:{SB+3}], s{sT} offen"))
    r, g, f = vT[0], vT[1], vT[2]
    p(f"v_and_b32 v{r}, 15, v{vLane}")
    p(f"v_lshrrev_b32 v{g}, 4, v{vLane}")
    p(f"v_bfe_u32 v{f}, v{vLane}, 1, 3")
    p(f"s_lshl_b32 s{sT}, s{sWr}, 14")
    p(f"s_add_u32 s{sT}, s{sT}, 65536")
    for ks in range(2):
        t = vT[3]
        p(f"v_add_u32 v{t}, {4 * ks}, v{g}")
        p(f"v_xor_b32 v{t}, v{t}, v{f}")
        p(f"v_lshlrev_b32 v{t}, 4, v{t}")
        p(f"v_lshl_add_u32 v{t}, v{r}, 7, v{t}")
        p(f"v_add_u32 v{vA0[ks]}, s{sT}, v{t}")
        p(f"v_mov_b32 v{vA[ks]}, v{vA0[ks]}")
    p(f"v_and_b32 v{vT[3]}, 3, v{r}")
    p(f"v_lshlrev_b32 v{vT[3]}, 6, v{vT[3]}")
    p(f"v_lshl_add_u32 v{vStQ}, v{g}, 4, v{vT[3]}")
    p(f"v_lshrrev_b32 v{vT[3]}, 2, v{r}")
    p(f"v_mul_u32_u24 v{vT[3]}, {4096 + 512}, v{vT[3]}")
    p(f"s_lshl_b32 s{sT}, s{sHead}, 8")
    p(f"v_xor_b32 v{vT[3]}, s{sT}, v{vT[3]}")
    p(f"v_add_u32 v{vStQ}, v{vStQ}, v{vT[3]}")
    p(f"v_lshlrev_b32 v{vL16}, 4, v{vLane}")
    r4, c = vT[0], vT[3]
    p(f"v_bfe_u32 v{r4}, v{vLane}, 2, 2")
    p(f"v_and_b32 v{c}, 3, v{vLane}")
    t, t2 = vT[4], vT[5]
    p(f"v_lshl_add_u32 v{t}, v{g}, 3, v{r4}")
    p(f"v_lshlrev_b32 v{t}, 7, v{t}")
    p(f"v_lshl_add_u32 v{t}, v{c}, 3, v{t}")
    p(f"s_lshl_b32 s{sT}, s{sWc}, 13")
    p(f"v_add_u32 v{t}, s{sT}, v{t}")
    p(f"v_lshrrev_b32 v{t2}, 1, v{r4}")
    p(f"v_and_b32 v{c}, 1, v{g}")
    p(f"v_lshl_add_u32 v{t2}, v{c}, 1, v{t2}")
    for nb in range(4):
        p(f"v_xor_b32 v{c}, {nb}, v{t2}")
        p(f"v_lshl_add_u32 v{vB[nb]}, v{c}, 5, v{t}")
    srd(p, SWS, 58, WS_SPAN)
    p(f"v_lshlrev_b32 v2, 4, v0")
    for k in range(4, 8):
        p(f"v_mov_b32 v{k}, 0")
    p(f"s_lshl_b32 s{sT}, s{sF}, 12")
    p(f"s_add_u32 s{sT}, s{sT}, {F_ML}")
    p(f"buffer_store_dwordx4 v[4:7], v2, s[{SWS}:{SWS+3}], s{sT} offen sc1")
    p(f"s_lshl_b32 s{sFl}, s{sF}, 10")
    p(f"s_add_u32 s{sFl}, s{sFl}, {F_FL}")
    p(f"v_and_b32 v2, 0x3f0, v2")
    p(f"buffer_store_dwordx4 v[4:7], v2, s[{SWS}:{SWS+3}], s{sFl} offen sc1")
    p(f"v_add_u32 v{vDK}, s{sWb}, v{vL16}")
    srd(p, SD, 56, 256)
    p("s_mov_b64 s[56:57], s[60:61]")
    p(f"s_mov_b32 s{sAr}, 0")
    p(f"s_mov_b32 s{sKt}, {2 if peel else 1}")
    p(f"s_cmp_eq_u32 s{sW}, 0")
    p(f"s_cselect_b32 s{sEv}, {4 if peel else 3}, 0")

    def ln_items():
        c = Col()
        ln_compute(c, vLane, vE1, 58, rowmajor=True, scale=LOG2E / 16 if xsc else None)
        G, cur = [], None
        for it in c.L:
            if it.text.startswith("s_mov_b32 exec_hi, 0x"):
                cur = []
            elif it.text.startswith("s_mov_b32 exec_hi, -1"):
                for k in range(0, len(cur), 4):
                    G.append([P("s_mov_b32 exec_hi, 0x00ffffff")] + cur[k:k + 4] + [P("s_mov_b32 exec_hi, -1")])
                cur = None
            elif cur is not None:
                cur.append(it)
            else:
                G.append(it)
        return chains(G)

    def cread(par, i):
        return P(f"ds_read_b128 {v(fC(par, i), 4)}, v{vA[par]} offset:{i * 2048}")

    def wreads(par):
        L = []
        for j in range(8):
            off = par * 16384 + (j >> 2) * 4096
            L += [P(f"ds_read_b64_tr_b16 {v(fW(par, j), 2)}, v{vB[j & 3]} offset:{off}"),
                  P(f"ds_read_b64_tr_b16 {v(fW(par, j) + 2, 2)}, v{vB[j & 3]} offset:{off + 512}")]
        return L

    def wunit(j): return 4 + (j + 2) % 6

    def cread2(j, i):
        return P(f"ds_read_b128 {v(fC(j & 1, i), 4)}, v{vA0[j & 1]} offset:{((j >> 1) % 4) * 16384 + i * 2048}")

    def wreads2(j):
        L = []
        u = wunit(j) - 4
        for jj in range(4):
            off = (u % 4) * 16384 + (jj >> 1) * 8192
            for h in range(2):
                L.append(P(f"ds_read_b64_tr_b16 {v(fW2(j & 1, jj) + 2 * h, 2)}, v{vB2[u // 4][jj & 1]} offset:{off + 512 * h}"))
        return L

    def dmaW2(j):
        if j < 14:
            return dma4(sWb, wunit(j) * 16384, vDA, SF, sBf, 32 * 3584, (f"X{j}",))
        return dma4(sWb, wunit(j) * 16384, vDB, SWQ, sB, 32 * 8192, (f"X{j}",))

    def dmaA2(s_, qs=range(4)):
        inc = (128 if s_ != 6 else -768 - 2 * MB * xsc) if 3 in qs else 0
        return dma4(sWb, (s_ % 4) * 16384, vDA[4:], SWS, sA, inc, (f"Y{s_}",), xnmod, qs)

    def advance():
        L = [f"s_add_u32 s{sMA}, s{sWA}, s{sAr}", f"s_add_u32 s{sAr}, s{sAr}, 32768",
             f"s_cmp_eq_u32 s{sAr}, 98304", f"s_cselect_b32 s{sAr}, 0, s{sAr}"]
        L2 = [f"v_add_u32 v{vA[k]}, s{sAr}, v{vA0[k]}" for k in range(2)]
        L2 += [f"v_xor_b32 v{x}, 0x8000, v{x}" for x in vB]
        return chains(PL(L)), PL(L2)

    def mf(par, isV, i, j, first=False):
        c_, w_ = v(fC(par, i), 4), v(fW(par, j), 4)
        x, y = (c_, w_) if (isV if not opx else opx == 1) else (w_, c_)
        d = a(acc(isV, i, j), 4)
        return P(f"{M16} {d}, {x}, {y}, {'0' if first else d}")

    def kstep(par, isV, first=False, vm=None, wt=(), dl=None, last=False, adv=True, fixed=(), pl=(), tag=None, pdl=()):
        G = Gaps([mf(par, isV, i, j, first) for i in range(8) for j in range(8)])
        if vm is not None:
            G.at(bar - 1, P(f"s_waitcnt vmcnt({vm}) lgkmcnt(0)"))
        else:
            G.at(bar - 1, WaitTag(tuple(wt) + tuple(keys('v', FR, 100))))
        G.at(bar, P("s_barrier"))
        if not last:
            wr_, cr = wreads(par ^ 1), (lambda i: cread(par ^ 1, i))
            G.at(62, WaitTag(keys('v', fC(par ^ 1, 0), 4) + keys('v', fW(par ^ 1, 0), 4 * bar)))
        else:
            wr_, cr = wreads2(0), (lambda i: cread2(0, i))
            G.at(63, WaitTag(keys('v', fC(0, 5), 4)))
        for n, it in enumerate(wr_):
            G.at(wr0 + n * wr_step, it)
        G.at(wr0 + 1, cr(7))
        for i in range(7):
            G.at(8 * i + 7, cr(i))
        if dl is None:
            dl = [dmaW(par * 16384, tag[0] if tag else ()) + ([P(f"s_xor_b32 s{sMW}, s{sMW}, 0x8000")] if par else []),
                  dmaA(par ^ 1, tag[1] if tag else ())]
        dl = list(pdl) + dl
        step = dma_step if len(dl) <= 2 else 58 // (4 * len(dl) - 1)
        d = 0
        for grp in dl:
            G.at(dma0 + d * step - 1, grp[0])
            for q in range(4):
                G.at(dma0 + (d + q) * step, grp[1 + q])
            for k, x in enumerate(grp[5:]):
                G.at(dma0 + (d + 3) * step + 1 + k, x)
            d += 4
        for sl, it in fixed:
            G.at(sl, it)
        if adv and par == 0:
            s_, v_ = advance()
            lo = max(40, dma0 + (d - 4) * step)
            G.place(s_, lo, max(55, lo + 5))
            G.place(v_, max(56, lo + 6), 63)
        for items, lo, hi in pl:
            G.place(items, lo, hi)
        p.add(G.out())

    def sidecall(cond, body, base='sd', br='s_cbranch_scc1'):
        lb, lr = p.newlabel(base), p.newlabel(base + 'r')
        side.append([Label(lb)] + body + [P(f"s_branch {lr}")])
        return Br(P(cond), P(f"{br} {lb}"), Label(lr))

    def brl(b): return [b.cond, b.br, b.lab]

    def signal(val, tmp):
        return PL([f"v_mov_b32 v{tmp}, {val}", f"s_mov_b64 exec, 1",
                   f"buffer_store_byte v{tmp}, off, s[{SD}:{SD+3}], s{sF} sc1", f"s_mov_b64 exec, -1"])

    def signal2(off, tmp):
        return PL([f"v_mov_b32 v{tmp}, 1", f"s_mov_b64 exec, 1",
                   f"buffer_store_dword v{tmp}, off, s[{SWS}:{SWS+3}], s{sFl} offset:{off} sc1", f"s_mov_b64 exec, -1"])

    def poll_xn(dst):
        return PL([f"v_lshrrev_b32 v{dst}, 2, v{vL16}", f"buffer_load_dword v{dst}, v{dst}, s[{SD}:{SD+3}], 0 offen sc1"])

    def poll_kv(dst):
        return PL([f"v_and_b32 v{dst}, 0xf0, v{vL16}", f"v_lshlrev_b32 v{dst}, 6, v{dst}", f"s_and_b32 s{sT}, s{sFl}, 0xffffc000",
                   f"buffer_load_dword v{dst}, v{dst}, s[{SWS}:{SWS+3}], s{sT} offen sc1"])

    def poll16(dst, srow, nt=False):
        ld = f"buffer_load_dword v{dst}, v{dst}, s[{SD}:{SD+3}], s{sT} offen sc1"
        return PL([f"v_bfe_u32 v{dst}, v{vL16}, 2, 4", f"s_lshl_b32 s{sT}, s{srow}, 4", NT(ld) if nt else ld])

    def spin_check(reg, mask, reissue):
        ok, spin, sp2 = p.newlabel('pok'), p.newlabel('spin'), p.newlabel('sp2')
        tst = [f"v_and_b32 v{reg}, {mask}, v{reg}", f"v_cmp_ne_u32 vcc, {mask}, v{reg}"]
        side.append(PL([Label(spin), f"s_mov_b32 s{sT2}, 0", Label(sp2), f"s_add_u32 s{sT2}, s{sT2}, 1",
                        f"s_cmp_gt_u32 s{sT2}, 0x40000", f"s_cbranch_scc1 {ok}", f"s_sleep {psleep}"] + reissue + tst +
                       [f"s_cbranch_vccnz {sp2}", f"s_branch {ok}"]))
        return [P(tst[0]), Br(P(tst[1]), P(f"s_cbranch_vccnz {spin}"), Label(ok))]

    def stag_spin(R, issue, test, onok=None):
        top, ok = p.newlabel('sg'), p.newlabel('sgo')
        p(f"s_mov_b32 s{sT2}, 0")
        p.label(top)
        for r in R:
            lk = p.newlabel('sgk') if onok else ok
            p.add(test(r) + [f"s_cbranch_vccz {lk}"] + issue(r))
            if onok:
                side.append(PL([Label(lk)] + onok(r) + [f"s_branch {ok}"]))
        p.add([f"s_add_u32 s{sT2}, s{sT2}, 1", f"s_cmp_lt_u32 s{sT2}, 0x20000", f"s_cbranch_scc1 {top}"])
        p.label(ok)

    def touch_setup():
        l1, l2, lj = (p.newlabel(x) for x in ('t1', 't2', 'tj'))
        t, t2 = vT[0], vT[1]
        sb, sLg, sRs = 46, sC2, sOut
        L = [f"s_cmp_ge_u32 s{sW}, 2", f"s_cbranch_scc1 {l2}",
             f"s_cmp_lg_u32 s{sW}, 0", f"s_cbranch_scc1 {l1}",
             f"s_mov_b64 s[{sb}:{sb+1}], s[68:69]",
             f"s_mul_i32 s{sT}, s{sU}, {28 * 8192}", f"s_lshl_b32 s{sT2}, s{sHead}, 9", f"s_add_u32 s{sT}, s{sT}, s{sT2}",
             f"s_mov_b32 s{STT+2}, {27 * 8192 + 512}", f"s_mov_b32 s{sLg}, 2", f"s_mov_b32 s{sRs}, 8192",
             f"s_mov_b32 s{sTs}, {tn // 4 * 8192}", f"s_mov_b32 s{sTo}, {-tdel[0]}", f"s_branch {lj}", Label(l1),
             f"s_cmp_eq_u32 s{sIsV}, 0", f"s_cselect_b64 s[{sb}:{sb+1}], s[72:73], s[74:75]",
             f"s_mul_i32 s{sT}, s{sRb}, {56 * 3584}", f"s_min_u32 s{sT2}, s{sHead}, 13",
             f"s_lshl_b32 s{sT2}, s{sT2}, 8", f"s_add_u32 s{sT}, s{sT}, s{sT2}",
             f"s_mov_b32 s{STT+2}, {55 * 3584 + 256}", f"s_mov_b32 s{sLg}, 1", f"s_mov_b32 s{sRs}, 3584",
             f"s_mov_b32 s{sTs}, {tn // 2 * 3584}", f"s_mov_b32 s{sTo}, {-tdel[1]}", f"s_branch {lj}", Label(l2),
             f"s_mov_b32 s{STT+2}, {112 * 128}", f"s_cmp_eq_u32 s{sW}, 2",
             f"s_cselect_b64 s[{sb}:{sb+1}], s[70:71], s[100:101]", f"s_cselect_b32 s{STT+2}, s{STT+2}, {wdl * 128}",
             f"s_cselect_b32 s{sTo}, {-tdel[2]}, {-tdel[3]}", f"s_mul_i32 s{sT}, s{sF}, s{STT+2}",
             *([f"s_cselect_b32 s{sT2}, 16, 14", f"s_cmp_lt_u32 s{sHead}, s{sT2}", f"s_cselect_b32 s{STT+2}, s{STT+2}, 0", f"s_cselect_b32 s{sT}, s{sT}, 0"] if wdl == 56 else []),
             f"s_mov_b32 s{sLg}, 0", f"s_mov_b32 s{sRs}, 128",
             f"s_mov_b32 s{sTs}, {tn * 128}", Label(lj),
             f"s_add_u32 s{STT}, s{sb}, s{sT}", f"s_addc_u32 s{STT+1}, s{sb+1}, 0", f"s_and_b32 s{STT+1}, s{STT+1}, 0xffff",
             f"s_mov_b32 s{STT+3}, 0x00020000", f"s_mul_i32 s{sTo}, s{sTs}, s{sTo}",
             f"v_mul_u32_u24 v{t}, {tn}, v{vLane}", f"v_lshrrev_b32 v{t}, 6, v{t}",
             f"v_lshrrev_b32 v{t2}, s{sLg}, v{t}", f"v_mul_u32_u24 v{vTch}, s{sRs}, v{t2}",
             f"v_lshlrev_b32 v{t2}, s{sLg}, v{t2}", f"v_sub_u32 v{t}, v{t}, v{t2}",
             f"v_lshl_add_u32 v{vTch}, v{t}, 7, v{vTch}"]
        return PL(L)

    def f_setup():
        L = [f"s_cmp_eq_u32 s{sWr}, 0", f"s_cselect_b32 s{SF}, s72, s74", f"s_cselect_b32 s{SF+1}, s73, s75",
             f"s_and_b32 s{SF+1}, s{SF+1}, 0xffff", f"s_cmp_lt_u32 s{sHead}, 14",
             f"s_cselect_b32 s{SF+2}, {448 * 3584}, 0", f"s_mov_b32 s{SF+3}, 0x00020000",
             f"s_lshl_b32 s{sBf}, s{sHead}, 8", f"s_lshl_b32 s{sC2}, s{sWc}, 7"]
        return chains(PL(L) + w_voffs(sC2, 3584, vDA))

    def job_setup():
        hb = sC2
        L = [f"s_lshl_b32 s{hb}, s{sHead}, 20", f"s_add_u32 s{sT}, s{sU}, 1", f"s_lshl_b32 s{sT}, s{sT}, 16",
             f"s_add_u32 s{sKend}, s{hb}, s{sT}", f"s_sub_u32 s{sT2}, s{sKend}, {36 * 16384}",
             f"s_mov_b32 s{sMaskAt}, 0", f"s_xor_b32 s{sT}, s{sF}, 15",
             f"s_lshl_b32 s{sQo}, s{sF}, 16", f"s_add_u32 s{sQo}, s{sQo}, {F_Q}",
             f"s_cmp_ge_u32 s{sU}, 9", f"s_cselect_b32 s{sKind}, {MERGE}, {FULL}", f"s_cselect_b32 s{sRem}, 8, s{sU}",
             f"s_cselect_b32 s{sKo}, s{sT2}, s{hb}", f"s_cselect_b32 s{sPo}, s{sT}, s{sF}",
             f"s_cselect_b32 s{sQo}, s{sQo}, {OOB}",
             f"s_sub_u32 s{sT}, 7, s{sU}", f"s_lshl_b32 s{sT}, s{sT}, 16", f"s_add_u32 s{sEnd2}, s{hb}, s{sT}",
             f"s_cmp_le_u32 s{sU}, 6", f"s_cselect_b32 s{sKind}, {HOLD}, s{sKind}", f"s_cselect_b32 s{sKnx}, s{hb}, {OOB}",
             f"s_mov_b32 s{sVo}, s{sKo}", f"s_mov_b32 s{sVend}, s{sKend}", f"s_mov_b32 s{sVnx}, s{sKnx}",
             f"s_lshl_b32 s{sT}, s{sW}, 14", f"s_add_u32 s{sQo}, s{sQo}, s{sT}",
             f"s_lshl_b32 s{sPo}, s{sPo}, 2", f"s_add_u32 s{sPo}, s{sPo}, s{sW}",
             f"s_lshl_b32 s{sMl}, s{sPo}, 10", f"s_add_u32 s{sMl}, s{sMl}, {F_ML}",
             f"s_lshl_b32 s{sPo}, s{sPo}, 14", f"s_add_u32 s{sPo}, s{sPo}, {F_PO}",
             f"s_mul_i32 s{sSo}, s{sU}, {US}",
             f"s_lshl_b32 s{sT}, s{sW}, 14", f"s_add_u32 s{sSo}, s{sSo}, s{sT}", f"s_add_u32 s{sSo}, s{sSo}, {F_PS + (OOB if 'S' in tx else 0)}",
             f"s_add_u32 s{SV}, s58, {WS_V}", f"s_addc_u32 s{SV+1}, s59, 0", f"s_and_b32 s{SV+1}, s{SV+1}, 0xffff",
             f"s_mov_b32 s{SV+2}, {KV_BYTES}", f"s_mov_b32 s{SV+3}, 0x00020000"]
        return chains(PL(L))

    def out_setup():
        L = [f"s_lshl_b32 s{sT}, s{sHead}, 6", f"s_lshl_b32 s{sT2}, s{sRb}, 3", f"s_add_u32 s{sT}, s{sT}, s{sT2}",
             f"s_lshl_b32 s{sT2}, s{sWr}, 2", f"s_add_u32 s{sT}, s{sT}, s{sT2}", f"s_lshl_b32 s{sOut}, s{sT}, 14",
             f"s_lshl_b32 s{sT2}, s{sWc}, 13", f"s_add_u32 s{sOut}, s{sOut}, s{sT2}",
             f"s_lshl_b32 s{sT2}, s{sIsV}, 24", f"s_add_u32 s{sOut}, s{sOut}, s{sT2}",
             *([f"s_mov_b32 s{sOut}, {OOB}"] if nokv else []),
             f"s_mov_b32 s{SWQ}, s68", f"s_and_b32 s{SWQ+1}, s69, 0xffff", f"s_mov_b32 s{SWQ+2}, {448 * 8192}",
             f"s_lshl_b32 s{sB}, s{sHead}, 9",
             f"s_mov_b32 s{SWO}, s70", f"s_and_b32 s{SWO+1}, s71, 0xffff", f"s_mov_b32 s{SWO+2}, {4096 * 896}",
             f"s_mul_i32 s{sWo}, s{sHead}, {256 * 896}",
             f"s_mul_i32 s{sHo}, s{sU}, {US}", f"s_lshl_b32 s{sT}, s{sWr}, 16", f"s_add_u32 s{sHo}, s{sHo}, s{sT}",
             f"s_lshl_b32 s{sT}, s{sWc}, 17", f"s_add_u32 s{sHo}, s{sHo}, s{sT}", f"s_add_u32 s{sHo}, s{sHo}, {F_PF}",
             f"s_cmp_lt_u32 s{sHead}, {0 if 'h' in tx else 14}", f"s_cselect_b32 s{sHo}, s{sHo}, {OOB}",
             f"s_mov_b32 s{sSc}, {f2u(LOG2E / 16)}", f"s_mov_b32 s{sSc+1}, {f2u(LOG2E / 16)}",
             f"s_mov_b32 s{sBst}, {f2u(-LOG2E)}"]
        return chains(PL(L))

    def rd2_setup():
        L = [f"s_add_u32 s{sT}, s{sWA}, 0", f"s_lshl_b32 s{sT}, s{sWr}, 14", f"s_add_u32 s{sT}, s{sT}, 65536"]
        L += [f"v_subrev_u32 v{vA0[k]}, s{sT}, v{vA0[k]}" for k in range(2)]
        L += [f"s_lshl_b32 s{sT}, s{sWr}, 12", f"s_lshl_b32 s{sT2}, s{sWc}, 13", f"s_sub_u32 s{sT}, s{sT}, s{sT2}",
              f"s_add_u32 s{sT}, s{sT}, {65536 - 0x8000}", f"s_cmp_lg_u32 s{sWc}, 0", f"s_cselect_b64 vcc, -1, 0"]
        for k in range(2):
            L += [f"v_cndmask_b32 v{vB2[0][k]}, v{vB[k]}, v{vB[2 + k]}, vcc", f"v_add_u32 v{vB2[0][k]}, s{sT}, v{vB2[0][k]}"]
        return chains(PL(L[1:]))

    STK = {sn: k for k, sn in spread(list(range(32)), st0, st1)}
    def kvstore(sn, data):
        L = [P(f"buffer_store_dwordx4 {data}, v{vL16}, s[{SWS}:{SWS+3}], s{sOut} offen offset:{(sn & 3) * 1024}{ksm}", ('kv',))]
        if sn & 3 == 3:
            L.append(P(f"s_add_u32 s{sOut}, s{sOut}, {12288 if sn & 4 else 4096}"))
        return L

    def unit(sn, T, direct):
        L = [P(f"v_accvgpr_read_b32 v{T + r}, a{8 * sn + r}") for r in range(8)]
        L += [P(f"v_cvt_pk_bf16_f32 v{T + r}, v{T + 2 * r}, v{T + 2 * r + 1}") for r in range(4)]
        if direct:
            return L + kvstore(sn, v(T, 4))
        return L + [P(f"v_accvgpr_write_b32 a{8 * sn + r}, v{T + r}") for r in range(4)]

    p.add(touch_setup())
    mark('d2')
    nl0 = len(ln_items()) * lnp // 100
    for x in ln_items()[:nl0]:
        p.add(x.ops if isinstance(x, Chain) else x)
    p.wait_tags('p0')
    p("s_barrier")
    mark('p')
    p.add([cread(0, 0)] + wreads(0) + [cread(0, i) for i in range(1, 8)])
    lV, lT2 = p.newlabel('vpath'), p.newlabel('t2')
    p(f"s_cmp_lg_u32 s{sIsV}, 0")
    p(f"s_cbranch_scc1 {lV}")

    def tid128(r):
        return [f"v_lshlrev_b32 v{r}, 3, v{vL16}", f"s_lshl_b32 s{sT2}, s{sW}, 13", f"v_add_u32 v{r}, s{sT2}, v{r}"]

    def tile1(isV):
        G = ln_items()[nl0:]
        h = len(G) * lnh // 100
        def tch(): return [(bar + 1, NT(f"buffer_load_dword v255, v{vTch}, s[{STT}:{STT+3}], s{sTo} offen")), (9, P(f"s_add_u32 s{sTo}, s{sTo}, s{sTs}"))]
        if peel:
            h = [len(G) * x // 100 for x in peel]
            kstep(0, isV, first=True, wt=('p1',), pl=[(G[:h[0]], 8, 63)], pdl=pre_dma()[npre:])
            kstep(1, isV, wt=('p2',), pl=[(G[h[0]:h[1]], 0, 63)])
            kstep(0, isV, vm=17, fixed=tch(), pl=[(G[h[1]:h[2]], 2, 63)])
            kstep(1, isV, vm=17, pl=[(G[h[2]:], 2, 63)])
        else:
            kstep(0, isV, first=True, wt=('p1',), pl=[(G[:h], 8, 63)], pdl=pre_dma()[npre:])
            mark('k1')
            kstep(1, isV, wt=('p2',), pl=[(G[h:], 0, 63)])
        mark('k2')
        lab = p.newlabel('loop')
        p.raw(".p2align 6")
        p.label(lab)
        if stamp and 'km' in marks:
            r_ = stp.sb + 6 + 2 * marks.index('km')
            p.add(brl(sidecall(f"s_cmp_eq_u32 s{sKt}, 6", [P(f"{stp.op} s[{r_}:{r_+1}]"), P("s_waitcnt lgkmcnt(0)")])))
        ev0 = sidecall(f"s_cmp_eq_u32 s{sKt}, s{sEv}", signal(1, vT[0]))
        kstep(0, isV, vm=17, fixed=tch(), pl=[([ev0], 6, 20)])
        kstep(1, isV, vm=17, fixed=[(58, P(f"s_add_u32 s{sKt}, s{sKt}, 1")), (61, P(f"s_cmp_lt_u32 s{sKt}, 12"))])
        p(f"s_cbranch_scc1 {lab}")
        mark('k24')
        def tg(k): return ((f"W{k + 4}",), (f"A{(k + 5) // 2}",))
        kstep(0, isV, vm=16, tag=tg(24), fixed=tch(), pl=[(poll_xn(vPoll), 6, 20), (job_setup(), 21, 63)])
        kstep(1, isV, vm=17, tag=tg(25), fixed=tch(), pl=[(code_touch(ST, 254, tid128(254)) if c2 else [], 30, 63)])
        kstep(0, isV, vm=17 + (ctouch and c2), tag=tg(26), fixed=tch(), pl=[(f_setup(), 2, 60)])
        xs = PL([f"s_mul_i32 s{sA}, s{sU}, {128 * 896}", f"s_add_u32 s{sA}, s{sA}, {WS_XN}"])
        kstep(1, isV, wt=("W28", "A14"), dl=[dmaW(16384, ("W31",)), dmaW2(0)], fixed=tch(),
              pl=[(spin_check(vPoll, 0x01010101, poll_xn(vPoll)) + xs + a_voffs(896, vDA[4:]), 2, 60)])
        kstep(0, isV, wt=("W29",), dl=[dmaA2(0), dmaW2(1)], fixed=tch() + [(2, P("s_load_dwordx2 s[28:29], s[0:1], 80"))])
        kstep(1, isV, wt=("W30", "A15"), dl=[dmaA2(1), dmaW2(2)], pl=[(rd2_setup(), 2, 60)])
        kstep(0, isV, wt=("W31",), dl=[dmaA2(2), dmaW2(3)], adv=False, pl=[(out_setup(), 2, 60)])
        early = []
        for n, sn in enumerate([s_ for s_ in range(32) if STK[s_] < 0]):
            early += unit(sn, 232 + 8 * (n % 3), True)
        w2 = PL([f"v_add_u32 v{vB2[1][k]}, 65536, v{vB2[0][k]}" for k in range(2)])
        kstep(1, isV, wt=("X0", "Y0"), dl=[dmaA2(3), dmaW2(4), dmaW2(5)], last=True, pl=[(w2, 2, 10), (early, 18, 63)])

    tile1(False)
    p(f"s_branch {lT2}")
    p.label(lV)
    tile1(True)
    p.label(lT2)
    mark('t1')
    vMx, vMx2, vRWu = [2, 3], [4, 5], [6, 7]
    vPs = [8, 9]
    vDW = [10, 11, 12, 13]
    vL16h, vRW, vBig, vQr = 16, 17, 18, 19
    vNegM, vLs = [20, 21], [22, 23]
    vQw = [24, 25]
    vPl = vLane
    vP, vE, vS, vC = 24, 48, [64, 80], 112
    OB = [32, 96, 160, 176, 192, 208, 224, 240]
    def O(db, rb): return OB[db >> 1] + 8 * rb + 4 * (db & 1)
    vH = 128
    vML, vInv, vStS1, vI, vWb = 128, [132, 133], 134, 136, 144
    aQ, aR, aPO = 0, 64, 128
    aH, aFP = 128, 192
    vF2a, vHw, vHr, vF2r = [100, 101, 102, 103], [104, 105], 106, 224
    sSide, sFst, sHp, sFw, sFp, sWd = 100, 101, 23, 25, 35, 77
    SWD, SX, SO, SPZ = 52, 48, 68, 56
    sIt, sRf, sRs = 26, 28, 29
    vLs8, vLo, vFp = 136, [134, 135], 131
    def aFL(q): return 192 + 4 * (q % nring)
    def aFA(m): return 192 + 4 * nring + 4 * m
    EV = [(int(x[0]), int(x[1]), x[2], int(x[3:] or 0)) for x in evs.split()]
    assert sum(x[3] for x in EV if x[2] == 's') == 4 * (6 - fdir) and sum(x[3] for x in EV if x[2] == 'l') == 28
    assert npz == 0 and aFA((27 - nring) >> 3) <= 252
    ps = {k: [4 * x[0] + x[1] for x in EV if x[2] == k for _ in range(max(x[3], 1))] for k in 'slfpucr'}
    assert ps['f'][0] > max(ps['s']) and all(ps['l'][q] > ps['l'][q - nring] for q in range(nring, 28))
    assert ps['f'][0] < ps['p'][0] < ps['c'][0] <= ps['l'][0] and max(ps['u'][0], ps['r'][0]) < ps['l'][0] and max(x[0] for x in EV) <= 6
    vDum, vE0, vE1_ = 128, 129, 130
    assert EV == sorted(EV, key=lambda x: x[:2])
    def ring(n): return aR + 4 * (n % 16)

    def kv_dma(isV, tile):
        sl = tile % 4
        unit_ = [2, 3, 0, 1][sl] if isV else 4 + sl
        so, sr, se, sn = (sVo, SV, sVend, sVnx) if isV else (sKo, SWS, sKend, sKnx)
        L = dma4(sWb, unit_ * 16384, [vDK] * 4, sr, so, 16384, (f"U{unit_}",), kvmod)
        if sl == 3:
            L.append(Chain(PL([f"s_cmp_eq_u32 s{so}, s{se}", f"s_cselect_b32 s{so}, s{sn}, s{so}",
                               f"s_cselect_b32 s{se}, s{sEnd2}, s{se}", f"s_cselect_b32 s{sn}, {OOB}, s{sn}"])))
        return L

    def lin(L):
        out = []
        for x in L:
            if isinstance(x, Chain):
                out += x.ops
            elif isinstance(x, Br):
                out += brl(x)
            else:
                out.append(x)
        return out

    def qk(tile, n0):
        L = []
        S = vS[tile % 2]
        for n in range(16):
            rd = [P(f"ds_read_b128 {a(ring(n0 + n), 4)}, v{vL16h} offset:{(tile % 4) * 16384 + n * 1024}")]
            m = []
            for rb in range(2):
                o = 8 * rb + 4 * (n & 1)
                m.append(P(f"{M16} {v(S + o, 4)}, {a(ring(n0 + n), 4)}, {a(aQ + 8 * (n >> 1) + 4 * rb, 4)}, {v((vC if n < 2 else S) + o, 4)}"))
            L.append((m, rd))
        return L

    def q_poll():
        return PL([f"s_xor_b32 s{sT}, s{sFl}, 0x3c00", f"buffer_load_dword v{vPl}, off, s[{SWS}:{SWS+3}], s{sT} offset:128 sc1"])

    def fstore(data, so, rb4, nph=1, tg='fs'):
        return PL([P(f"buffer_store_dwordx4 {data}, v{vStQ}, s[{SWS}:{SWS+3}], s{so} offen{fsm}", (tg,)),
                   f"s_add_u32 s{so}, s{so}, {16384 if rb4 < 3 else nph * PHS - 49152}" if nph else f"s_mov_b32 s{so}, {OOB}"])

    def wsignal(val, tmp):
        return PL([f"v_mov_b32 v{tmp}, {val}", f"s_mov_b64 exec, 1",
                   f"buffer_store_dword v{tmp}, off, s[{SWS}:{SWS+3}], s{sFw} sc1", f"s_mov_b64 exec, -1"])

    def w_poll(dst):
        return PL([f"v_and_b32 v{dst}, 0xf0, v{vL16}", f"v_lshlrev_b32 v{dst}, 10, v{dst}",
                   f"buffer_load_dword v{dst}, v{dst}, s[{SWS}:{SWS+3}], s{sFp} offen sc1"])

    def sel_setup(D, t, t2):
        L = [f"v_and_b32 v{t}, 16, v{vL16}", f"v_mov_b32 v{t2}, 0x3f80", f"v_lshlrev_b32 v{t}, v{t}, v{t2}", f"v_bfe_u32 v{t2}, v{vL16}, 5, 3"]
        for k in range(8):
            L += [f"v_cmp_eq_u32 vcc, {k}, v{t2}", f"v_cndmask_b32 v{D[k >> 2] + (k & 3)}, 0, v{t}, vcc"]
        return PL(L)

    def ro_setup():
        return PL([f"s_and_b32 s{sT}, s{sHead}, 1", f"s_lshl_b32 s{sT}, s{sT}, 10", f"v_add_u32 v{vLo[0]}, s{sT}, v{vL16}",
                   f"s_lshl_b32 s{sT}, s{sWr}, 9", f"s_add_u32 s{sT}, s{sT}, 1024", f"v_xor_b32 v{vLo[1]}, s{sT}, v{vLo[0]}",
                   f"v_and_b32 v{vE0}, 0x200, v{vL16}", f"v_lshl_add_u32 v{vLo[1]}, v{vE0}, 21, v{vLo[1]}"])

    def fld(q):
        j = q & 3
        L = [NT(f"buffer_load_dwordx4 {a(aFL(q), 4)}, v{vL16 if j < 2 else vLo[j - 2]}, s[{SWS}:{SWS+3}], s{sRf} offen offset:{min(j, 2) * 1024}{fmod}", ('fl', f"fl{q}"))]
        if q >= nring:
            r = q - nring
            d = a(aFA(r >> 3), 4)
            L = [WaitTag((f"fl{r}",)), f"{M16} {d}, {v(vLs8 + 4 * ((r >> 2) & 1), 4)}, {a(aFL(r), 4)}, {d if r & 7 else '0'}"] + L
        return PL(L + ([f"s_add_u32 s{sRf}, s{sRf}, {PHS}"] if j == 3 else []))

    def poison(n):
        return PL([f"buffer_store_dwordx4 {v(vL16h, 4)}, v{vStQ}, s[{SWS}:{SWS+3}], s{sPz} offen sc1",
                   f"s_add_u32 s{sPz}, s{sPz}, 65536"] * n)

    def maskchk(u, inloop=False):
        blk = [P(f"v_subrev_u32 v{vRWu[0]}, {32 * u}, v{vRW}"), P(f"v_add_u32 v{vRWu[1]}, 64, v{vRWu[0]}")]
        for r0 in range(0, 16, 4):
            for r in range(r0, r0 + 4):
                blk.append(P(f"v_cmp_gt_i32 s[{sMk[r % 4]}:{sMk[r % 4]+1}], {16 * ((r >> 2) & 1) + (r & 3)}, v{vRWu[r >> 3]}"))
            for r in range(r0, r0 + 4):
                blk.append(P(f"v_cndmask_b32 v{vC + r}, v{vNegM[r >> 3]}, v{vBig}, s[{sMk[r % 4]}:{sMk[r % 4]+1}]"))
        if 'm' in tx:
            blk = []
        if u == 3:
            blk += q_poll()
        if not inloop:
            return sidecall(f"s_cmp_eq_u32 s{sRem}, s{sMaskAt}", blk, 'mask')
        if u == 0:
            blk += flat(code_touch(12, vPl, tid128(vPl)))
        return sidecall(f"s_cmp_eq_u32 s{sRem}, {-5 if 'M' in tx and u != 3 else f's{sMaskAt}'}", blk, 'mask')

    def events(it, u):
        S, cnt = [], {}
        for i2, uu, k, n in EV:
            m = cnt.get(k, 0)
            cnt[k] = m + n
            if (i2, uu) != (it, u):
                continue
            late = 4 * it + u == ps['c'][0]
            S.append(dict(s=lambda: (flat([fstore(a(aFP + 4 * x, 4), sHp, x % 4, tg='fe') for x in range(m, m + n)]), *ew),
                          l=lambda: (flat([fld(q) for q in range(m, m + n)]), 26 if late else ew[0], ew[1]),
                          f=lambda: ([WaitTag(('fs', 'fe')), wsignal(1, vE0)], 33, 62), p=lambda: (w_poll(vFp), 33, 62),
                          u=lambda: (sel_setup([vLs8, vLs8 + 4], vE0, vE1_), 45, 63), r=lambda: (ro_setup(), 45, 63),
                          t=lambda: (code_touch(12, vDum, tid128(vDum)), 33, 63),
                          c=lambda: (spin_check(vFp, 1, w_poll(vFp)), 2, 24))[k]())
        return S

    def mf2(j, i, jj):
        d = v(128 + 16 * i + 4 * jj, 4) if j < 14 else a(16 * i + 4 * jj, 4)
        return P(f"{M16} {d}, {v(fW2(j & 1, jj), 4)}, {v(fC(j & 1, i), 4)}, {'0' if j in (0, 14) else d}")
    B2 = 32 * 28
    FU = [4, 5, 0, 2, 6, 3, 7]
    def facc(n, rb4): return (64 if n & 1 else 32) + 8 * rb4
    def mf3(n, kk, c, rb4):
        d = v(facc(n, rb4) + 4 * c, 4)
        return P(f"{M16} {d}, {v(vF2r + 4 * (2 * kk + c), 4)}, {a(aH + 16 * rb4 + 4 * kk, 4)}, {'0' if kk == 0 else d}")
    G = Gaps([mf2(j, i, jj) for j in range(28) for i in range(8) for jj in range(4)] +
             [mf3(n, kk, c, rb4) for n in range(7) for kk in range(4) for c in range(2) for rb4 in range(4)])

    def gmark(nm, slot):
        if stamp and nm in marks:
            r_ = stp.sb + 6 + 2 * marks.index(nm)
            G.at(slot, [[P(f"{stp.op} s[{r_}:{r_+1}]"), P("s_waitcnt lgkmcnt(0)")]])

    def wd_dma(n):
        return [P(f"s_add_u32 s{sT2}, s{sWd}, {n * 128}")] + dma4(sWb, FU[n] * 16384, vDW, SWD, sT2, 0, (f"D{n}",))
    phA = qk(0, 0)
    for q in range(56):
        n, kk, c, u = q >> 3, (q >> 1) & 3, q & 1, FU[q >> 3]
        for h in range(2):
            G.at(B2 + 4 * (q - 4) + 2 * h, P(f"ds_read_b64_tr_b16 {v(vF2r + 4 * (q & 7) + 2 * h, 2)}, v{vF2a[2 * (u // 4) + c]} "
                                          f"offset:{(u % 4) * 16384 + kk * 4096 + 2048 * h}"))
        if q & 1 == 0:
            G.at(B2 + 4 * q - (2 if q & 7 == 4 else 1), WaitTag(tuple(keys('v', vF2r + 4 * ((q + 1) & 7), 4) + (keys('a', aH, 64) if q == 0 else []))))
    for n in range(7):
        G.at(B2 + 32 * n + 13, WaitTag(() if 'W' in tx else (f"D{n + 1}",) if n < 6 else ("U4", "qx")))
        if 'B' not in tx:
            G.at(B2 + 32 * n + 15, P("s_barrier"))
    gmark('t2', B2 - 1)
    for n in range(1, 7):
        gmark(f'g{n}', B2 + 32 * n - 1)
    for n in range(1, 28):
        gmark(f'q{n}', 32 * n - 1)
    for j in range(28):
        b = 32 * j
        wt = []
        if j < 27:
            wt = [f"X{j + 1}"] + ([f"Y{(j + 1) // 2}"] if j & 1 else [])
        else:
            wt = keys('v', FR, 68) + ['hx', 'D0']
        if j == sig_k:
            wt.append('kv')
        G.at(b, WaitTag(tuple(wt)))
        if 'b' not in t2x or j & 1:
            G.at(b + 1, P("s_barrier"))
        if j == 14:
            gmark('f', b - 1)
        G.at(b + 19, WaitTag(keys('v', fC(0, 6), 4)))
        if j < 27:
            for i in range(7):
                G.at(b + 4 * i + 3, cread2(j + 1, i))
            for n, it in enumerate([cread2(j + 1, 7)] + wreads2(j + 1)):
                G.at(b + 2 + 2 * n + (n > 0), it)
            G.at(b + 31, WaitTag(keys('v', fC(0, 5), 4)))
        dl = []
        if j + 6 <= 27:
            dl += dmaW2(j + 6)
        if 2 <= j and j // 2 + 3 <= 13:
            dl += dmaA2(j // 2 + 3, (2, 3) if j & 1 else (0, 1))
        if 22 <= j <= 26:
            dl += wd_dma([0, 1, 3, 4, 2][j - 22])
        if 'd' in t2x:
            dl = []
        if 'a' in t2x and j >= 8:
            dl = [x for x in dl if not any(tg.startswith('Y') for tg in x.tags)]
        if j == 0:
            G.at(3, P(f"v_mov_b32 v124, v{vTch}"))
        if j in t2s:
            dl = dl + [NT(f"buffer_load_dword v125, v124, s[{STT}:{STT+3}], s{sTo} offen"), P(f"s_add_u32 s{sTo}, s{sTo}, s{sTs}")]
        G.place(dl, b + 2, b + 30)
    G.place([sidecall(f"s_cmp_eq_u32 s{sW}, 0", signal2(0, vT[0]))], 32 * sig_k + 2, 32 * sig_k + 12)
    comp = [sn for sn in range(32) if STK[sn] > 13]
    assert all(sn >= 16 for sn in comp)
    CK = {sn: k for k, sn in spread(comp, 0, 13)}
    n = 0
    L = []
    for j in range(14):
        for sn in range(32):
            if STK[sn] == j or CK.get(sn) == j:
                L += unit(sn, 100 + 8 * (n % 3), STK[sn] == j)
                n += 1
    drain = L if 'v' not in t2x else []
    for j in range(14, 28):
        G.place(flat([kvstore(sn, a(8 * sn, 4)) for sn in range(32) if STK[sn] == j]), 32 * j + 8, 32 * j + 31)
    t, t2 = vT[4], vT[5]
    L = [f"v_lshrrev_b32 v{t}, 3, v{vLane}", f"v_and_b32 v{t2}, 6, v{t}", f"v_mul_u32_u24 v{t}, 896, v{t}",
         f"v_xor_b32 v{t2}, v{t2}, v{vLane}", f"v_and_b32 v{t2}, 7, v{t2}", f"v_lshl_add_u32 v{t}, v{t2}, 4, v{t}",
         f"s_mul_i32 s{sT}, s{sW}, {32 * 896}", f"v_add_u32 v{vDW[0]}, s{sT}, v{t}"]
    L += [f"v_add_u32 v{vDW[q]}, {q * (8 * 896 - 1024)}, v{vDW[0]}" for q in range(1, 4)]
    G.place(PL(L), 32, 32 * 8)
    L = [f"v_add_u32 v{vL16h}, 0x10000, v{vL16}", f"v_mov_b32 v{vBig}, {NEG_BIG}",
         f"v_and_b32 v{t}, 15, v{vLane}", f"v_lshrrev_b32 v{t2}, 4, v{vLane}", f"v_lshlrev_b32 v{t2}, 2, v{t2}",
         f"v_sub_u32 v{t}, v{t}, v{t2}", f"s_lshl_b32 s{sT}, s{sW}, 4", f"v_add_u32 v{vRW}, s{sT}, v{t}",
         f"s_lshl_b32 s{sT}, s{sWc}, 14", f"s_lshl_b32 s{sT2}, s{sWr}, 17", f"s_add_u32 s{sT}, s{sT}, s{sT2}",
         f"v_add_u32 v{vQr}, s{sT}, v{vL16}"]
    G.place(PL(L), 32 * 8 + 1, 32 * 14 - 1)

    G.place(drain, 4, 32 * 14 - 1)

    def job_init():
        return PL([f"v_mov_b32 v{x}, 0" for x in vNegM + vLs + list(range(vC, vC + 16))])
    L = [f"s_lshl_b32 s{sT}, s{sW}, 11", f"v_add_u32 v{vQw[0]}, s{sT}, v{vL16}", f"v_add_u32 v{vQw[1]}, 0x20000, v{vQw[0]}"]
    L += [f"s_mov_b32 s{sIt}, 0", f"s_add_u32 s{sPz}, s{sSo}, {(7 - npz) * PHS}"]
    G.place(PL(L) + job_init(), 32 * 22, 32 * 27 - 1)
    G.place(poll_kv(vPl), B2 + 32 * (chk_ph - 1) + pk, B2 + 32 * (chk_ph - 1) + pk + 15)
    L = []
    for q in range(64 + 8):
        def reg(x): return 128 + 16 * (x >> 3) + (x & 7)
        def ok(x): return 0 <= x < 64
        if ok(q):
            L += [f"v_mul_f32 v{reg(q) + 8}, v{reg(q)}, v{reg(q) + 8}", f"v_mul_f32 v{reg(q)}, s{sBst}, v{reg(q)}"]
        if ok(q - 1):
            L += [f"v_exp_f32 v{reg(q - 1)}, v{reg(q - 1)}"]
        if ok(q - 7) and (q - 7) & 1:
            x = q - 7
            L += [f"v_cvt_pk_bf16_f32 v{vH + (x >> 1)}, v{reg(x) + 7}, v{reg(x) + 8}"]
        if ok(q - 3):
            L += [f"v_add_f32 v{reg(q - 3)}, 1.0, v{reg(q - 3)}"]
        if ok(q - 6):
            L += [f"v_mul_f32 v{reg(q - 6) + 8}, v{reg(q - 6)}, v{reg(q - 6) + 8}"]
        if ok(q - 4):
            L += [f"v_rcp_f32 v{reg(q - 4)}, v{reg(q - 4)}"]
    fe = PL(L) if 'v' not in t2x else []
    t, t2, c = vT[3], vT[4], vT[5]
    L = [f"v_lshrrev_b32 v{t}, 6, v{vL16}", f"v_bfe_u32 v{t2}, v{t}, 1, 2", f"v_lshlrev_b32 v{t}, 7, v{t}",
         f"v_bfe_u32 v{c}, v{vL16}, 1, 5", f"v_add_u32 v{t}, v{t}, v{c}", f"s_lshl_b32 s{sT}, s{sWc}, 1",
         f"v_xor_b32 v{t2}, s{sT}, v{t2}", f"v_lshl_add_u32 v{vF2a[0]}, v{t2}, 5, v{t}", f"v_xor_b32 v{vF2a[1]}, 32, v{vF2a[0]}",
         f"v_add_u32 v{vF2a[2]}, 0x10000, v{vF2a[0]}", f"v_add_u32 v{vF2a[3]}, 0x10000, v{vF2a[1]}",
         f"s_lshl_b32 s{sT}, s{sW}, 10", f"s_add_u32 s{sT}, s{sT}, {3 * 16384}", f"v_add_u32 v{vHw[0]}, s{sT}, v{vL16}",
         f"v_add_u32 v{vHw[1]}, 0x10000, v{vHw[0]}", f"s_lshl_b32 s{sT}, s{sWr}, 16", f"s_add_u32 s{sT}, s{sT}, {3 * 16384}",
         f"v_add_u32 v{vHr}, s{sT}, v{vL16}",
         f"s_mov_b32 s{SWD}, s100", f"s_and_b32 s{SWD+1}, s101, 0xffff", f"s_mov_b32 s{SWD+2}, {1792 * 896}",
         f"s_mul_i32 s{sWd}, s{sHead}, {128 * 896}",
         f"s_mov_b32 s{SX}, s56", f"s_and_b32 s{SX+1}, s57, 0xffff", f"s_mov_b32 s{SX+2}, {2048 * 896}",
         f"s_mov_b32 s{SO}, s28", f"s_and_b32 s{SO+1}, s29, 0xffff", f"s_mov_b32 s{SO+2}, {2048 * 896}", f"s_mov_b32 s{SO+3}, 0x00020000",
         f"s_add_u32 s{sHp}, s{sHo}, {fdir * PHS}",
         f"s_lshl_b32 s{sT}, s{sHead}, 1", f"s_add_u32 s{sT}, s{sT}, s{sWr}", f"s_lshl_b32 s{sT}, s{sT}, 12",
         f"s_mul_i32 s{sRs}, s{sU}, {US}", f"s_add_u32 s{sRs}, s{sRs}, s{sT}", f"s_lshl_b32 s{sT}, s{sWc}, 17",
         f"s_add_u32 s{sRs}, s{sRs}, s{sT}", f"s_add_u32 s{sRf}, s{sRs}, {F_PF}",
         f"s_add_u32 s{sRs}, s{sRs}, {F_PS}",
         *([f"s_mov_b32 s{sRf}, {OOB}"] if 'f' in tx else []),
         f"s_lshl_b32 s{sFw}, s{sW}, 7", f"s_add_u32 s{sFw}, s{sFw}, s{sFl}", f"s_add_u32 s{sFw}, s{sFw}, 512",
         f"s_bfe_u32 s{sFp}, s{sHead}, 0x20001", f"s_lshl_b32 s{sFp}, s{sFp}, 7", f"s_lshl_b32 s{sT}, s{sU}, 10",
         f"s_add_u32 s{sFp}, s{sFp}, s{sT}", f"s_add_u32 s{sFp}, s{sFp}, {F_FL + 512}"]
    G.place(chains(PL(L)), 32 * 14, 32 * 22 - 1)
    G.place([P(f"ds_read_b128 {a(aH + 16 * rb4 + 4 * kk, 4)}, v{vHr} offset:{rb4 * 4096 + kk * 1024}") for kk in range(4) for rb4 in range(4)],
            32 * 27 + 2, 32 * 27 + 22)
    kvl = {1: [(0, 0)], 2: [(0, 1)], 4: [(1, 0)], 5: [(0, 2)], 6: [(1, 1)]}
    pend = []
    for n in range(7):
        b = B2 + 32 * n
        L = wd_dma(5) + wd_dma(6) if n == 0 else []
        pend += kvl.get(n, [])
        if n == chk_ph and 'k' not in tx:
            L += spin_check(vPl, 1, poll_kv(vPl))
        if n >= chk_ph:
            for x in pend:
                L += kv_dma(*x)
            pend = []
        if n == 6:
            qr = [P(f"ds_read_b128 {a(aQ + 4 * k, 4)}, v{vQr} offset:{k * 1024}") for k in range(16)]
            G.place(flat([[qr[k]] + (phA[k][1] if k < LA else []) for k in range(16)]), b + 16, b + 31)
        G.place(L if 'D' not in tx else [], b + 16, b + (44 if n < 6 else 31))
    G.place([maskchk(0)], B2 + 32 * 3, B2 + 32 * 4)

    def fdrain(n):
        L = []
        for rb4 in range(4):
            s_ = facc(n, rb4)
            d = s_ if n < 6 else vH + 16 + 4 * rb4
            L += [f"v_cvt_pk_bf16_f32 v{d + r}, v{s_ + 2 * r}, v{s_ + 2 * r + 1}" for r in range(4)]
            if n < fdir:
                L += fstore(v(d, 4), sHo, rb4, 1 if n < fdir - 1 else 7 - fdir)
            elif n < 6:
                L += [f"v_accvgpr_write_b32 a{aFP + 16 * (n - fdir) + 4 * rb4 + r}, v{d + r}" for r in range(4)]
        return PL(L)
    for n in range(6 if 'd' not in tx else 0):
        G.place(fdrain(n), B2 + 32 * n + 34, B2 + 32 * n + 63)
    G.place(fe, 32 * 14, 32 * fe_end + 27)

    def find(it):
        return [g for g in range(len(G.items)) if any(x is it for _, _, x in G.items[g])][0] - 1
    for i in range(8):
        src = [x for x in fe if ('v', vH + 4 * i + 3) in x.wr and x.op.startswith('v_cvt')][0]
        lo = max(find(src) + 1, 32 * (24 if i < 4 else 25) + 2 + 4 * (i & 3))
        G.place([P(f"ds_write_b128 v{vHw[i >> 2]}, {v(vH + 4 * i, 4)} offset:{(i & 3) * 4096}", ('hx',))], lo, 32 * 27 - 1, even=False)
    L, chkl = [], []
    for n, (i, c) in enumerate([(i, c) for i in (1, 2, 3, 5, 6, 7, 0, 4) for c in range(2)]):
        e = 160 + 8 * (n % 8)
        blk = [f"v_accvgpr_read_b32 v{e + r}, a{16 * i + 8 * c + r}" for r in range(8)]
        blk += [f"v_pk_mul_f32 {v(e + 2 * r, 2)}, {v(e + 2 * r, 2)}, s[{sSc}:{sSc+1}]" for r in range(0 if xsc else 4)]
        if 'Q' in tx:
            blk = blk[:1]
        blk += [f"v_cvt_pk_bf16_f32 v{e + r}, v{e + 2 * r}, v{e + 2 * r + 1}" for r in range(4)]
        blk = PL(blk) + [P(f"ds_write_b128 v{vQw[(i >> 1) & 1]}, {v(e, 4)} offset:{(i & 1) * 16384 + c * 8192 + (i >> 2) * 1024}", ('qx',))]
        chkl.append((i, blk[0], blk[-1]))
        L += blk
    G.place(L, 32 * 27 + 10, B2 + 32 * 6 + 10)
    for i, x, y in chkl:
        assert find(x) > 32 * 27 + 4 * i + 4 and (i & 3 or find(y) > B2 + 32 * 3 + 15), (i, find(x), find(y))
    if verbose:
        print("T2 over:", G.over(), [sum(max(0, G.cost(g) - 2) for g in range(32 * j + 1, 32 * j + 33)) for j in range(35)])
    p.add(G.out())

    def pv1(tile, db, reg, Pr, first=False, rbs=(0, 1)):
        rd = [P(f"ds_read_b128 {reg}, v{vL16} offset:{[2, 3, 0, 1][tile % 4] * 16384 + db * 1024}")]
        return [P(f"{M16} {v(O(db, rb), 4)}, {reg}, {v(Pr + 4 * rb, 4)}, {'0' if first else v(O(db, rb), 4)}") for rb in rbs], rd

    def pv(tile, first=False, Pr=vP):
        return [pv1(tile, db, a(ring(db), 4), Pr, first) for db in range(16)]

    WU = [8, 4, 6, 2, 0, 8, 4]

    def wphase(i):
        L = []
        for hb in range(2):
            for dk in range(8):
                for c in range(2):
                    n = 16 * hb + 2 * dk + c
                    u = WU[i] + (dk >> 2)
                    rd = [P(f"ds_read_b64_tr_b16 {a(ring(n) + 2 * h, 2)}, v{vWb + 4 * (u // 4) + 2 * hb + c} offset:{(u % 4) * 16384 + (dk & 3) * 4096 + 2048 * h}")
                          for h in range(2)]
                    m = []
                    for rb in range(2):
                        o = v(vS[hb] + 8 * rb + 4 * c, 4)
                        m.append(P(f"{M16} {o}, {a(ring(n), 4)}, {v(OB[dk] + 8 * rb, 4)}, {'0' if dk == 0 else o}"))
                    L.append((m, rd))
        return L

    def wo_dma(i):
        L = []
        for h in range(2):
            L += [P(f"s_add_u32 s{sT2}, s{sWo}, {i * 128 + h * 128 * 896}")]
            L += dma4(sWb, (WU[i] + h) * 16384, vDW, SWO, sT2, 0, (f"U{WU[i] + h}",))
        return L

    def emit(seg, nxt, bar_tags, streams, nm=""):
        main, pos, fx = [], [], []
        for m, r, *x in seg:
            if r:
                pos.append(len(main))
            if x:
                fx.append((len(main), x[0]))
            main += m
        G = Gaps(main)
        for sl, x in fx:
            for k, y in enumerate(x):
                G.at(sl + k, y)
        R = [e[1] for e in seg if e[1]]
        N = len(R)
        R2 = R + ([x[1] for x in nxt[:LA]] if nxt is not None else [])
        bp = None
        if nxt is not None:
            bp = pos[N - LA] - 1
            G.at(bp - 1, WaitTag(tuple(bar_tags)))
            G.at(bp, P("s_barrier"))
        for k in range(LA, len(R2)):
            for x in R2[k]:
                G.at(pos[k - LA], x)
        for k in range(WG, N + 1, WG):
            kk = min(k + WG - 1, len(R2) - 1)
            if kk >= k:
                sl = (pos[k] if k < N else len(main)) - 1
                if sl == bp:
                    sl -= 1
                G.at(sl, WaitTag(tuple(R2[kk][-1].wr)))
        for items, lo, hi in streams:
            if lo == 'sp':
                G.at(hi[0], items[0])
                for q in range(4):
                    G.at(hi[q], items[1 + q])
        for items, lo, hi in streams:
            if lo == 'sp':
                items, lo, hi = items[5:], hi[3] + 1, None
            lo = bp + 1 if lo == 'bar' else lo
            G.place(items, lo, len(main) - 1 if hi is None else hi)
        if verbose:
            print("phase", nm, "over", G.over())
        p.add(G.out())

    def ml_poll(r=vML):
        return [P(f"buffer_load_dwordx4 {v(r, 4)}, v{vL16}, s[{SWS}:{SWS+3}], s{sMl} offen sc1")]

    def xlane(op, R, T):
        return PL([f"v_permlane32_swap_b32 v{R[0]}, v{R[1]}", f"{op} v{R[0]}, v{R[0]}, v{R[1]}",
                   f"v_mov_b32 v{T}, v{R[0]}", f"v_permlane16_swap_b32 v{R[0]}, v{T}", f"{op} v{R[0]}, v{R[0]}, v{T}",
                   f"v_mov_b32 v{R[1]}, v{R[0]}", f"v_permlane32_swap_b32 v{R[0]}, v{R[1]}"])

    def rowmax(S):
        L = [f"v_max3_f32 v{vMx[rb]}, v{S + 8 * rb}, v{S + 8 * rb + 1}, v{S + 8 * rb + 2}" for rb in range(2)]
        for k in (3, 5):
            L += [f"v_max3_f32 v{vMx[rb]}, v{vMx[rb]}, v{S + 8 * rb + k}, v{S + 8 * rb + k + 1}" for rb in range(2)]
        L += [f"v_max_f32 v{vMx[rb]}, v{vMx[rb]}, v{S + 8 * rb + 7}" for rb in range(2)]
        return PL(L) + xlane("v_max_f32", vMx, vMx2[0])

    EO = [0, 1, 2, 3, 8, 9, 10, 11, 4, 5, 6, 7, 12, 13, 14, 15]

    def exps(S, sub=False, inplace=False):
        L, pend, cnt = [], [], [0, 0]
        def flush(n):
            while len(pend) > n:
                r = pend.pop(0)
                rb = r >> 3
                cnt[rb] += 1
                if cnt[rb] == 2:
                    L.append(f"v_add_f32 v{vPs[rb]}, v{vE + r - 1}, v{vE + r}")
                elif cnt[rb] > 2:
                    L.append(f"v_add_f32 v{vPs[rb]}, v{vPs[rb]}, v{vE + r}")
        for r in EO:
            if inplace:
                L.append(f"v_add_f32 v{S + r}, v{S + r}, v{vNegM[r >> 3]}")
            if sub:
                L += [f"v_sub_f32 v{vE + r}, v{S + r}, v{vMx[r >> 3]}", f"v_exp_f32 v{vE + r}, v{vE + r}"]
            else:
                L.append(f"v_exp_f32 v{vE + r}, v{S + r}")
            pend.append(r)
            flush(1)
        flush(0)
        return PL(L)

    def cvts(Pr=vP):
        return PL([f"v_cvt_pk_bf16_f32 v{Pr + r}, v{vE + 2 * r}, v{vE + 2 * r + 1}" for r in range(8)])

    def lsadd():
        return PL([f"v_add_f32 v{vLs[rb]}, v{vLs[rb]}, v{vPs[rb]}" for rb in range(2)])

    shared = {}
    def check(tile, has_qk, recvt=None, it=None, pre=()):
        S, Sn = vS[tile % 2], vS[(tile + 1) % 2]
        blk = list(pre) + rowmax(S)
        for rb in range(2):
            blk += PL([f"v_max_f32 v{vMx[rb]}, 0, v{vMx[rb]}", f"v_exp_f32 v{vMx2[rb]}, -v{vMx[rb]}",
                       f"v_sub_f32 v{vNegM[rb]}, v{vNegM[rb]}, v{vMx[rb]}", f"v_mul_f32 v{vLs[rb]}, v{vLs[rb]}, v{vMx2[rb]}"])
        for dk in range(8):
            blk += PL([f"v_mul_f32 v{OB[dk] + r}, v{OB[dk] + r}, v{vMx2[r >> 3]}" for r in range(16)])
        if has_qk:
            for r in range(16):
                blk += PL([f"v_sub_f32 v{vC + r}, v{vC + r}, v{vMx[r >> 3]}", f"v_sub_f32 v{Sn + r}, v{Sn + r}, v{vMx[r >> 3]}"])
        blk += exps(S, sub=True)
        if recvt is not None:
            blk += cvts(recvt)
        if it is not None:
            if tile not in shared:
                shared[tile] = [Label(p.newlabel('rare'))] + blk + [P("s_waitcnt vmcnt(0)")]
                side.append(shared[tile])
            lr = p.newlabel('rarer')
            shared[tile] += PL([f"s_cmp_eq_u32 s{sIt}, {it}", f"s_cbranch_scc1 {lr}"] if it else [f"s_branch {lr}"])
            return [P(f"v_add_f32 v{vMx[0]}, v{vPs[0]}, v{vPs[1]}"),
                    Br(P(f"v_cmp_nge_f32 vcc, {THRESH}, v{vMx[0]}"), P(f"s_cbranch_vccnz {shared[tile][0].name}"), Label(lr))]
        return [P(f"v_add_f32 v{vMx[0]}, v{vPs[0]}, v{vPs[1]}"),
                sidecall(f"v_cmp_nge_f32 vcc, {THRESH}, v{vMx[0]}", blk, 'rare', 's_cbranch_vccnz')]

    def lin_io(op, reg, so, n, tags=()):
        L = [P(f"{op} {reg}, v{vL16}, s[{SWS}:{SWS+3}], s{so} offen offset:{(n & 3) * 1024}{qsm if 'store' in op else ' sc1'}", tags)]
        if n & 3 == 3:
            L.append(P(f"s_add_u32 s{so}, s{so}, 4096"))
        return L

    mark('att')
    lJob = p.newlabel('job')
    p.label(lJob)
    ph0 = qk(1, 0)
    qst = [lin_io("buffer_store_dwordx4", a(aQ + 4 * n, 4), sQo, n) for n in range(16)]
    emit(phA, ph0, ["U5"], [([maskchk(1)], 6, 20), (kv_dma(0, 3), 'bar', None), (fdrain(6), 2, 31), (flat(qst[:10]), 4, 31)], "A")

    mark('jA')
    def full(t, first=False):
        return pv(t - 1, first) + qk(t + 1, 16)
    ph1 = full(1, True)
    emit(ph0, ph1, ["U2", "U6"],
         [(flat(qst[10:]) + [P(f"s_mov_b32 s{sQo}, {OOB}")] + kv_dma(1, 2) + kv_dma(0, 4), 'bar', None),
          (rowmax(vS[0]) + PL([f"v_sub_f32 v{vNegM[rb]}, 0, v{vMx[rb]}" for rb in range(2)]) + exps(vS[0], sub=True) + lsadd() + cvts(), 1, 30)], "0")

    mark('j0')
    def hstore(i):
        return fstore(v(vH + 4 * i, 4), sHo, i & 3, int(i < 7))

    def std(t, first=False, pre=(), extra=(), it=None):
        sh = 0
        S = [([maskchk((t + 1) % 4, t >= 3)], 26 + sh, 31 + sh), (list(pre) + kv_dma(1, t + 2), vwin[0] + 3 * sh, vwin[1] + sh), (kv_dma(0, t + 4), 'bar', None)]
        if dsp and t >= 3:
            S[1:] = [(kv_dma(1, t + 2), 'sp', dsp[0]), (kv_dma(0, t + 4), 'sp', dsp[1])]
        if first:
            S.append((PL([f"v_mov_b32 v{vC + r}, v{vNegM[r >> 3]}" for r in range(16)]), 0, 25))
        ck = check(t, True, it=it)
        S += list(extra)
        S.insert(1, (exps(vS[t % 2], inplace=first) + ck[:1], 1, chk - 1 + sh))
        S.append((ck[1:], chk, chk + 4))
        S.append((lsadd() + cvts(), chk + 4, 62))
        if it:
            S += events(it, (t + 1) % 4)
        return S

    def btags(t):
        return [f"U{[2, 3, 0, 1][(t - 1) % 4]}", f"U{4 + (t + 1) % 4}"]

    emit(ph1, full(2), btags(2), std(1, first=True, extra=[(flat([hstore(i) for i in range(4, 5)]), 32, 63)]), "1")
    mark('j1')
    sig7 = sidecall(f"s_cmp_eq_u32 s{sW}, 0", signal2(128, vRWu[0]))
    emit(full(2), full(3), btags(3), std(2, pre=wo_dma(0), extra=[([sig7], 'bar', None), (flat([hstore(i) for i in range(5, 8)]), 20, 63)]), "2")
    mark('j2')
    lTail, lLoop = p.newlabel('tail'), p.newlabel('loop')
    p(f"s_cmp_eq_u32 s{sRem}, 0")
    p(f"s_cbranch_scc1 {lTail}")
    lC = [lLoop] + [p.newlabel('it') for _ in range(6)]
    lD = p.newlabel('disp')
    p(f"s_cmp_lg_u32 s{sIt}, 0")
    p(f"s_cbranch_scc1 {lD}")
    side.append(PL([Label(lD)] + [x for k in range(1, 5) for x in (f"s_cmp_eq_u32 s{sIt}, {k}", f"s_cbranch_scc1 {lC[k + 1]}")] + [f"s_branch {lC[6]}"]))
    for it in (1, 2, 3, 4, 5, 6, 0):
        if it == 0:
            p.raw(".p2align 6")
        p.label(lC[it])
        for t in (3, 4, 5, 6):
            ex = [(PL([f"s_sub_u32 s{sRem}, s{sRem}, 1", f"s_add_u32 s{sIt}, s{sIt}, 1"]), 0, 20)] if t == 3 else []
            emit(full(t), full(t + 1), btags(t + 1), ex + std(t, it=it), f"{it}.{t}")
        if it:
            p(f"s_cmp_eq_u32 s{sRem}, 0")
            p(f"s_cbranch_scc1 {lTail}")
    p(f"s_cmp_lg_u32 s{sRem}, 0")
    p(f"s_cbranch_scc1 {lLoop}")
    p.label(lTail)

    def lsum(): return xlane("v_add_f32", vLs, vMx2[0])

    def ocvt(dk, rb):
        b = OB[dk] + 8 * rb
        return PL([f"v_cvt_pk_bf16_f32 v{b + r}, v{b + 2 * r}, v{b + 2 * r + 1}" for r in range(4)])

    vP2 = vS[0]

    def phaseD(streams, nm):
        ck = check(3, False, vP2)
        emit(pv(2), pv(3, Pr=vP2), ["U1"], streams + [(exps(vS[1]) + cvts(vP2) + ck[:1] + [ck[1].cond], 1, 30)], nm)
        p.add([ck[1].br, ck[1].lab])

    def w_setup():
        t, t2, c = vML + 1, vML + 2, vML + 3
        L = [f"v_lshrrev_b32 v{t}, 6, v{vL16}", f"v_bfe_u32 v{t2}, v{t}, 1, 2", f"v_lshlrev_b32 v{t}, 7, v{t}",
             f"v_bfe_u32 v{c}, v{vL16}, 1, 5", f"v_add_u32 v{t}, v{t}, v{c}"]
        for nb in range(4):
            L += [f"v_xor_b32 v{c}, {nb}, v{t2}", f"v_lshl_add_u32 v{vWb + nb}, v{c}, 5, v{t}"]
        L += [f"v_add_u32 v{vWb + 8 + nb}, 0x20000, v{vWb + nb}" for nb in range(4)]
        L += [f"v_add_u32 v{vWb + 4 + nb}, 0x10000, v{vWb + nb}" for nb in range(4)]
        return PL(L)

    lFin, lPart, lM, lW = (p.newlabel(x) for x in ('fin', 'part', 'merge', 'wo'))
    p(f"s_cmp_lg_u32 s{sKind}, {HOLD}")
    p(f"s_cbranch_scc1 {lFin}")
    ql = PL([f"s_xor_b32 s{sOut}, s{sF}, 15", f"s_lshl_b32 s{sOut}, s{sOut}, 2", f"s_add_u32 s{sOut}, s{sOut}, s{sW}",
             f"s_lshl_b32 s{sOut}, s{sOut}, 14", f"s_add_u32 s{sOut}, s{sOut}, {F_Q}"])
    mark('h0')
    p.add(ql + lin(spin_check(vPl, 1, q_poll())))
    qld = [lin_io("buffer_load_dwordx4", a(aQ + 4 * n, 4), sOut, n) for n in range(16)]
    phaseD([(flat(qld[:qd]), 0, 20 if qd == 16 else 31)] + ([(kv_dma(1, 5), 'bar', None)] if qd == 16 else []), "Dh")
    mark('h1')
    def hold(dk):
        L = []
        for rb in range(2):
            L += ocvt(dk, rb) + PL([f"v_accvgpr_write_b32 a{aPO + 8 * dk + 4 * rb + r}, v{OB[dk] + 8 * rb + r}" for r in range(4)])
        return L
    S = [(lsadd() + lsum() + PL([f"v_rcp_f32 v{vInv[rb]}, v{vLs[rb]}" for rb in range(2)]) + job_init(), 0, 12),
         (PL([f"s_mov_b32 s{sKind}, {PART}", f"s_mov_b32 s{sMaskAt}, -1", f"s_sub_u32 s{sRem}, 6, s{sU}"]), 0, 12)]
    if qd < 16:
        S.insert(0, (flat(qld[qd:]) + kv_dma(1, 5), 0, 31))
    S += [(hold(dk), 4 * dk + 6, min(4 * dk + 11, 31)) for dk in range(7)]
    emit(pv(3, Pr=vP2), phA, ["U4"], S, "Eh")
    p.add(hold(7))
    mark('h2')
    p(f"s_branch {lJob}")
    p.label(lFin)
    mark('fin')
    W = [wphase(i) for i in range(7)]
    if fuse:
        p(f"s_cmp_eq_u32 s{sKind}, {PART}")
        p(f"s_cbranch_scc1 {lPart}")
    phaseD([(wo_dma(1), 0, 30), (w_setup() + ml_poll(), 0, 24)], "D")
    mark('d')
    p(f"s_cmp_eq_u32 s{sKind}, {MERGE}")
    p(f"s_cbranch_scc1 {lM}")
    if not fuse:
        p(f"s_cmp_eq_u32 s{sKind}, {PART}")
        p(f"s_cbranch_scc1 {lPart}")
    S = [(wo_dma(2), 0, 30), (lsadd() + lsum() + PL([f"v_rcp_f32 v{vInv[rb]}, v{vLs[rb]}" for rb in range(2)]), 0, 8)]
    S += [(ocvt(dk, 0) + ocvt(dk, 1), 4 * dk + 6, min(4 * dk + 11, 31)) for dk in range(6)]
    emit(pv(3, Pr=vP2), W[0], ["U8", "U9"], S, "Ef")
    p(f"s_branch {lW}")
    p.label(lPart)
    def postore(dk):
        L = []
        for rb in range(2):
            b = OB[dk] + 8 * rb
            L += ocvt(dk, rb) + lin_io("buffer_store_dwordx4", v(b, 4), sPo, 2 * dk + rb, ('po',))
        return L
    def unhold(dk):
        return PL([f"v_accvgpr_read_b32 v{OB[dk] + 8 * rb + r}, a{aPO + 8 * dk + 4 * rb + r}" for rb in range(2) for r in range(4)])
    S = [(lsadd() + lsum() + PL([f"v_mov_b32 v{vML + 2 * rb + k}, v{(vNegM, vLs)[k][rb]}" for rb in range(2) for k in range(2)]), 0, 8)]
    if fuse:
        n = fuse
        od = [(2, db) for db in range(n)] + [(3, db) for db in range(n)] + [(tl, db) for db in range(n, 16) for tl in (2, 3)]
        seg = [list(pv1(tl, db, a(ring(k), 4), vP if tl == 2 else vP2)) for k, (tl, db) in enumerate(od)]
        seg[n - LA - 1].append([WaitTag(("U1",)), P("s_barrier")])
        pre = []
        for db in range(n, 16):
            m, rd = pv1(2, db, v(vC + 4 * (db & 3), 4), vP)
            pre += rd + m
        pre += PL([f"v_mov_b32 v{vP + r}, 0" for r in range(8)])
        ck = check(3, False, vP2, pre=pre)
        av = [2 * od.index((3, 2 * dk + 1)) + 4 for dk in range(8)]
        lo = [max(av[dk], fp0 + fps * dk) for dk in range(7)]
        seg[n - 1].append([[], [ck[1].br, ck[1].lab]])
        S = [(exps(vS[1]) + cvts(vP2) + [ck[0], ck[1].cond], 0, 2 * n - 3), (wo_dma(1)[:fw], 0, 24 if fw > 6 else 16)] + \
            [(postore(dk), lo[dk], min(lo[dk] + fps - 1, 63)) for dk in range(7)] + [(w_setup(), 2 * n, 45), (S[0][0], 48, 63)]
        emit(seg, W[0], ["U8", "U9"], S, "Fp")
    else:
        S += [(postore(dk), 4 * dk + 6, min(4 * dk + 9, 31)) for dk in range(7)]
        emit(pv(3, Pr=vP2), W[0], ["U8", "U9"], S, "Ep")
    p.add(postore(7))
    mark('ep')
    wd = (wo_dma(1)[fw:] if fuse else []) + wo_dma(2)
    mls = [WaitTag(('po',)), P(f"buffer_store_dwordx4 {v(vML, 4)}, v{vL16}, s[{SWS}:{SWS+3}], s{sMl} offen sc1")]
    if not mle:
        p.add(wd)
    for dk in range(8):
        p.add(unhold(dk))
    if mle == 1:
        p.add(mls + wd)
    lW1 = p.newlabel('wo1')

    def sout(hb, tags=()):
        S = vS[hb]
        tb = vE if hb else vC
        L = []
        for rb in range(2):
            L += [f"v_mul_f32 v{S + 8 * rb + r}, v{S + 8 * rb + r}, v{vInv[rb]}" for r in range(8)]
            L += [f"v_cvt_pk_bf16_f32 v{tb + 4 * rb + r}, v{S + 8 * rb + 2 * r}, v{S + 8 * rb + 2 * r + 1}" for r in range(4)]
            L.append(P(f"buffer_store_dwordx4 {v(tb + 4 * rb, 4)}, v{vStQ}, s[{SWS}:{SWS+3}], s{sSo} offen{smod}", tags))
            L.append(f"s_add_u32 s{sSo}, s{sSo}, 65536")
        return PL(L)

    def wemit(i, extra, tail=(), pre=()):
        S = list(extra)
        if i <= 3:
            S.append((list(pre) + wo_dma(i + 3), posig if pre else 0, 62))
        if i > 0:
            S.append((sout(1, (f"s{i - 1}",)), 3, 31))
        S.append((sout(0), 35 + (len(tail[0][0]) if tail else 0), None))
        emit(W[i][:2] + list(tail[:1]) + W[i][2:20] + list(tail[1:]) + W[i][20:], W[i + 1] if i < 6 else None, [f"U{WU[i + 1]}", f"U{WU[i + 1] + 1}"] + ([f"s{6 - two}"] if two and i == fl[0] else []) if i < 6 else [], S, f"W{i}")
    wemit(0, [(mls, posig, 63)] if mle == 0 else [], pre=mls + wd if mle == 2 else [])
    mark('pw0')
    p(f"s_branch {lW1}")
    p.label(lM)
    idm = [([P(f"{M16} {v(O(db, rb), 4)}, {v(vI + 2 - 2 * (db & 1), 4)}, {a(aPO + 8 * (db >> 1) + 4 * rb, 4)}, {v(O(db, rb), 4)}")
             for rb in range(2)], []) for db in range(16)]
    vF = vMx
    L0, L = lsadd() + lsum(), []
    for rb in range(2):
        L += PL([f"v_sub_f32 v{vF[rb]}, v{vML + 2 * rb}, v{vNegM[rb]}", f"v_min_f32 v{vF[rb]}, {f2u(60.0)}, v{vF[rb]}",
                 f"v_exp_f32 v{vF[rb]}, v{vF[rb]}"])
    L2 = []
    for rb in range(2):
        L2 += PL([f"v_fma_f32 v{vLs[rb]}, v{vLs[rb]}, v{vF[rb]}, v{vML + 2 * rb + 1}", f"v_rcp_f32 v{vInv[rb]}, v{vLs[rb]}"])
    t, lo, hi = vRWu[0], vPs[0], vPs[1]
    L3 = [f"s_lshl_b32 s{sT}, s{sW}, 4", f"v_subrev_u32 v{t}, s{sT}, v{vRW}", f"v_mov_b32 v{lo}, 0x3f80", f"v_mov_b32 v{hi}, 0x3f800000"]
    L3 += [f"v_mov_b32 v{vI + k}, 0" for k in (0, 1, 4, 5)]
    for k in range(2):
        L3 += [f"v_cmp_eq_u32 vcc, {2 * k}, v{t}", f"v_cndmask_b32 v{vI + 2 + k}, 0, v{lo}, vcc",
               f"v_cmp_eq_u32 vcc, {2 * k + 1}, v{t}", f"v_cndmask_b32 v{vI + 2 + k}, v{vI + 2 + k}, v{hi}, vcc"]
    if emw:
        emit(pv(3, Pr=vP2), W[0], ["U8", "U9"], [(wo_dma(2), 0, 24), (ml_poll(), mlp, 31), (L0 + PL(L3), 0, 31)], "Em1")
    ok, spin = p.newlabel('mok'), p.newlabel('mspin')
    if fsp & 1:
        def mt(r): return [f"v_min_u32 v{vMx[0]}, v{r + 1}, v{r + 3}", f"v_cmp_eq_u32 vcc, 0, v{vMx[0]}"]
        R = [vC, vC + 4, vC + 8]
        p.add(ml_poll(R[0]) + mt(vML) + [f"s_cbranch_vccz {ok}", f"s_sleep {fsl}"] + ml_poll(R[1]) + [f"s_sleep {fsl}"] + ml_poll(R[2]))
        stag_spin(R, ml_poll, lambda r: mt(r) + [f"v_mov_b32 v{vML + k}, v{r + k}" for k in range(4)])
    else:
        p(f"s_mov_b32 s{sT2}, 0")
        p.label(spin)
        p(f"v_min_u32 v{vMx[0]}, v{vML + 1}, v{vML + 3}")
        p(f"v_cmp_eq_u32 vcc, 0, v{vMx[0]}")
        p(f"s_cbranch_vccz {ok}" if 'g' not in tx else f"s_branch {ok}")
        p(f"s_add_u32 s{sT2}, s{sT2}, 1")
        p(f"s_cmp_gt_u32 s{sT2}, 0x40000")
        p(f"s_cbranch_scc1 {ok}")
        p("s_sleep 2")
        p.add(ml_poll())
        p(f"s_branch {spin}")
    p.label(ok)
    mark('mok')
    pol = [lin_io("buffer_load_dwordx4", a(aPO + 4 * n, 4), sPo, n) for n in range(16)]
    p.add(flat(pol[:4] if emw == 2 else pol))
    if emw:
        p.add(L)
        for dk in range(8):
            p.add([f"v_mul_f32 v{OB[dk] + r}, v{OB[dk] + r}, v{vF[r >> 3]}" for r in range(16)] + (flat(pol[4 + 2 * dk:6 + 2 * dk]) if emw == 2 else []))
        p.add(L2)
        mark('wo')
        seg = idm[:4]
        for k in range(8):
            seg += W[0][2 * k:2 * k + 2] + idm[2 * k + 4:2 * k + 6]
        seg += W[0][16:]
        S = [(ocvt(dk, 0) + ocvt(dk, 1), (5, 9)[dk] if dk < 2 else 8 * dk + 2, min(8 * dk + 7, 59)) for dk in range(8)]
        S += [(wo_dma(3), 8, 94), (sout(0), 67, None)]
        emit(seg, W[1], [f"U{WU[1]}", f"U{WU[1] + 1}"], S, "EW")
        p(f"s_branch {lW1}")
    else:
        S = [(wo_dma(2), 0, 60), (L0 + L + PL(L3), 0, 7)]
        for dk in range(8):
            S.append((PL([f"v_mul_f32 v{OB[dk] + r}, v{OB[dk] + r}, v{vF[r >> 3]}" for r in range(16)]), max(8 + 6 * dk, 4 * dk + 6), min(13 + 6 * dk, 30 + 4 * dk)))
        S.append((L2, 50, 63))
        S += [(ocvt(dk, 0) + ocvt(dk, 1), 38 + 4 * dk, min(43 + 4 * dk, 63)) for dk in range(6)]
        emit(pv(3, Pr=vP2) + idm, W[0], ["U8", "U9"], S, "Em")
    p.label(lW)
    mark('wo')
    wemit(0, [(ocvt(6, 0) + ocvt(6, 1) + ocvt(7, 0) + ocvt(7, 1), 3, 20)])
    p.label(lW1)
    def ch(dk, rb): return OB[dk] + 8 * rb + 4
    vSa, vSel = [ch(0, 0), ch(0, 1), ch(1, 0), ch(1, 1)], [24, 28]
    vX, vXo = [156, 158, 128, 130], 135
    sXo = sKend
    t, t2 = vRWu
    L = [f"s_lshl_b32 s{sXo}, s{sHead}, 1", f"s_add_u32 s{sXo}, s{sXo}, s{sWr}",
         f"s_lshl_b32 s{sT}, s{sU}, 5", f"s_add_u32 s{sXo}, s{sXo}, s{sT}", f"s_mul_i32 s{sXo}, s{sXo}, {4 * 896}",
         f"s_lshl_b32 s{sT}, s{sWc}, 6", f"s_add_u32 s{sXo}, s{sXo}, s{sT}",
         f"v_bfe_u32 v{t}, v{vL16}, 6, 2", f"v_mul_u32_u24 v{vXo}, 896, v{t}",
         f"v_bfe_u32 v{t}, v{vL16}, 9, 1", f"v_lshl_add_u32 v{vXo}, v{t}, 7, v{vXo}",
         f"v_bfe_u32 v{t}, v{vL16}, 8, 1", f"v_lshl_add_u32 v{vXo}, v{t}, 5, v{vXo}",
         f"v_bfe_u32 v{t}, v{vL16}, 4, 2", f"v_lshl_add_u32 v{vXo}, v{t}, 3, v{vXo}"]
    if 's' in tx:
        L.append(f"s_mov_b32 s{sRs}, {OOB}")
    def xio(op, reg, sr, m):
        x = P(f"{op} {v(reg, 2)}, v{vXo}, s[{sr}:{sr+3}], s{sXo} offen offset:{256 * m}{omod if 'store' in op else ''}")
        return [x] if m < 3 else [[P("s_mov_b32 exec_hi, 0"), x, P("s_mov_b32 exec_hi, -1")]]
    rs2 = PL(L) + [NT(f"buffer_load_dword v{vX[m]}, v{vXo}, s[{SO}:{SO+3}], s{sXo} offen offset:{256 * m}") for m in range(otch)] + \
        [y for m in range(4) for y in xio("buffer_load_dwordx2", vX[m], SX, m)]
    def sreg(i, j): return 160 + 16 * i + 4 * j if i < 6 else 140 + 4 * j

    def rload(i, j):
        return P(f"buffer_load_dwordx4 {v(sreg(i, j), 4)}, v{vL16}, s[{SWS}:{SWS+3}], s{sT} offen offset:{j * 1024}{rmod}")

    def rbase(i, b=sRs): return P(f"s_add_u32 s{sT}, s{b}, {i * PHS}")

    def rmf(I):
        return [P(f"{M16} {v(vSa[i >> 1], 4)}, {v(vSel[i & 1], 4)}, {v(sreg(i, j), 4)}, {'0' if j == 0 and i & 1 == 0 else v(vSa[i >> 1], 4)}")
                for i in I for j in range(4)]

    def settle(I):
        top, redo, fb, ok = (p.newlabel(x) for x in ('st', 'sr', 'sf', 'so'))
        R = [sreg(i, j) + 2 for i in I for j in range(4)]
        p(f"s_mov_b32 s{sKnx}, 0")
        p.label(top)
        for n, r in enumerate(R):
            p(f"v_cmp_eq_u32 {'vcc' if n == 0 else f's[{sMk[n % 4]}:{sMk[n % 4]+1}]'}, v{vBig}, v{r}")
            if n >= 2:
                p(f"s_or_b64 vcc, vcc, s[{sMk[(n - 1) % 4]}:{sMk[(n - 1) % 4]+1}]")
        p(f"s_or_b64 vcc, vcc, s[{sMk[(len(R) - 1) % 4]}:{sMk[(len(R) - 1) % 4]+1}]")
        p(f"s_cbranch_scc1 {redo}")
        p.label(ok)
        B = [Label(redo), f"s_add_u32 s{sKnx}, s{sKnx}, 1", f"s_cmp_gt_u32 s{sKnx}, 400", f"s_cbranch_scc1 {fb}"] + ([f"s_sleep {rsleep}"] if rsleep else [])
        for i in I:
            B.append(rbase(i))
            for j in range(4):
                sk = p.newlabel('sk')
                B += [f"v_cmp_eq_u32 vcc, v{vBig}, v{sreg(i, j) + 2}", f"s_cbranch_vccz {sk}", "s_mov_b64 exec, vcc", rload(i, j),
                      "s_mov_b64 exec, -1", Label(sk)]
        B += ["s_waitcnt vmcnt(0)", f"s_branch {top}", Label(fb)] + w_poll(vPl) + lin(spin_check(vPl, 4, w_poll(vPl)))
        for i in I:
            B += [rbase(i)] + [rload(i, j) for j in range(4)]
        side.append(PL(B + ["s_waitcnt vmcnt(0)", f"s_branch {ok}"]))
    EX = {1: [], 2: [], 3: [], 4: [(rs2, 0, 63)], 5: [(sel_setup(vSel, t, t2), 0, 63)], 6: []}
    vOwn, vQ2 = 136, 137
    if two:
        EX[fl[0]].insert(0, ([wsignal(3, vMx[0])], 'bar', 63))
        EX[6].append((PL([f"v_bfe_u32 v{vOwn}, v{vL16}, 4, 4", f"v_cmp_eq_u32 vcc, s{sHead}, v{vOwn}",
                          f"v_cndmask_b32 v{vOwn}, 0, 7, vcc"]), 0, 40))
        EX[6].append((w_poll(vPl), pl6, 63))
    for i in range(1, 7):
        wemit(i, EX[i])
    p.add(sout(1, ("s6",)))
    mark('end')
    vG, vXf, F = 64, 112, 32
    F = [OB[k >> 3] + 8 * ((k >> 2) & 1) + (k & 3) for k in range(16)]

    def sl(I, b=sRs): return [x for i in I for x in [rbase(i, b)] + [rload(i, j) for j in range(4)]]

    def fwork(mid=()):
        for m in range(4):
            for k in range(2):
                p.add([f"v_lshlrev_b32 v{vXf + 4 * m + 2 * k}, 16, v{vX[m] + k}", f"v_and_b32 v{vXf + 4 * m + 2 * k + 1}, 0xffff0000, v{vX[m] + k}"])
        p.wait_tags('fl')
        p.add([f"v_accvgpr_read_b32 v{F[k]}, a{aFA(0) + k}" for k in range(4 * ((27 - nring) >> 3) + 4)])
        p.add(list(mid))
        for q in range(28 - nring, 28):
            d = v(F[4 * (q >> 3)], 4)
            p(f"{M16} {d}, {v(vSel[(q >> 2) & 1], 4)}, {a(aFL(q), 4)}, {d if q & 7 else '0'}")

    def silu():
        p.add([f"v_mul_f32 v{vG + k}, {f2u(-LOG2E)}, v{F[k]}" for k in range(16)])
        p.add([f"v_exp_f32 v{vG + k}, v{vG + k}" for k in range(16)])
        p.add([f"v_add_f32 v{vG + k}, 1.0, v{vG + k}" for k in range(16)])
        p.add([f"v_rcp_f32 v{vG + k}, v{vG + k}" for k in range(16)])
        p.add([f"v_mul_f32 v{vG + k}, v{vG + k}, v{F[k]}" for k in range(16)])
    if not two:
        p.wait_tags("s6")
        p.add(wsignal(7, t))
        p.add(w_poll(vPl))
        if fsp & 2:
            fwork(w_poll(vOwn))
            p.add(w_poll(vQ2))
            stag_spin([vPl, vOwn, vQ2], w_poll, lambda r: [f"v_and_b32 v{r}, 4, v{r}", f"v_cmp_ne_u32 vcc, 4, v{r}"])
        else:
            fwork()
            p.add(lin(spin_check(vPl, 4 if 'z' not in tx else 0, w_poll(vPl))))
        mark('e0')
        p.add(sl(range(7)))
        silu()
    else:
        sNa = sKnx
        la, lb, lc, ld = (p.newlabel(x) for x in ('ta', 'tb', 'tc', 'td'))
        rp = w_poll(vPl) + [P(f"v_or_b32 v{vPl}, v{vPl}, v{vOwn}")]
        p.add([f"v_or_b32 v{vPl}, v{vPl}, v{vOwn}", f"v_and_b32 v{t}, 2, v{vPl}", f"v_cmp_ne_u32 vcc, 2, v{t}",
               f"s_cmp_eq_u64 vcc, 0", f"s_cselect_b32 s{sNa}, s{sRs}, {OOB}"] + sl(range(7 - two), sNa))
        mark('ea')
        fwork()
        silu()
        p.wait_tags("s6")
        p.add(wsignal(7, t))
        p.add(w_poll(vQ2))
        p("s_barrier")
        p.add([f"v_and_b32 v{t}, 4, v{vPl}", f"v_cmp_ne_u32 vcc, 4, v{t}", f"s_cbranch_vccz {lc}",
               f"v_or_b32 v{vPl}, v{vQ2}, v{vOwn}", f"s_cmp_eq_u32 s{sNa}, s{sRs}", f"s_cbranch_scc1 {ld}",
               f"v_mov_b32 v{vQ2}, v{vPl}"] + lin(spin_check(vQ2, 2, rp + [P(f"v_mov_b32 v{vQ2}, v{vPl}")])) + sl(range(7 - two)) + [Label(ld)])
        p.add(lin(spin_check(vPl, 4, rp)))
        p.label(lc)
        mark('e0')
        p.add(sl(range(7 - two, 7)))

    def fin(m):
        p.add([f"v_fmac_f32 v{vXf + 4 * m + q}, v{vSa[m] + q}, v{vG + 4 * m + q}" for q in range(4)])
        p.add([f"v_cvt_pk_bf16_f32 v{vX[m] + k}, v{vXf + 4 * m + 2 * k}, v{vXf + 4 * m + 2 * k + 1}" for k in range(2)])
        p.add(xio("buffer_store_dwordx2", vX[m], SO, m))
    ne = 7 - npz
    p.add(rmf(range(ne)))
    for m in range(ne // 2 if npz else 4):
        fin(m)
    if npz:
        mark('e2')
        settle(range(ne, 7))
        mark('ok')
        p.add(rmf(range(ne, 7)))
        for m in range(ne // 2, 4):
            fin(m)
    stp.finish()
    p.label(done)
    p("s_endpgm")
    for b in side:
        p.add(b)
    return p
```

```python
from build9 import *
B = dict(verbose=False)
build(f"e_a.s", kw=dict(**B))
build(f"e_b.s", kw=dict(wdl=56, **B))
build(f"e_c.s", kw=dict(wdl=56, st0=0, **B))
build(f"e_d.s", kw=dict(wdl=56, c2=0, **B))
build(f"e_e.s", kw=dict(wdl=56, st0=0, c2=0, **B))
build(f"e_f.s", kw=dict(st0=0, **B))
```

```python
from common import *
from sched import *
from k1 import ln_load, ln_compute

M16 = "v_mfma_f32_16x16x32_bf16"
NEG_BIG = f2u(-1.0e30)
THRESH = f2u(2.0 ** 24)
OOB = 0x40000000
F_ML = 32 * MB
F_FL = 33 * MB
F_PO = 96 * MB
F_Q = 112 * MB
WS_SPAN = 128 * MB
F_PF = 38 * MB
F_PS = 66 * MB
PHS = 262144
US = 7 * PHS


class Col:
    def __init__(self): self.L = []
    def __call__(self, t, tags=()): self.L.append(P(t, tags))


def PL(L):
    return [P(x) if isinstance(x, str) else x for x in L]


def keys(kind, base, n):
    return [(kind, base + k) for k in range(n)]


def gen_kl(name="main_kernel", stamp=False, marks=('t1', 't2', 'att', 'fin', 'wo'), bar=1, wr0=2, wr_step=3, dma0=4, dma_step=7,
           st0=-1, st1=24, sig_k=26, LA=8, WG=4, chk=40, vwin=(2, 30), posig=0, verbose=True, nokv=False, t2x='', ctouch=True, wtouch=0, wmod=' nt', amod='', notch=False,
           fe_end=26, chk_ph=1, fdir=3, tx='', rmod=' sc1', kvmod=' sc1', xnmod=' sc1', rsleep=0, psleep=2,
           tpos=0, wo7=0, wdl=49, c2=1, tm0=0x38, ptch=0, pls=0, otch=0, omod='', tdel=(11, 6, 11, 13), tn=24, t2s=(), at0=0, wt0=0, et=0, eta=1, etw=16, lnp=32, lnf=1, peel=0, emw=1, mlp=25, xsc=0, fsp=0, fsl=2, fuse=10, mle=1, fw=6, fp0=26, fps=5, tmask=0x38, tsh=0, tlate=0, dsp=None, npz=0, two=0, pk=-16, fl=(6, 8), pl6=48, evs='10t 10s3 11s3 12s3 13s3 20u 21r 21f 30p 32c 32l2 33l2 40l2 41l2 42l2 43l2 50l2 51l2 52l2 53l2 60l2 61l2 62l2 63l2', ew=(2, 62), nring=14, qd=10, opx=0, vmap=1, krot=0, atouch=False, npre=2, lnh=50, smod=' sc1', fmod=' sc1', ksm=' sc1', fsm=' sc1', qsm=' sc1'):
    p = Prog(name)
    assert tn % 4 == 0 and all(d >= 40 or (16 + tpos + len(t2s) - d) * tn >= n for d, n in zip(tdel, (112, 112, 112, wdl)))
    stp = Stamps(p, stamp, 0)

    def mark(nm):
        if nm in marks:
            stp.mark(marks.index(nm))
    vDK, vLane = 0, 1
    vT = [2, 3, 4, 5, 6, 7]
    vA, vA0 = [8, 9], [28, 29]
    vB = [10, 11, 12, 13]
    vL16, vStQ = 14, 15
    vDA = list(range(16, 24))
    vDB = list(range(24, 28))
    vPoll, vI3 = 30, 31
    vB2 = [[30, 31], [8, 9]]
    FR = 32
    def fC(st, i): return FR + i * 4 + (4 * st if i == 7 else 0)
    def fW(st, j): return FR + 36 + st * 32 + j * 4
    def fW2(st, j): return FR + 36 + st * 16 + j * 4
    vE1 = 148
    vTch = 250
    def acc(isV, ci, wi):
        return 8 * (8 * (ci >> 1) + wi) + 4 * (ci & 1) if isV else 8 * (8 * (ci >> 1) + (wi & 6) + (ci & 1)) + 4 * (wi & 1)
    sTs, sEv, STT = 79 if t2s else 44, 7, 96
    sW, sWr, sWc, sRb, sHead, sIsV = 20, 21, 22, 23, 24, 25
    sA, sB, sMW, sKt, sT, sT2, sOut = 26, 27, 28, 29, 30, 31, 32
    sMA, sAr, sWA, sBst, sU, sC2, sF = 33, 34, 35, 40, 41, 42, 43
    sSc, sWb, sBf, sTo, sFl = 44, 76, 77, 78, 3
    SA, SB, SWS, SD, ST = 8, 12, 16, 48, 52
    SF, SWQ, SWO, SV = 52, 12, 8, 64
    sKind, sRem, sMaskAt, sKo, sVo, sKend, sKnx, sVend = 36, 37, 38, 39, 60, 61, 62, 63
    sVnx, sEnd2, sQo, sSo, sPo, sMl, sWo, sHo = 4, 5, 6, 7, 46, 47, 33, 34
    sMk = [52, 54, 72, 74]
    sPz = 27
    FULL, HOLD, MERGE, PART = 0, 1, 2, 3
    side = []
    done = p.newlabel('done')
    p(f"s_cmp_ge_u32 s2, 256")
    p(f"s_cbranch_scc1 {done}")
    p("s_load_dwordx4 s[60:63], s[0:1], 0")
    p("s_load_dwordx4 s[36:39], s[0:1], 24")
    p("s_load_dwordx4 s[56:59], s[0:1], 88")
    p("s_load_dwordx2 s[68:69], s[0:1], 16")
    p("s_load_dwordx4 s[72:75], s[0:1], 56")
    p("s_load_dwordx2 s[70:71], s[0:1], 40")
    p("s_load_dwordx2 s[100:101], s[0:1], 72")
    if ptch & 1:
        p(f"s_load_dwordx2 s[{STT}:{STT+1}], s[0:1], 80")
    stp.start()

    def code_touch(sr, tv, tid, tmask=tmask):
        if not ctouch:
            return []
        lp = p.newlabel('pc')
        return [[P(f"s_getpc_b64 s[{sr}:{sr+1}]"), Label(lp), P(f"s_sub_u32 s{sr}, s{sr}, {lp}-{name}"), P(f"s_subb_u32 s{sr+1}, s{sr+1}, 0")]] + \
            PL([f"s_and_b32 s{sr+1}, s{sr+1}, 0xffff", f"s_mov_b32 s{sr+2}, .Ltext_end-{name}", f"s_mov_b32 s{sr+3}, 0x00020000",
                f"s_and_b32 s{sT}, s2, {tmask}", f"s_lshl_b32 s{sT}, s{sT}, {12 - tsh}"] + tid +
               ([f"v_lshrrev_b32 v{tv}, {7 + tsh}, v{tv}", f"v_lshlrev_b32 v{tv}, 7, v{tv}"] if tsh else []) +
               [NT(f"buffer_load_dword v{tv}, v{tv}, s[{sr}:{sr+3}], s{sT} offen")])
    if not tlate and tm0 >= 0:
        p.add(code_touch(ST, 254, [f"v_lshlrev_b32 v254, 7, v0"], tm0))
    p(f"v_and_b32 v{vLane}, 63, v0")
    p(f"v_lshrrev_b32 v{vT[0]}, 6, v0")
    p(f"v_readfirstlane_b32 s{sW}, v{vT[0]}")
    p(f"s_lshr_b32 s{sU}, s2, 4")
    if vmap:
        p(f"s_and_b32 s{sRb}, s{sU}, 7")
        p(f"s_lshr_b32 s{sIsV}, s{sU}, 3")
        if vmap == 1:
            p(f"s_xor_b32 s{sIsV}, s{sIsV}, 1")
    else:
        p(f"s_lshr_b32 s{sRb}, s2, 5")
        p(f"s_and_b32 s{sIsV}, s{sU}, 1")
    p(f"s_bfe_u32 s{sT2}, s2, 0x10003")
    p(f"s_and_b32 s{sHead}, s2, 7")
    p(f"s_lshl_b32 s{sHead}, s{sHead}, 1")
    p(f"s_add_u32 s{sHead}, s{sHead}, s{sT2}")
    p(f"s_lshl_b32 s{sF}, s{sHead}, 4")
    p(f"s_add_u32 s{sF}, s{sF}, s{sU}")
    p(f"s_lshr_b32 s{sWr}, s{sW}, 1")
    p(f"s_and_b32 s{sWc}, s{sW}, 1")
    i7, i4 = vT[1], vT[2]

    def a_voffs(stride, dst):
        n = len(dst)
        L = [f"v_and_b32 v{i7}, 7, v{vLane}", f"v_lshrrev_b32 v{i4}, 4, v{vLane}",
             f"s_mul_i32 s{sT}, s{sW}, {8 * n * stride}",
             f"v_mul_u32_u24 v{vT[4]}, {stride}, v{vI3}", f"v_add_u32 v{vT[4]}, s{sT}, v{vT[4]}"]
        for par in range(2):
            t = vT[3]
            L += [f"v_add_u32 v{t}, {4 * par}, v{i4}", f"v_xor_b32 v{t}, v{t}, v{i7}",
                  f"v_lshl_add_u32 v{t}, v{t}, 4, v{vT[4]}"]
            for q in range(par, n, 2):
                L.append(f"v_add_u32 v{dst[q]}, {q * 8 * stride - (q & 3) * 1024}, v{t}")
        return PL(L)

    def w_voffs(scol, stride, dst):
        d = 8 * stride - 1024
        L = [f"v_and_b32 v{i7}, 7, v{vLane}", f"v_mul_u32_u24 v{vT[4]}, {stride}, v{vI3}",
             f"v_add_u32 v{vT[4]}, s{scol}, v{vT[4]}",
             f"v_and_b32 v{vT[3]}, 2, v{vI3}", f"v_xor_b32 v{vT[3]}, v{vT[3]}, v{i7}",
             f"v_lshl_add_u32 v{dst[0]}, v{vT[3]}, 4, v{vT[4]}",
             f"v_xor_b32 v{vT[3]}, 4, v{vT[3]}", f"v_lshl_add_u32 v{dst[1]}, v{vT[3]}, 4, v{vT[4]}",
             f"v_add_u32 v{dst[1]}, {d}, v{dst[1]}",
             f"v_add_u32 v{dst[2]}, {2 * d}, v{dst[0]}", f"v_add_u32 v{dst[3]}, {2 * d}, v{dst[1]}"]
        return PL(L)

    p(f"v_lshrrev_b32 v{vI3}, 3, v{vLane}")
    p.add(a_voffs(2048, vDA))
    p(f"s_lshl_b32 s{sC2}, s{sW}, 7")
    p.add(w_voffs(sC2, 8192, vDB))
    srd(p, SA, 62, 4194304)
    p(f"s_cmp_eq_u32 s{sIsV}, 0")
    p(f"s_cselect_b32 s36, s36, s38")
    p(f"s_cselect_b32 s37, s37, s39")
    srd(p, SB, 36, 8388608)
    p(f"s_lshl_b32 s{sA}, s{sRb}, 19")
    p(f"s_lshl_b32 s{sB}, s{sHead}, 9")
    if krot:
        p(f"s_and_b32 s{sT}, s2, 7" if krot == 1 else f"s_lshr_b32 s{sT}, s2, 5" if krot == 2 else f"s_bfe_u32 s{sT}, s2, 0x20003")
        p(f"s_lshl_b32 s{sT2}, s{sT}, {8 + (krot == 3)}")
        p(f"s_add_u32 s{sA}, s{sA}, s{sT2}")
        p(f"s_lshl_b32 s{sT2}, s{sT}, {20 + (krot == 3)}")
        p(f"s_add_u32 s{sB}, s{sB}, s{sT2}")
    p(f"s_lshl_b32 s{sMW}, s{sW}, 12")
    p(f"s_lshl_b32 s{sWb}, s{sW}, 12")
    p(f"s_lshl_b32 s{sWA}, s{sW}, 13")
    p(f"s_add_u32 s{sWA}, s{sWA}, 65536")
    p(f"s_mov_b32 s{sMA}, s{sWA}")

    def dma4(sm0, madd, voff, sr, so, inc, tags=(), mod="", qs=range(4)):
        L = [P(f"s_add_u32 m0, s{sm0}, {madd}")]
        for q in qs:
            L.append(P(f"buffer_load_dwordx4 v{voff[q]}, s[{sr}:{sr+3}], s{so} offen offset:{q * 1024}{mod} lds", tags))
        if inc:
            L.append(P(f"s_add_u32 s{so}, s{so}, {inc}"))
        return L

    def wrap(r, b): return [P(f"s_and_b32 s{r}, s{r}, {0xffffffff ^ (1 << b)}")] if krot else []
    def dmaW(add, tags=()): return dma4(sMW, add, vDB, SB, sB, 32 * 8192, tags, wmod) + wrap(sB, 23)
    def dmaA(half, tags=(), ma=0): return dma4(sMA, half * 4096 + ma, vDA[4 * half:], SA, sA, 128 if half else 0, tags, amod) + (wrap(sA, 11) if half else [])

    def early_touch(aoff):
        L = [f"v_lshlrev_b32 v253, 11, v0", f"s_and_b32 s{sT}, s{sHead}, 1", f"s_lshl1_add_u32 s{sT}, s{sIsV}, s{sT}",
             f"s_lshl_b32 s{sT}, s{sT}, 7", f"s_add_u32 s{sT}, s{sT}, s{sA}"]
        L += [NT(f"buffer_load_dword v255, v253, s[{SA}:{SA+3}], s{sT} offen offset:{aoff + 512 * k}") for k in range(eta)]
        if etw:
            L += [f"v_bfe_u32 v252, v0, {2 if etw == 16 else 3}, {4 if etw == 16 else 3}", f"v_and_b32 v251, 3, v0",
                  f"v_lshlrev_b32 v252, 13, v252", f"v_lshl_add_u32 v252, v251, 7, v252",
                  f"s_lshl2_add_u32 s{sT}, s{sRb}, s{sW}", f"s_mul_i32 s{sT}, s{sT}, {etw * 8192}", f"s_lshl_b32 s{sT2}, s{sHead}, 9",
                  f"s_add_u32 s{sT}, s{sT}, s{sT2}", f"s_add_u32 s{sT}, s{sT}, {64 * 8192}",
                  NT(f"buffer_load_dword v255, v252, s[{SB}:{SB+3}], s{sT} offen")]
        return PL(L)
    def lin_touch():
        L = [f"v_lshlrev_b32 v253, 6, v0"]
        if at0:
            L += [f"s_lshl_b32 s{sT}, s2, 14", NT(f"buffer_load_dword v255, v253, s[{SA}:{SA+3}], s{sT} offen")]
        if wt0:
            L += [f"s_and_b32 s{sT}, s2, 127", f"s_lshl_b32 s{sT}, s{sT}, {14 if wt0 == 1 else 15}", f"s_add_u32 s{sT}, s{sT}, {64 * 8192}"]
            L += [f"v_lshlrev_b32 v252, 7, v0"] if wt0 == 2 else []
            L += [NT(f"buffer_load_dword v255, v{253 if wt0 == 1 else 252}, s[{SB}:{SB+3}], s{sT} offen")]
        return PL(L)
    mark('d0')
    if at0 == 1:
        p.add(lin_touch())
    if et == 1:
        p.add(early_touch(128))
    if lnf:
        ln_load(p, vLane, sW, vE1, sid=sF)
    p.add(dmaW(0, ('p0',)))
    p.add(dmaA(0, ('p0',)))
    p.add(dmaA(1, ('p0',)))
    if at0 != 1 and (at0 or wt0):
        p.add(lin_touch())
    if et == 2:
        p.add(early_touch(0))
    if tlate == 1:
        p.add(code_touch(ST, 254, [f"v_lshlrev_b32 v254, 7, v0"]))
    if not lnf:
        ln_load(p, vLane, sW, vE1, sid=sF)
    p.add(dmaW(16384, ('p1',)))
    p(f"s_add_u32 s{sMA}, s{sMA}, 65536")
    def pre_dma():
        return [dmaA(0, ('p2',), -32768), dmaA(1, ('p2',), -32768), dmaW(32768, ('p2',)), dmaW(49152), dmaA(0)]
    p.add(pre_dma()[:npre])
    if tlate == 2:
        p.add(code_touch(ST, 254, [f"v_lshlrev_b32 v254, 7, v0"]))
    p(f"s_lshl_b32 s{sT}, s2, 2")
    p(f"s_add_u32 s{sT}, s{sT}, s{sW}")
    p(f"v_lshlrev_b32 v{vT[0]}, 6, v{vLane}")
    p(f"s_lshl_b32 s{sT2}, s{sT}, 12")
    if atouch:
        p.add(NT(f"buffer_load_dword v255, v{vT[0]}, s[{SA}:{SA+3}], s{sT2} offen"))
    if ptch & 1:
        p.add(PL([f"s_and_b32 s{STT+1}, s{STT+1}, 0xffff", f"s_mov_b32 s{STT+2}, {2048 * 896}", f"s_mov_b32 s{STT+3}, 0x00020000",
                  f"s_mul_i32 s{sT2}, s{sT}, 1792"]) + [NT(f"buffer_load_dword v255, off, s[{STT}:{STT+3}], s{sT2}")])
    if ptch & 2:
        srd(p, SWS, 58, WS_SPAN)
        p.add(PL([f"s_lshr_b32 s{sT}, s2, 3", f"s_lshl_b32 s{sT}, s{sT}, 2", f"s_add_u32 s{sT}, s{sT}, s{sW}",
                  f"s_lshl_b32 s{sT}, s{sT}, 20", f"v_lshlrev_b32 v{vT[0]}, {pls}, v{vLane}"]) +
              [NT(f"buffer_load_dword v255, v{vT[0]}, s[{SWS}:{SWS+3}], s{sT} offen")])
    mark('d1')
    if wtouch:
        p(f"v_lshrrev_b32 v{vT[0]}, 2, v{vLane}")
        p(f"v_and_b32 v{vT[1]}, 3, v{vLane}")
        p(f"v_lshlrev_b32 v{vT[0]}, 13, v{vT[0]}")
        p(f"v_lshl_add_u32 v{vT[0]}, v{vT[1]}, 7, v{vT[0]}")
        p(f"s_lshl_b32 s{sT}, s{sW}, 3")
        p(f"s_add_u32 s{sT}, s{sT}, s{sRb}")
        p(f"s_lshl_b32 s{sT}, s{sT}, 18")
        p(f"s_lshl_b32 s{sT2}, s{sHead}, 9")
        p(f"s_add_u32 s{sT}, s{sT}, s{sT2}")
        p.add(NT(f"buffer_load_dword v255, v{vT[0]}, s[{SB}:{SB+3}], s{sT} offen"))
        p(f"s_add_u32 s{sT}, s{sT}, {16 * 8192}")
        p.add(NT(f"buffer_load_dword v255, v{vT[0]}, s[{SB}:{SB+3}], s{sT} offen"))
    r, g, f = vT[0], vT[1], vT[2]
    p(f"v_and_b32 v{r}, 15, v{vLane}")
    p(f"v_lshrrev_b32 v{g}, 4, v{vLane}")
    p(f"v_bfe_u32 v{f}, v{vLane}, 1, 3")
    p(f"s_lshl_b32 s{sT}, s{sWr}, 14")
    p(f"s_add_u32 s{sT}, s{sT}, 65536")
    for ks in range(2):
        t = vT[3]
        p(f"v_add_u32 v{t}, {4 * ks}, v{g}")
        p(f"v_xor_b32 v{t}, v{t}, v{f}")
        p(f"v_lshlrev_b32 v{t}, 4, v{t}")
        p(f"v_lshl_add_u32 v{t}, v{r}, 7, v{t}")
        p(f"v_add_u32 v{vA0[ks]}, s{sT}, v{t}")
        p(f"v_mov_b32 v{vA[ks]}, v{vA0[ks]}")
    p(f"v_and_b32 v{vT[3]}, 3, v{r}")
    p(f"v_lshlrev_b32 v{vT[3]}, 6, v{vT[3]}")
    p(f"v_lshl_add_u32 v{vStQ}, v{g}, 4, v{vT[3]}")
    p(f"v_lshrrev_b32 v{vT[3]}, 2, v{r}")
    p(f"v_mul_u32_u24 v{vT[3]}, {4096 + 512}, v{vT[3]}")
    p(f"s_lshl_b32 s{sT}, s{sHead}, 8")
    p(f"v_xor_b32 v{vT[3]}, s{sT}, v{vT[3]}")
    p(f"v_add_u32 v{vStQ}, v{vStQ}, v{vT[3]}")
    p(f"v_lshlrev_b32 v{vL16}, 4, v{vLane}")
    r4, c = vT[0], vT[3]
    p(f"v_bfe_u32 v{r4}, v{vLane}, 2, 2")
    p(f"v_and_b32 v{c}, 3, v{vLane}")
    t, t2 = vT[4], vT[5]
    p(f"v_lshl_add_u32 v{t}, v{g}, 3, v{r4}")
    p(f"v_lshlrev_b32 v{t}, 7, v{t}")
    p(f"v_lshl_add_u32 v{t}, v{c}, 3, v{t}")
    p(f"s_lshl_b32 s{sT}, s{sWc}, 13")
    p(f"v_add_u32 v{t}, s{sT}, v{t}")
    p(f"v_lshrrev_b32 v{t2}, 1, v{r4}")
    p(f"v_and_b32 v{c}, 1, v{g}")
    p(f"v_lshl_add_u32 v{t2}, v{c}, 1, v{t2}")
    for nb in range(4):
        p(f"v_xor_b32 v{c}, {nb}, v{t2}")
        p(f"v_lshl_add_u32 v{vB[nb]}, v{c}, 5, v{t}")
    srd(p, SWS, 58, WS_SPAN)
    p(f"v_lshlrev_b32 v2, 4, v0")
    for k in range(4, 8):
        p(f"v_mov_b32 v{k}, 0")
    p(f"s_lshl_b32 s{sT}, s{sF}, 12")
    p(f"s_add_u32 s{sT}, s{sT}, {F_ML}")
    p(f"buffer_store_dwordx4 v[4:7], v2, s[{SWS}:{SWS+3}], s{sT} offen sc1")
    p(f"s_lshl_b32 s{sFl}, s{sF}, 10")
    p(f"s_add_u32 s{sFl}, s{sFl}, {F_FL}")
    p(f"v_and_b32 v2, 0x3f0, v2")
    p(f"buffer_store_dwordx4 v[4:7], v2, s[{SWS}:{SWS+3}], s{sFl} offen sc1")
    p(f"v_add_u32 v{vDK}, s{sWb}, v{vL16}")
    srd(p, SD, 56, 256)
    p("s_mov_b64 s[56:57], s[60:61]")
    p(f"s_mov_b32 s{sAr}, 0")
    p(f"s_mov_b32 s{sKt}, {2 if peel else 1}")
    p(f"s_cmp_eq_u32 s{sW}, 0")
    p(f"s_cselect_b32 s{sEv}, {4 if peel else 3}, 0")

    def ln_items():
        c = Col()
        ln_compute(c, vLane, vE1, 58, rowmajor=True, scale=LOG2E / 16 if xsc else None)
        G, cur = [], None
        for it in c.L:
            if it.text.startswith("s_mov_b32 exec_hi, 0x"):
                cur = []
            elif it.text.startswith("s_mov_b32 exec_hi, -1"):
                for k in range(0, len(cur), 4):
                    G.append([P("s_mov_b32 exec_hi, 0x00ffffff")] + cur[k:k + 4] + [P("s_mov_b32 exec_hi, -1")])
                cur = None
            elif cur is not None:
                cur.append(it)
            else:
                G.append(it)
        return chains(G)

    def cread(par, i):
        return P(f"ds_read_b128 {v(fC(par, i), 4)}, v{vA[par]} offset:{i * 2048}")

    def wreads(par):
        L = []
        for j in range(8):
            off = par * 16384 + (j >> 2) * 4096
            L += [P(f"ds_read_b64_tr_b16 {v(fW(par, j), 2)}, v{vB[j & 3]} offset:{off}"),
                  P(f"ds_read_b64_tr_b16 {v(fW(par, j) + 2, 2)}, v{vB[j & 3]} offset:{off + 512}")]
        return L

    def wunit(j): return 4 + (j + 2) % 6

    def cread2(j, i):
        return P(f"ds_read_b128 {v(fC(j & 1, i), 4)}, v{vA0[j & 1]} offset:{((j >> 1) % 4) * 16384 + i * 2048}")

    def wreads2(j):
        L = []
        u = wunit(j) - 4
        for jj in range(4):
            off = (u % 4) * 16384 + (jj >> 1) * 8192
            for h in range(2):
                L.append(P(f"ds_read_b64_tr_b16 {v(fW2(j & 1, jj) + 2 * h, 2)}, v{vB2[u // 4][jj & 1]} offset:{off + 512 * h}"))
        return L

    def dmaW2(j):
        if j < 14:
            return dma4(sWb, wunit(j) * 16384, vDA, SF, sBf, 32 * 3584, (f"X{j}",))
        return dma4(sWb, wunit(j) * 16384, vDB, SWQ, sB, 32 * 8192, (f"X{j}",))

    def dmaA2(s_, qs=range(4)):
        inc = (128 if s_ != 6 else -768 - 2 * MB * xsc) if 3 in qs else 0
        return dma4(sWb, (s_ % 4) * 16384, vDA[4:], SWS, sA, inc, (f"Y{s_}",), xnmod, qs)

    def advance():
        L = [f"s_add_u32 s{sMA}, s{sWA}, s{sAr}", f"s_add_u32 s{sAr}, s{sAr}, 32768",
             f"s_cmp_eq_u32 s{sAr}, 98304", f"s_cselect_b32 s{sAr}, 0, s{sAr}"]
        L2 = [f"v_add_u32 v{vA[k]}, s{sAr}, v{vA0[k]}" for k in range(2)]
        L2 += [f"v_xor_b32 v{x}, 0x8000, v{x}" for x in vB]
        return chains(PL(L)), PL(L2)

    def mf(par, isV, i, j, first=False):
        c_, w_ = v(fC(par, i), 4), v(fW(par, j), 4)
        x, y = (c_, w_) if (isV if not opx else opx == 1) else (w_, c_)
        d = a(acc(isV, i, j), 4)
        return P(f"{M16} {d}, {x}, {y}, {'0' if first else d}")

    def kstep(par, isV, first=False, vm=None, wt=(), dl=None, last=False, adv=True, fixed=(), pl=(), tag=None, pdl=()):
        G = Gaps([mf(par, isV, i, j, first) for i in range(8) for j in range(8)])
        if vm is not None:
            G.at(bar - 1, P(f"s_waitcnt vmcnt({vm}) lgkmcnt(0)"))
        else:
            G.at(bar - 1, WaitTag(tuple(wt) + tuple(keys('v', FR, 100))))
        G.at(bar, P("s_barrier"))
        if not last:
            wr_, cr = wreads(par ^ 1), (lambda i: cread(par ^ 1, i))
            G.at(62, WaitTag(keys('v', fC(par ^ 1, 0), 4) + keys('v', fW(par ^ 1, 0), 4 * bar)))
        else:
            wr_, cr = wreads2(0), (lambda i: cread2(0, i))
            G.at(63, WaitTag(keys('v', fC(0, 5), 4)))
        for n, it in enumerate(wr_):
            G.at(wr0 + n * wr_step, it)
        G.at(wr0 + 1, cr(7))
        for i in range(7):
            G.at(8 * i + 7, cr(i))
        if dl is None:
            dl = [dmaW(par * 16384, tag[0] if tag else ()) + ([P(f"s_xor_b32 s{sMW}, s{sMW}, 0x8000")] if par else []),
                  dmaA(par ^ 1, tag[1] if tag else ())]
        dl = list(pdl) + dl
        step = dma_step if len(dl) <= 2 else 58 // (4 * len(dl) - 1)
        d = 0
        for grp in dl:
            G.at(dma0 + d * step - 1, grp[0])
            for q in range(4):
                G.at(dma0 + (d + q) * step, grp[1 + q])
            for k, x in enumerate(grp[5:]):
                G.at(dma0 + (d + 3) * step + 1 + k, x)
            d += 4
        for sl, it in fixed:
            G.at(sl, it)
        if adv and par == 0:
            s_, v_ = advance()
            lo = max(40, dma0 + (d - 4) * step)
            G.place(s_, lo, max(55, lo + 5))
            G.place(v_, max(56, lo + 6), 63)
        for items, lo, hi in pl:
            G.place(items, lo, hi)
        p.add(G.out())

    def sidecall(cond, body, base='sd', br='s_cbranch_scc1'):
        lb, lr = p.newlabel(base), p.newlabel(base + 'r')
        side.append([Label(lb)] + body + [P(f"s_branch {lr}")])
        return Br(P(cond), P(f"{br} {lb}"), Label(lr))

    def brl(b): return [b.cond, b.br, b.lab]

    def signal(val, tmp):
        return PL([f"v_mov_b32 v{tmp}, {val}", f"s_mov_b64 exec, 1",
                   f"buffer_store_byte v{tmp}, off, s[{SD}:{SD+3}], s{sF} sc1", f"s_mov_b64 exec, -1"])

    def signal2(off, tmp):
        return PL([f"v_mov_b32 v{tmp}, 1", f"s_mov_b64 exec, 1",
                   f"buffer_store_dword v{tmp}, off, s[{SWS}:{SWS+3}], s{sFl} offset:{off} sc1", f"s_mov_b64 exec, -1"])

    def poll_xn(dst):
        return PL([f"v_lshrrev_b32 v{dst}, 2, v{vL16}", f"buffer_load_dword v{dst}, v{dst}, s[{SD}:{SD+3}], 0 offen sc1"])

    def poll_kv(dst):
        return PL([f"v_and_b32 v{dst}, 0xf0, v{vL16}", f"v_lshlrev_b32 v{dst}, 6, v{dst}", f"s_and_b32 s{sT}, s{sFl}, 0xffffc000",
                   f"buffer_load_dword v{dst}, v{dst}, s[{SWS}:{SWS+3}], s{sT} offen sc1"])

    def poll16(dst, srow, nt=False):
        ld = f"buffer_load_dword v{dst}, v{dst}, s[{SD}:{SD+3}], s{sT} offen sc1"
        return PL([f"v_bfe_u32 v{dst}, v{vL16}, 2, 4", f"s_lshl_b32 s{sT}, s{srow}, 4", NT(ld) if nt else ld])

    def spin_check(reg, mask, reissue):
        ok, spin, sp2 = p.newlabel('pok'), p.newlabel('spin'), p.newlabel('sp2')
        tst = [f"v_and_b32 v{reg}, {mask}, v{reg}", f"v_cmp_ne_u32 vcc, {mask}, v{reg}"]
        side.append(PL([Label(spin), f"s_mov_b32 s{sT2}, 0", Label(sp2), f"s_add_u32 s{sT2}, s{sT2}, 1",
                        f"s_cmp_gt_u32 s{sT2}, 0x40000", f"s_cbranch_scc1 {ok}", f"s_sleep {psleep}"] + reissue + tst +
                       [f"s_cbranch_vccnz {sp2}", f"s_branch {ok}"]))
        return [P(tst[0]), Br(P(tst[1]), P(f"s_cbranch_vccnz {spin}"), Label(ok))]

    def stag_spin(R, issue, test, onok=None):
        top, ok = p.newlabel('sg'), p.newlabel('sgo')
        p(f"s_mov_b32 s{sT2}, 0")
        p.label(top)
        for r in R:
            lk = p.newlabel('sgk') if onok else ok
            p.add(test(r) + [f"s_cbranch_vccz {lk}"] + issue(r))
            if onok:
                side.append(PL([Label(lk)] + onok(r) + [f"s_branch {ok}"]))
        p.add([f"s_add_u32 s{sT2}, s{sT2}, 1", f"s_cmp_lt_u32 s{sT2}, 0x20000", f"s_cbranch_scc1 {top}"])
        p.label(ok)

    def touch_setup():
        l1, l2, lj = (p.newlabel(x) for x in ('t1', 't2', 'tj'))
        t, t2 = vT[0], vT[1]
        sb, sLg, sRs = 46, sC2, sOut
        L = [f"s_cmp_ge_u32 s{sW}, 2", f"s_cbranch_scc1 {l2}",
             f"s_cmp_lg_u32 s{sW}, 0", f"s_cbranch_scc1 {l1}",
             f"s_mov_b64 s[{sb}:{sb+1}], s[68:69]",
             f"s_mul_i32 s{sT}, s{sU}, {28 * 8192}", f"s_lshl_b32 s{sT2}, s{sHead}, 9", f"s_add_u32 s{sT}, s{sT}, s{sT2}",
             f"s_mov_b32 s{STT+2}, {27 * 8192 + 512}", f"s_mov_b32 s{sLg}, 2", f"s_mov_b32 s{sRs}, 8192",
             f"s_mov_b32 s{sTs}, {tn // 4 * 8192}", f"s_mov_b32 s{sTo}, {-tdel[0]}", f"s_branch {lj}", Label(l1),
             f"s_cmp_eq_u32 s{sIsV}, 0", f"s_cselect_b64 s[{sb}:{sb+1}], s[72:73], s[74:75]",
             f"s_mul_i32 s{sT}, s{sRb}, {56 * 3584}", f"s_min_u32 s{sT2}, s{sHead}, 13",
             f"s_lshl_b32 s{sT2}, s{sT2}, 8", f"s_add_u32 s{sT}, s{sT}, s{sT2}",
             f"s_mov_b32 s{STT+2}, {55 * 3584 + 256}", f"s_mov_b32 s{sLg}, 1", f"s_mov_b32 s{sRs}, 3584",
             f"s_mov_b32 s{sTs}, {tn // 2 * 3584}", f"s_mov_b32 s{sTo}, {-tdel[1]}", f"s_branch {lj}", Label(l2),
             f"s_mov_b32 s{STT+2}, {112 * 128}", f"s_cmp_eq_u32 s{sW}, 2",
             f"s_cselect_b64 s[{sb}:{sb+1}], s[70:71], s[100:101]", f"s_cselect_b32 s{STT+2}, s{STT+2}, {wdl * 128}",
             f"s_cselect_b32 s{sTo}, {-tdel[2]}, {-tdel[3]}", f"s_mul_i32 s{sT}, s{sF}, s{STT+2}",
             *([f"s_cselect_b32 s{sT2}, 16, 14", f"s_cmp_lt_u32 s{sHead}, s{sT2}", f"s_cselect_b32 s{STT+2}, s{STT+2}, 0", f"s_cselect_b32 s{sT}, s{sT}, 0"] if wdl == 56 else []),
             f"s_mov_b32 s{sLg}, 0", f"s_mov_b32 s{sRs}, 128",
             f"s_mov_b32 s{sTs}, {tn * 128}", Label(lj),
             f"s_add_u32 s{STT}, s{sb}, s{sT}", f"s_addc_u32 s{STT+1}, s{sb+1}, 0", f"s_and_b32 s{STT+1}, s{STT+1}, 0xffff",
             f"s_mov_b32 s{STT+3}, 0x00020000", f"s_mul_i32 s{sTo}, s{sTs}, s{sTo}",
             f"v_mul_u32_u24 v{t}, {tn}, v{vLane}", f"v_lshrrev_b32 v{t}, 6, v{t}",
             f"v_lshrrev_b32 v{t2}, s{sLg}, v{t}", f"v_mul_u32_u24 v{vTch}, s{sRs}, v{t2}",
             f"v_lshlrev_b32 v{t2}, s{sLg}, v{t2}", f"v_sub_u32 v{t}, v{t}, v{t2}",
             f"v_lshl_add_u32 v{vTch}, v{t}, 7, v{vTch}"]
        return PL(L)

    def f_setup():
        L = [f"s_cmp_eq_u32 s{sWr}, 0", f"s_cselect_b32 s{SF}, s72, s74", f"s_cselect_b32 s{SF+1}, s73, s75",
             f"s_and_b32 s{SF+1}, s{SF+1}, 0xffff", f"s_cmp_lt_u32 s{sHead}, 14",
             f"s_cselect_b32 s{SF+2}, {448 * 3584}, 0", f"s_mov_b32 s{SF+3}, 0x00020000",
             f"s_lshl_b32 s{sBf}, s{sHead}, 8", f"s_lshl_b32 s{sC2}, s{sWc}, 7"]
        return chains(PL(L) + w_voffs(sC2, 3584, vDA))

    def job_setup():
        hb = sC2
        L = [f"s_lshl_b32 s{hb}, s{sHead}, 20", f"s_add_u32 s{sT}, s{sU}, 1", f"s_lshl_b32 s{sT}, s{sT}, 16",
             f"s_add_u32 s{sKend}, s{hb}, s{sT}", f"s_sub_u32 s{sT2}, s{sKend}, {36 * 16384}",
             f"s_mov_b32 s{sMaskAt}, 0", f"s_xor_b32 s{sT}, s{sF}, 15",
             f"s_lshl_b32 s{sQo}, s{sF}, 16", f"s_add_u32 s{sQo}, s{sQo}, {F_Q}",
             f"s_cmp_ge_u32 s{sU}, 9", f"s_cselect_b32 s{sKind}, {MERGE}, {FULL}", f"s_cselect_b32 s{sRem}, 8, s{sU}",
             f"s_cselect_b32 s{sKo}, s{sT2}, s{hb}", f"s_cselect_b32 s{sPo}, s{sT}, s{sF}",
             f"s_cselect_b32 s{sQo}, s{sQo}, {OOB}",
             f"s_sub_u32 s{sT}, 7, s{sU}", f"s_lshl_b32 s{sT}, s{sT}, 16", f"s_add_u32 s{sEnd2}, s{hb}, s{sT}",
             f"s_cmp_le_u32 s{sU}, 6", f"s_cselect_b32 s{sKind}, {HOLD}, s{sKind}", f"s_cselect_b32 s{sKnx}, s{hb}, {OOB}",
             f"s_mov_b32 s{sVo}, s{sKo}", f"s_mov_b32 s{sVend}, s{sKend}", f"s_mov_b32 s{sVnx}, s{sKnx}",
             f"s_lshl_b32 s{sT}, s{sW}, 14", f"s_add_u32 s{sQo}, s{sQo}, s{sT}",
             f"s_lshl_b32 s{sPo}, s{sPo}, 2", f"s_add_u32 s{sPo}, s{sPo}, s{sW}",
             f"s_lshl_b32 s{sMl}, s{sPo}, 10", f"s_add_u32 s{sMl}, s{sMl}, {F_ML}",
             f"s_lshl_b32 s{sPo}, s{sPo}, 14", f"s_add_u32 s{sPo}, s{sPo}, {F_PO}",
             f"s_mul_i32 s{sSo}, s{sU}, {US}",
             f"s_lshl_b32 s{sT}, s{sW}, 14", f"s_add_u32 s{sSo}, s{sSo}, s{sT}", f"s_add_u32 s{sSo}, s{sSo}, {F_PS + (OOB if 'S' in tx else 0)}",
             f"s_add_u32 s{SV}, s58, {WS_V}", f"s_addc_u32 s{SV+1}, s59, 0", f"s_and_b32 s{SV+1}, s{SV+1}, 0xffff",
             f"s_mov_b32 s{SV+2}, {KV_BYTES}", f"s_mov_b32 s{SV+3}, 0x00020000"]
        return chains(PL(L))

    def out_setup():
        L = [f"s_lshl_b32 s{sT}, s{sHead}, 6", f"s_lshl_b32 s{sT2}, s{sRb}, 3", f"s_add_u32 s{sT}, s{sT}, s{sT2}",
             f"s_lshl_b32 s{sT2}, s{sWr}, 2", f"s_add_u32 s{sT}, s{sT}, s{sT2}", f"s_lshl_b32 s{sOut}, s{sT}, 14",
             f"s_lshl_b32 s{sT2}, s{sWc}, 13", f"s_add_u32 s{sOut}, s{sOut}, s{sT2}",
             f"s_lshl_b32 s{sT2}, s{sIsV}, 24", f"s_add_u32 s{sOut}, s{sOut}, s{sT2}",
             *([f"s_mov_b32 s{sOut}, {OOB}"] if nokv else []),
             f"s_mov_b32 s{SWQ}, s68", f"s_and_b32 s{SWQ+1}, s69, 0xffff", f"s_mov_b32 s{SWQ+2}, {448 * 8192}",
             f"s_lshl_b32 s{sB}, s{sHead}, 9",
             f"s_mov_b32 s{SWO}, s70", f"s_and_b32 s{SWO+1}, s71, 0xffff", f"s_mov_b32 s{SWO+2}, {4096 * 896}",
             f"s_mul_i32 s{sWo}, s{sHead}, {256 * 896}",
             f"s_mul_i32 s{sHo}, s{sU}, {US}", f"s_lshl_b32 s{sT}, s{sWr}, 16", f"s_add_u32 s{sHo}, s{sHo}, s{sT}",
             f"s_lshl_b32 s{sT}, s{sWc}, 17", f"s_add_u32 s{sHo}, s{sHo}, s{sT}", f"s_add_u32 s{sHo}, s{sHo}, {F_PF}",
             f"s_cmp_lt_u32 s{sHead}, {0 if 'h' in tx else 14}", f"s_cselect_b32 s{sHo}, s{sHo}, {OOB}",
             f"s_mov_b32 s{sSc}, {f2u(LOG2E / 16)}", f"s_mov_b32 s{sSc+1}, {f2u(LOG2E / 16)}",
             f"s_mov_b32 s{sBst}, {f2u(-LOG2E)}"]
        return chains(PL(L))

    def rd2_setup():
        L = [f"s_add_u32 s{sT}, s{sWA}, 0", f"s_lshl_b32 s{sT}, s{sWr}, 14", f"s_add_u32 s{sT}, s{sT}, 65536"]
        L += [f"v_subrev_u32 v{vA0[k]}, s{sT}, v{vA0[k]}" for k in range(2)]
        L += [f"s_lshl_b32 s{sT}, s{sWr}, 12", f"s_lshl_b32 s{sT2}, s{sWc}, 13", f"s_sub_u32 s{sT}, s{sT}, s{sT2}",
              f"s_add_u32 s{sT}, s{sT}, {65536 - 0x8000}", f"s_cmp_lg_u32 s{sWc}, 0", f"s_cselect_b64 vcc, -1, 0"]
        for k in range(2):
            L += [f"v_cndmask_b32 v{vB2[0][k]}, v{vB[k]}, v{vB[2 + k]}, vcc", f"v_add_u32 v{vB2[0][k]}, s{sT}, v{vB2[0][k]}"]
        return chains(PL(L[1:]))

    STK = {sn: k for k, sn in spread(list(range(32)), st0, st1)}
    def kvstore(sn, data):
        L = [P(f"buffer_store_dwordx4 {data}, v{vL16}, s[{SWS}:{SWS+3}], s{sOut} offen offset:{(sn & 3) * 1024}{ksm}", ('kv',))]
        if sn & 3 == 3:
            L.append(P(f"s_add_u32 s{sOut}, s{sOut}, {12288 if sn & 4 else 4096}"))
        return L

    def unit(sn, T, direct):
        L = [P(f"v_accvgpr_read_b32 v{T + r}, a{8 * sn + r}") for r in range(8)]
        L += [P(f"v_cvt_pk_bf16_f32 v{T + r}, v{T + 2 * r}, v{T + 2 * r + 1}") for r in range(4)]
        if direct:
            return L + kvstore(sn, v(T, 4))
        return L + [P(f"v_accvgpr_write_b32 a{8 * sn + r}, v{T + r}") for r in range(4)]

    p.add(touch_setup())
    mark('d2')
    nl0 = len(ln_items()) * lnp // 100
    for x in ln_items()[:nl0]:
        p.add(x.ops if isinstance(x, Chain) else x)
    p.wait_tags('p0')
    p("s_barrier")
    mark('p')
    p.add([cread(0, 0)] + wreads(0) + [cread(0, i) for i in range(1, 8)])
    lV, lT2 = p.newlabel('vpath'), p.newlabel('t2')
    p(f"s_cmp_lg_u32 s{sIsV}, 0")
    p(f"s_cbranch_scc1 {lV}")

    def tid128(r):
        return [f"v_lshlrev_b32 v{r}, 3, v{vL16}", f"s_lshl_b32 s{sT2}, s{sW}, 13", f"v_add_u32 v{r}, s{sT2}, v{r}"]

    def tile1(isV):
        G = ln_items()[nl0:]
        h = len(G) * lnh // 100
        def tch(): return [(bar + 1, NT(f"buffer_load_dword v255, v{vTch}, s[{STT}:{STT+3}], s{sTo} offen")), (9, P(f"s_add_u32 s{sTo}, s{sTo}, s{sTs}"))]
        def tch2():
            q = dma0 + 4 * dma_step + 2
            return [(q, tch()[0][1]), (q + 2, tch()[1][1])] if tpos else []
        assert not (tpos and (peel or npre != 2))
        if peel:
            h = [len(G) * x // 100 for x in peel]
            kstep(0, isV, first=True, wt=('p1',), pl=[(G[:h[0]], 8, 63)], pdl=pre_dma()[npre:])
            kstep(1, isV, wt=('p2',), pl=[(G[h[0]:h[1]], 0, 63)])
            kstep(0, isV, vm=17, fixed=tch(), pl=[(G[h[1]:h[2]], 2, 63)])
            kstep(1, isV, vm=17, pl=[(G[h[2]:], 2, 63)])
        else:
            kstep(0, isV, first=True, wt=('p1',), pl=[(G[:h], 8, 63)], pdl=pre_dma()[npre:])
            mark('k1')
            kstep(1, isV, wt=('p2',), fixed=tch2(), pl=[(G[h:], 0, 63)])
        mark('k2')
        lab = p.newlabel('loop')
        p.raw(".p2align 6")
        p.label(lab)
        if stamp and 'km' in marks:
            r_ = stp.sb + 6 + 2 * marks.index('km')
            p.add(brl(sidecall(f"s_cmp_eq_u32 s{sKt}, 6", [P(f"{stp.op} s[{r_}:{r_+1}]"), P("s_waitcnt lgkmcnt(0)")])))
        ev0 = sidecall(f"s_cmp_eq_u32 s{sKt}, s{sEv}", signal(1, vT[0]))
        kstep(0, isV, vm=21 if tpos else 17, fixed=[] if tpos else tch(), pl=[([ev0], 6, 20)])
        kstep(1, isV, vm=17, fixed=tch2() + [(58, P(f"s_add_u32 s{sKt}, s{sKt}, 1")), (61, P(f"s_cmp_lt_u32 s{sKt}, 12"))])
        p(f"s_cbranch_scc1 {lab}")
        mark('k24')
        def tg(k): return ((f"W{k + 4}",), (f"A{(k + 5) // 2}",))
        kstep(0, isV, vm=16, tag=tg(24), fixed=tch(), pl=[(poll_xn(vPoll), 6, 20), (job_setup(), 21, 63)])
        kstep(1, isV, vm=17, tag=tg(25), fixed=tch(), pl=[(code_touch(ST, 254, tid128(254)) if c2 else [], 30, 63)])
        kstep(0, isV, vm=17 + (ctouch and c2), tag=tg(26), fixed=tch(), pl=[(f_setup(), 2, 60)])
        xs = PL([f"s_mul_i32 s{sA}, s{sU}, {128 * 896}", f"s_add_u32 s{sA}, s{sA}, {WS_XN}"])
        kstep(1, isV, wt=("W28", "A14"), dl=[dmaW(16384, ("W31",)), dmaW2(0)], fixed=tch(),
              pl=[(spin_check(vPoll, 0x01010101, poll_xn(vPoll)) + xs + a_voffs(896, vDA[4:]), 2, 60)])
        kstep(0, isV, wt=("W29",), dl=[dmaA2(0), dmaW2(1)], fixed=tch() + [(2, P("s_load_dwordx2 s[28:29], s[0:1], 80"))])
        kstep(1, isV, wt=("W30", "A15"), dl=[dmaA2(1), dmaW2(2)], pl=[(rd2_setup(), 2, 60)])
        kstep(0, isV, wt=("W31",), dl=[dmaA2(2), dmaW2(3)], adv=False, pl=[(out_setup(), 2, 60)])
        early = []
        for n, sn in enumerate([s_ for s_ in range(32) if STK[s_] < 0]):
            early += unit(sn, 232 + 8 * (n % 3), True)
        w2 = PL([f"v_add_u32 v{vB2[1][k]}, 65536, v{vB2[0][k]}" for k in range(2)])
        kstep(1, isV, wt=("X0", "Y0"), dl=[dmaA2(3), dmaW2(4), dmaW2(5)], last=True, pl=[(w2, 2, 10), (early, 18, 63)])

    tile1(False)
    p(f"s_branch {lT2}")
    p.label(lV)
    tile1(True)
    p.label(lT2)
    mark('t1')
    vMx, vMx2, vRWu = [2, 3], [4, 5], [6, 7]
    vPs = [8, 9]
    vDW = [10, 11, 12, 13]
    vL16h, vRW, vBig, vQr = 16, 17, 18, 19
    vNegM, vLs = [20, 21], [22, 23]
    vQw = [24, 25]
    vPl = vLane
    vP, vE, vS, vC = 24, 48, [64, 80], 112
    OB = [32, 96, 160, 176, 192, 208, 224, 240]
    def O(db, rb): return OB[db >> 1] + 8 * rb + 4 * (db & 1)
    vH = 128
    vML, vInv, vStS1, vI, vWb = 128, [132, 133], 134, 136, 144
    aQ, aR, aPO = 0, 64, 128
    aH, aFP = 128, 192
    vF2a, vHw, vHr, vF2r = [100, 101, 102, 103], [104, 105], 106, 224
    sSide, sFst, sHp, sFw, sFp, sWd = 100, 101, 23, 25, 35, 77
    SWD, SX, SO, SPZ = 52, 48, 68, 56
    sIt, sRf, sRs = 26, 28, 29
    vLs8, vLo, vFp = 136, [134, 135], 131
    def aFL(q): return 192 + 4 * (q % nring)
    def aFA(m): return 192 + 4 * nring + 4 * m
    EV = [(int(x[0]), int(x[1]), x[2], int(x[3:] or 0)) for x in evs.split()]
    assert sum(x[3] for x in EV if x[2] == 's') == 4 * (6 - fdir) and sum(x[3] for x in EV if x[2] == 'l') == 28
    assert npz == 0 and aFA((27 - nring) >> 3) <= 252
    ps = {k: [4 * x[0] + x[1] for x in EV if x[2] == k for _ in range(max(x[3], 1))] for k in 'slfpucr'}
    assert ps['f'][0] > max(ps['s']) and all(ps['l'][q] > ps['l'][q - nring] for q in range(nring, 28))
    assert ps['f'][0] < ps['p'][0] < ps['c'][0] <= ps['l'][0] and max(ps['u'][0], ps['r'][0]) < ps['l'][0] and max(x[0] for x in EV) <= 6
    vDum, vE0, vE1_ = 128, 129, 130
    assert EV == sorted(EV, key=lambda x: x[:2])
    def ring(n): return aR + 4 * (n % 16)

    def kv_dma(isV, tile):
        sl = tile % 4
        unit_ = [2, 3, 0, 1][sl] if isV else 4 + sl
        so, sr, se, sn = (sVo, SV, sVend, sVnx) if isV else (sKo, SWS, sKend, sKnx)
        L = dma4(sWb, unit_ * 16384, [vDK] * 4, sr, so, 16384, (f"U{unit_}",), kvmod)
        if sl == 3:
            L.append(Chain(PL([f"s_cmp_eq_u32 s{so}, s{se}", f"s_cselect_b32 s{so}, s{sn}, s{so}",
                               f"s_cselect_b32 s{se}, s{sEnd2}, s{se}", f"s_cselect_b32 s{sn}, {OOB}, s{sn}"])))
        return L

    def lin(L):
        out = []
        for x in L:
            if isinstance(x, Chain):
                out += x.ops
            elif isinstance(x, Br):
                out += brl(x)
            else:
                out.append(x)
        return out

    def qk(tile, n0):
        L = []
        S = vS[tile % 2]
        for n in range(16):
            rd = [P(f"ds_read_b128 {a(ring(n0 + n), 4)}, v{vL16h} offset:{(tile % 4) * 16384 + n * 1024}")]
            m = []
            for rb in range(2):
                o = 8 * rb + 4 * (n & 1)
                m.append(P(f"{M16} {v(S + o, 4)}, {a(ring(n0 + n), 4)}, {a(aQ + 8 * (n >> 1) + 4 * rb, 4)}, {v((vC if n < 2 else S) + o, 4)}"))
            L.append((m, rd))
        return L

    def q_poll():
        return PL([f"s_xor_b32 s{sT}, s{sFl}, 0x3c00", f"buffer_load_dword v{vPl}, off, s[{SWS}:{SWS+3}], s{sT} offset:128 sc1"])

    def fstore(data, so, rb4, nph=1, tg='fs'):
        return PL([P(f"buffer_store_dwordx4 {data}, v{vStQ}, s[{SWS}:{SWS+3}], s{so} offen{fsm}", (tg,)),
                   f"s_add_u32 s{so}, s{so}, {16384 if rb4 < 3 else nph * PHS - 49152}" if nph else f"s_mov_b32 s{so}, {OOB}"])

    def wsignal(val, tmp):
        return PL([f"v_mov_b32 v{tmp}, {val}", f"s_mov_b64 exec, 1",
                   f"buffer_store_dword v{tmp}, off, s[{SWS}:{SWS+3}], s{sFw} sc1", f"s_mov_b64 exec, -1"])

    def w_poll(dst):
        return PL([f"v_and_b32 v{dst}, 0xf0, v{vL16}", f"v_lshlrev_b32 v{dst}, 10, v{dst}",
                   f"buffer_load_dword v{dst}, v{dst}, s[{SWS}:{SWS+3}], s{sFp} offen sc1"])

    def sel_setup(D, t, t2):
        L = [f"v_and_b32 v{t}, 16, v{vL16}", f"v_mov_b32 v{t2}, 0x3f80", f"v_lshlrev_b32 v{t}, v{t}, v{t2}", f"v_bfe_u32 v{t2}, v{vL16}, 5, 3"]
        for k in range(8):
            L += [f"v_cmp_eq_u32 vcc, {k}, v{t2}", f"v_cndmask_b32 v{D[k >> 2] + (k & 3)}, 0, v{t}, vcc"]
        return PL(L)

    def ro_setup():
        return PL([f"s_and_b32 s{sT}, s{sHead}, 1", f"s_lshl_b32 s{sT}, s{sT}, 10", f"v_add_u32 v{vLo[0]}, s{sT}, v{vL16}",
                   f"s_lshl_b32 s{sT}, s{sWr}, 9", f"s_add_u32 s{sT}, s{sT}, 1024", f"v_xor_b32 v{vLo[1]}, s{sT}, v{vLo[0]}",
                   f"v_and_b32 v{vE0}, 0x200, v{vL16}", f"v_lshl_add_u32 v{vLo[1]}, v{vE0}, 21, v{vLo[1]}"])

    def fld(q):
        j = q & 3
        L = [NT(f"buffer_load_dwordx4 {a(aFL(q), 4)}, v{vL16 if j < 2 else vLo[j - 2]}, s[{SWS}:{SWS+3}], s{sRf} offen offset:{min(j, 2) * 1024}{fmod}", ('fl', f"fl{q}"))]
        if q >= nring:
            r = q - nring
            d = a(aFA(r >> 3), 4)
            L = [WaitTag((f"fl{r}",)), f"{M16} {d}, {v(vLs8 + 4 * ((r >> 2) & 1), 4)}, {a(aFL(r), 4)}, {d if r & 7 else '0'}"] + L
        return PL(L + ([f"s_add_u32 s{sRf}, s{sRf}, {PHS}"] if j == 3 else []))

    def poison(n):
        return PL([f"buffer_store_dwordx4 {v(vL16h, 4)}, v{vStQ}, s[{SWS}:{SWS+3}], s{sPz} offen sc1",
                   f"s_add_u32 s{sPz}, s{sPz}, 65536"] * n)

    def maskchk(u, inloop=False):
        blk = [P(f"v_subrev_u32 v{vRWu[0]}, {32 * u}, v{vRW}"), P(f"v_add_u32 v{vRWu[1]}, 64, v{vRWu[0]}")]
        for r0 in range(0, 16, 4):
            for r in range(r0, r0 + 4):
                blk.append(P(f"v_cmp_gt_i32 s[{sMk[r % 4]}:{sMk[r % 4]+1}], {16 * ((r >> 2) & 1) + (r & 3)}, v{vRWu[r >> 3]}"))
            for r in range(r0, r0 + 4):
                blk.append(P(f"v_cndmask_b32 v{vC + r}, v{vNegM[r >> 3]}, v{vBig}, s[{sMk[r % 4]}:{sMk[r % 4]+1}]"))
        if 'm' in tx:
            blk = []
        if u == 3:
            blk += q_poll()
        if not inloop:
            return sidecall(f"s_cmp_eq_u32 s{sRem}, s{sMaskAt}", blk, 'mask')
        if u == 0:
            blk += flat(code_touch(12, vPl, tid128(vPl)))
        return sidecall(f"s_cmp_eq_u32 s{sRem}, {-5 if 'M' in tx and u != 3 else f's{sMaskAt}'}", blk, 'mask')

    def events(it, u):
        S, cnt = [], {}
        for i2, uu, k, n in EV:
            m = cnt.get(k, 0)
            cnt[k] = m + n
            if (i2, uu) != (it, u):
                continue
            late = 4 * it + u == ps['c'][0]
            S.append(dict(s=lambda: (flat([fstore(a(aFP + 4 * x, 4), sHp, x % 4, tg='fe') for x in range(m, m + n)]), *ew),
                          l=lambda: (flat([fld(q) for q in range(m, m + n)]), 26 if late else ew[0], ew[1]),
                          f=lambda: ([WaitTag(('fs', 'fe')), wsignal(1, vE0)], 33, 62), p=lambda: (w_poll(vFp), 33, 62),
                          u=lambda: (sel_setup([vLs8, vLs8 + 4], vE0, vE1_), 45, 63), r=lambda: (ro_setup(), 45, 63),
                          t=lambda: (code_touch(12, vDum, tid128(vDum)), 33, 63),
                          c=lambda: (spin_check(vFp, 1, w_poll(vFp)), 2, 24))[k]())
        return S

    def mf2(j, i, jj):
        d = v(128 + 16 * i + 4 * jj, 4) if j < 14 else a(16 * i + 4 * jj, 4)
        return P(f"{M16} {d}, {v(fW2(j & 1, jj), 4)}, {v(fC(j & 1, i), 4)}, {'0' if j in (0, 14) else d}")
    B2 = 32 * 28
    FU = [4, 5, 0, 2, 6, 3, 7]
    def facc(n, rb4): return (64 if n & 1 else 32) + 8 * rb4
    def mf3(n, kk, c, rb4):
        d = v(facc(n, rb4) + 4 * c, 4)
        return P(f"{M16} {d}, {v(vF2r + 4 * (2 * kk + c), 4)}, {a(aH + 16 * rb4 + 4 * kk, 4)}, {'0' if kk == 0 else d}")
    G = Gaps([mf2(j, i, jj) for j in range(28) for i in range(8) for jj in range(4)] +
             [mf3(n, kk, c, rb4) for n in range(7) for kk in range(4) for c in range(2) for rb4 in range(4)])

    def gmark(nm, slot):
        if stamp and nm in marks:
            r_ = stp.sb + 6 + 2 * marks.index(nm)
            G.at(slot, [[P(f"{stp.op} s[{r_}:{r_+1}]"), P("s_waitcnt lgkmcnt(0)")]])

    def wd_dma(n):
        return [P(f"s_add_u32 s{sT2}, s{sWd}, {n * 128}")] + dma4(sWb, FU[n] * 16384, vDW, SWD, sT2, 0, (f"D{n}",))
    phA = qk(0, 0)
    for q in range(56):
        n, kk, c, u = q >> 3, (q >> 1) & 3, q & 1, FU[q >> 3]
        for h in range(2):
            G.at(B2 + 4 * (q - 4) + 2 * h, P(f"ds_read_b64_tr_b16 {v(vF2r + 4 * (q & 7) + 2 * h, 2)}, v{vF2a[2 * (u // 4) + c]} "
                                          f"offset:{(u % 4) * 16384 + kk * 4096 + 2048 * h}"))
        if q & 1 == 0:
            G.at(B2 + 4 * q - (2 if q & 7 == 4 else 1), WaitTag(tuple(keys('v', vF2r + 4 * ((q + 1) & 7), 4) + (keys('a', aH, 64) if q == 0 else []))))
    for n in range(7):
        G.at(B2 + 32 * n + 13, WaitTag(() if 'W' in tx else (f"D{n + 1}",) if n < 6 else ("U4", "qx")))
        if 'B' not in tx:
            G.at(B2 + 32 * n + 15, P("s_barrier"))
    gmark('t2', B2 - 1)
    for n in range(1, 7):
        gmark(f'g{n}', B2 + 32 * n - 1)
    for n in range(1, 28):
        gmark(f'q{n}', 32 * n - 1)
    for j in range(28):
        b = 32 * j
        wt = []
        if j < 27:
            wt = [f"X{j + 1}"] + ([f"Y{(j + 1) // 2}"] if j & 1 else [])
        else:
            wt = keys('v', FR, 68) + ['hx', 'D0']
        if j == sig_k:
            wt.append('kv')
        G.at(b, WaitTag(tuple(wt)))
        if 'b' not in t2x or j & 1:
            G.at(b + 1, P("s_barrier"))
        if j == 14:
            gmark('f', b - 1)
        G.at(b + 19, WaitTag(keys('v', fC(0, 6), 4)))
        if j < 27:
            for i in range(7):
                G.at(b + 4 * i + 3, cread2(j + 1, i))
            for n, it in enumerate([cread2(j + 1, 7)] + wreads2(j + 1)):
                G.at(b + 2 + 2 * n + (n > 0), it)
            G.at(b + 31, WaitTag(keys('v', fC(0, 5), 4)))
        dl = []
        if j + 6 <= 27:
            dl += dmaW2(j + 6)
        if 2 <= j and j // 2 + 3 <= 13:
            dl += dmaA2(j // 2 + 3, (2, 3) if j & 1 else (0, 1))
        if 22 <= j <= 26:
            dl += wd_dma([0, 1, 3, 4, 2][j - 22])
        if 'd' in t2x:
            dl = []
        if 'a' in t2x and j >= 8:
            dl = [x for x in dl if not any(tg.startswith('Y') for tg in x.tags)]
        if j == 0:
            G.at(3, P(f"v_mov_b32 v124, v{vTch}"))
        if j in t2s:
            dl = dl + [NT(f"buffer_load_dword v125, v124, s[{STT}:{STT+3}], s{sTo} offen"), P(f"s_add_u32 s{sTo}, s{sTo}, s{sTs}")]
        if wo7 and j == 2:
            dl = dl + [PL([f"s_mul_i32 s{STT+2}, s{sHead}, 229376", f"s_add_u32 s{STT}, s70, s{STT+2}", f"s_addc_u32 s{STT+1}, s71, 0",
                           f"s_and_b32 s{STT+1}, s{STT+1}, 0xffff", f"s_cmp_lt_u32 s{sU}, 8", f"s_cselect_b32 s{STT+2}, 229376, 0",
                           f"s_lshl_b32 s{sTo}, s{sU}, 2", f"s_add_u32 s{sTo}, s{sTo}, s{sW}"]),
                       P(f"s_mul_i32 s{sTo}, s{sTo}, 7168")]
        if wo7 and j == wo7:
            assert wo7 >= 24
            dl = dl + [P(f"v_lshlrev_b32 v26, 3, v{vL16}")]
            for k in range(1):
                dl = dl + [P(f"buffer_load_dword v27, v26, s[{STT}:{STT+3}], s{sTo} offen"), P(f"s_add_u32 s{sTo}, s{sTo}, 8192")]
        G.place(dl, b + 2, b + 30)
    G.place([sidecall(f"s_cmp_eq_u32 s{sW}, 0", signal2(0, vT[0]))], 32 * sig_k + 2, 32 * sig_k + 12)
    comp = [sn for sn in range(32) if STK[sn] > 13]
    assert all(sn >= 16 for sn in comp)
    CK = {sn: k for k, sn in spread(comp, 0, 13)}
    n = 0
    L = []
    for j in range(14):
        for sn in range(32):
            if STK[sn] == j or CK.get(sn) == j:
                L += unit(sn, 100 + 8 * (n % 3), STK[sn] == j)
                n += 1
    drain = L if 'v' not in t2x else []
    for j in range(14, 28):
        G.place(flat([kvstore(sn, a(8 * sn, 4)) for sn in range(32) if STK[sn] == j]), 32 * j + 8, 32 * j + 31)
    t, t2 = vT[4], vT[5]
    L = [f"v_lshrrev_b32 v{t}, 3, v{vLane}", f"v_and_b32 v{t2}, 6, v{t}", f"v_mul_u32_u24 v{t}, 896, v{t}",
         f"v_xor_b32 v{t2}, v{t2}, v{vLane}", f"v_and_b32 v{t2}, 7, v{t2}", f"v_lshl_add_u32 v{t}, v{t2}, 4, v{t}",
         f"s_mul_i32 s{sT}, s{sW}, {32 * 896}", f"v_add_u32 v{vDW[0]}, s{sT}, v{t}"]
    L += [f"v_add_u32 v{vDW[q]}, {q * (8 * 896 - 1024)}, v{vDW[0]}" for q in range(1, 4)]
    G.place(PL(L), 32, 32 * 8)
    L = [f"v_add_u32 v{vL16h}, 0x10000, v{vL16}", f"v_mov_b32 v{vBig}, {NEG_BIG}",
         f"v_and_b32 v{t}, 15, v{vLane}", f"v_lshrrev_b32 v{t2}, 4, v{vLane}", f"v_lshlrev_b32 v{t2}, 2, v{t2}",
         f"v_sub_u32 v{t}, v{t}, v{t2}", f"s_lshl_b32 s{sT}, s{sW}, 4", f"v_add_u32 v{vRW}, s{sT}, v{t}",
         f"s_lshl_b32 s{sT}, s{sWc}, 14", f"s_lshl_b32 s{sT2}, s{sWr}, 17", f"s_add_u32 s{sT}, s{sT}, s{sT2}",
         f"v_add_u32 v{vQr}, s{sT}, v{vL16}"]
    G.place(PL(L), 32 * 8 + 1, 32 * 14 - 1)

    G.place(drain, 4, 32 * 14 - 1)

    def job_init():
        return PL([f"v_mov_b32 v{x}, 0" for x in vNegM + vLs + list(range(vC, vC + 16))])
    L = [f"s_lshl_b32 s{sT}, s{sW}, 11", f"v_add_u32 v{vQw[0]}, s{sT}, v{vL16}", f"v_add_u32 v{vQw[1]}, 0x20000, v{vQw[0]}"]
    L += [f"s_mov_b32 s{sIt}, 0", f"s_add_u32 s{sPz}, s{sSo}, {(7 - npz) * PHS}"]
    G.place(PL(L) + job_init(), 32 * 22, 32 * 27 - 1)
    G.place(poll_kv(vPl), B2 + 32 * (chk_ph - 1) + pk, B2 + 32 * (chk_ph - 1) + pk + 15)
    L = []
    for q in range(64 + 8):
        def reg(x): return 128 + 16 * (x >> 3) + (x & 7)
        def ok(x): return 0 <= x < 64
        if ok(q):
            L += [f"v_mul_f32 v{reg(q) + 8}, v{reg(q)}, v{reg(q) + 8}", f"v_mul_f32 v{reg(q)}, s{sBst}, v{reg(q)}"]
        if ok(q - 1):
            L += [f"v_exp_f32 v{reg(q - 1)}, v{reg(q - 1)}"]
        if ok(q - 7) and (q - 7) & 1:
            x = q - 7
            L += [f"v_cvt_pk_bf16_f32 v{vH + (x >> 1)}, v{reg(x) + 7}, v{reg(x) + 8}"]
        if ok(q - 3):
            L += [f"v_add_f32 v{reg(q - 3)}, 1.0, v{reg(q - 3)}"]
        if ok(q - 6):
            L += [f"v_mul_f32 v{reg(q - 6) + 8}, v{reg(q - 6)}, v{reg(q - 6) + 8}"]
        if ok(q - 4):
            L += [f"v_rcp_f32 v{reg(q - 4)}, v{reg(q - 4)}"]
    fe = PL(L) if 'v' not in t2x else []
    t, t2, c = vT[3], vT[4], vT[5]
    L = [f"v_lshrrev_b32 v{t}, 6, v{vL16}", f"v_bfe_u32 v{t2}, v{t}, 1, 2", f"v_lshlrev_b32 v{t}, 7, v{t}",
         f"v_bfe_u32 v{c}, v{vL16}, 1, 5", f"v_add_u32 v{t}, v{t}, v{c}", f"s_lshl_b32 s{sT}, s{sWc}, 1",
         f"v_xor_b32 v{t2}, s{sT}, v{t2}", f"v_lshl_add_u32 v{vF2a[0]}, v{t2}, 5, v{t}", f"v_xor_b32 v{vF2a[1]}, 32, v{vF2a[0]}",
         f"v_add_u32 v{vF2a[2]}, 0x10000, v{vF2a[0]}", f"v_add_u32 v{vF2a[3]}, 0x10000, v{vF2a[1]}",
         f"s_lshl_b32 s{sT}, s{sW}, 10", f"s_add_u32 s{sT}, s{sT}, {3 * 16384}", f"v_add_u32 v{vHw[0]}, s{sT}, v{vL16}",
         f"v_add_u32 v{vHw[1]}, 0x10000, v{vHw[0]}", f"s_lshl_b32 s{sT}, s{sWr}, 16", f"s_add_u32 s{sT}, s{sT}, {3 * 16384}",
         f"v_add_u32 v{vHr}, s{sT}, v{vL16}",
         f"s_mov_b32 s{SWD}, s100", f"s_and_b32 s{SWD+1}, s101, 0xffff", f"s_mov_b32 s{SWD+2}, {1792 * 896}",
         f"s_mul_i32 s{sWd}, s{sHead}, {128 * 896}",
         f"s_mov_b32 s{SX}, s56", f"s_and_b32 s{SX+1}, s57, 0xffff", f"s_mov_b32 s{SX+2}, {2048 * 896}",
         f"s_mov_b32 s{SO}, s28", f"s_and_b32 s{SO+1}, s29, 0xffff", f"s_mov_b32 s{SO+2}, {2048 * 896}", f"s_mov_b32 s{SO+3}, 0x00020000",
         f"s_add_u32 s{sHp}, s{sHo}, {fdir * PHS}",
         f"s_lshl_b32 s{sT}, s{sHead}, 1", f"s_add_u32 s{sT}, s{sT}, s{sWr}", f"s_lshl_b32 s{sT}, s{sT}, 12",
         f"s_mul_i32 s{sRs}, s{sU}, {US}", f"s_add_u32 s{sRs}, s{sRs}, s{sT}", f"s_lshl_b32 s{sT}, s{sWc}, 17",
         f"s_add_u32 s{sRs}, s{sRs}, s{sT}", f"s_add_u32 s{sRf}, s{sRs}, {F_PF}",
         f"s_add_u32 s{sRs}, s{sRs}, {F_PS}",
         *([f"s_mov_b32 s{sRf}, {OOB}"] if 'f' in tx else []),
         f"s_lshl_b32 s{sFw}, s{sW}, 7", f"s_add_u32 s{sFw}, s{sFw}, s{sFl}", f"s_add_u32 s{sFw}, s{sFw}, 512",
         f"s_bfe_u32 s{sFp}, s{sHead}, 0x20001", f"s_lshl_b32 s{sFp}, s{sFp}, 7", f"s_lshl_b32 s{sT}, s{sU}, 10",
         f"s_add_u32 s{sFp}, s{sFp}, s{sT}", f"s_add_u32 s{sFp}, s{sFp}, {F_FL + 512}"]
    G.place(chains(PL(L)), 32 * 14, 32 * 22 - 1)
    G.place([P(f"ds_read_b128 {a(aH + 16 * rb4 + 4 * kk, 4)}, v{vHr} offset:{rb4 * 4096 + kk * 1024}") for kk in range(4) for rb4 in range(4)],
            32 * 27 + 2, 32 * 27 + 22)
    kvl = {1: [(0, 0)], 2: [(0, 1)], 4: [(1, 0)], 5: [(0, 2)], 6: [(1, 1)]}
    pend = []
    for n in range(7):
        b = B2 + 32 * n
        L = wd_dma(5) + wd_dma(6) if n == 0 else []
        pend += kvl.get(n, [])
        if n == chk_ph and 'k' not in tx:
            L += spin_check(vPl, 1, poll_kv(vPl))
        if n >= chk_ph:
            for x in pend:
                L += kv_dma(*x)
            pend = []
        if n == 6:
            qr = [P(f"ds_read_b128 {a(aQ + 4 * k, 4)}, v{vQr} offset:{k * 1024}") for k in range(16)]
            G.place(flat([[qr[k]] + (phA[k][1] if k < LA else []) for k in range(16)]), b + 16, b + 31)
        G.place(L if 'D' not in tx else [], b + 16, b + (44 if n < 6 else 31))
    G.place([maskchk(0)], B2 + 32 * 3, B2 + 32 * 4)

    def fdrain(n):
        L = []
        for rb4 in range(4):
            s_ = facc(n, rb4)
            d = s_ if n < 6 else vH + 16 + 4 * rb4
            L += [f"v_cvt_pk_bf16_f32 v{d + r}, v{s_ + 2 * r}, v{s_ + 2 * r + 1}" for r in range(4)]
            if n < fdir:
                L += fstore(v(d, 4), sHo, rb4, 1 if n < fdir - 1 else 7 - fdir)
            elif n < 6:
                L += [f"v_accvgpr_write_b32 a{aFP + 16 * (n - fdir) + 4 * rb4 + r}, v{d + r}" for r in range(4)]
        return PL(L)
    for n in range(6 if 'd' not in tx else 0):
        G.place(fdrain(n), B2 + 32 * n + 34, B2 + 32 * n + 63)
    G.place(fe, 32 * 14, 32 * fe_end + 27)

    def find(it):
        return [g for g in range(len(G.items)) if any(x is it for _, _, x in G.items[g])][0] - 1
    for i in range(8):
        src = [x for x in fe if ('v', vH + 4 * i + 3) in x.wr and x.op.startswith('v_cvt')][0]
        lo = max(find(src) + 1, 32 * (24 if i < 4 else 25) + 2 + 4 * (i & 3))
        G.place([P(f"ds_write_b128 v{vHw[i >> 2]}, {v(vH + 4 * i, 4)} offset:{(i & 3) * 4096}", ('hx',))], lo, 32 * 27 - 1, even=False)
    L, chkl = [], []
    for n, (i, c) in enumerate([(i, c) for i in (1, 2, 3, 5, 6, 7, 0, 4) for c in range(2)]):
        e = 160 + 8 * (n % 8)
        blk = [f"v_accvgpr_read_b32 v{e + r}, a{16 * i + 8 * c + r}" for r in range(8)]
        blk += [f"v_pk_mul_f32 {v(e + 2 * r, 2)}, {v(e + 2 * r, 2)}, s[{sSc}:{sSc+1}]" for r in range(0 if xsc else 4)]
        if 'Q' in tx:
            blk = blk[:1]
        blk += [f"v_cvt_pk_bf16_f32 v{e + r}, v{e + 2 * r}, v{e + 2 * r + 1}" for r in range(4)]
        blk = PL(blk) + [P(f"ds_write_b128 v{vQw[(i >> 1) & 1]}, {v(e, 4)} offset:{(i & 1) * 16384 + c * 8192 + (i >> 2) * 1024}", ('qx',))]
        chkl.append((i, blk[0], blk[-1]))
        L += blk
    G.place(L, 32 * 27 + 10, B2 + 32 * 6 + 10)
    for i, x, y in chkl:
        assert find(x) > 32 * 27 + 4 * i + 4 and (i & 3 or find(y) > B2 + 32 * 3 + 15), (i, find(x), find(y))
    if verbose:
        print("T2 over:", G.over(), [sum(max(0, G.cost(g) - 2) for g in range(32 * j + 1, 32 * j + 33)) for j in range(35)])
    p.add(G.out())

    def pv1(tile, db, reg, Pr, first=False, rbs=(0, 1)):
        rd = [P(f"ds_read_b128 {reg}, v{vL16} offset:{[2, 3, 0, 1][tile % 4] * 16384 + db * 1024}")]
        return [P(f"{M16} {v(O(db, rb), 4)}, {reg}, {v(Pr + 4 * rb, 4)}, {'0' if first else v(O(db, rb), 4)}") for rb in rbs], rd

    def pv(tile, first=False, Pr=vP):
        return [pv1(tile, db, a(ring(db), 4), Pr, first) for db in range(16)]

    WU = [8, 4, 6, 2, 0, 8, 4]

    def wphase(i):
        L = []
        for hb in range(2):
            for dk in range(8):
                for c in range(2):
                    n = 16 * hb + 2 * dk + c
                    u = WU[i] + (dk >> 2)
                    rd = [P(f"ds_read_b64_tr_b16 {a(ring(n) + 2 * h, 2)}, v{vWb + 4 * (u // 4) + 2 * hb + c} offset:{(u % 4) * 16384 + (dk & 3) * 4096 + 2048 * h}")
                          for h in range(2)]
                    m = []
                    for rb in range(2):
                        o = v(vS[hb] + 8 * rb + 4 * c, 4)
                        m.append(P(f"{M16} {o}, {a(ring(n), 4)}, {v(OB[dk] + 8 * rb, 4)}, {'0' if dk == 0 else o}"))
                    L.append((m, rd))
        return L

    def wo_dma(i):
        L = []
        for h in range(2):
            L += [P(f"s_add_u32 s{sT2}, s{sWo}, {i * 128 + h * 128 * 896}")]
            L += dma4(sWb, (WU[i] + h) * 16384, vDW, SWO, sT2, 0, (f"U{WU[i] + h}",))
        return L

    def emit(seg, nxt, bar_tags, streams, nm=""):
        main, pos, fx = [], [], []
        for m, r, *x in seg:
            if r:
                pos.append(len(main))
            if x:
                fx.append((len(main), x[0]))
            main += m
        G = Gaps(main)
        for sl, x in fx:
            for k, y in enumerate(x):
                G.at(sl + k, y)
        R = [e[1] for e in seg if e[1]]
        N = len(R)
        R2 = R + ([x[1] for x in nxt[:LA]] if nxt is not None else [])
        bp = None
        if nxt is not None:
            bp = pos[N - LA] - 1
            G.at(bp - 1, WaitTag(tuple(bar_tags)))
            G.at(bp, P("s_barrier"))
        for k in range(LA, len(R2)):
            for x in R2[k]:
                G.at(pos[k - LA], x)
        for k in range(WG, N + 1, WG):
            kk = min(k + WG - 1, len(R2) - 1)
            if kk >= k:
                sl = (pos[k] if k < N else len(main)) - 1
                if sl == bp:
                    sl -= 1
                G.at(sl, WaitTag(tuple(R2[kk][-1].wr)))
        for items, lo, hi in streams:
            if lo == 'sp':
                G.at(hi[0], items[0])
                for q in range(4):
                    G.at(hi[q], items[1 + q])
        for items, lo, hi in streams:
            if lo == 'sp':
                items, lo, hi = items[5:], hi[3] + 1, None
            lo = bp + 1 if lo == 'bar' else lo
            G.place(items, lo, len(main) - 1 if hi is None else hi)
        if verbose:
            print("phase", nm, "over", G.over())
        p.add(G.out())

    def ml_poll(r=vML):
        return [P(f"buffer_load_dwordx4 {v(r, 4)}, v{vL16}, s[{SWS}:{SWS+3}], s{sMl} offen sc1")]

    def xlane(op, R, T):
        return PL([f"v_permlane32_swap_b32 v{R[0]}, v{R[1]}", f"{op} v{R[0]}, v{R[0]}, v{R[1]}",
                   f"v_mov_b32 v{T}, v{R[0]}", f"v_permlane16_swap_b32 v{R[0]}, v{T}", f"{op} v{R[0]}, v{R[0]}, v{T}",
                   f"v_mov_b32 v{R[1]}, v{R[0]}", f"v_permlane32_swap_b32 v{R[0]}, v{R[1]}"])

    def rowmax(S):
        L = [f"v_max3_f32 v{vMx[rb]}, v{S + 8 * rb}, v{S + 8 * rb + 1}, v{S + 8 * rb + 2}" for rb in range(2)]
        for k in (3, 5):
            L += [f"v_max3_f32 v{vMx[rb]}, v{vMx[rb]}, v{S + 8 * rb + k}, v{S + 8 * rb + k + 1}" for rb in range(2)]
        L += [f"v_max_f32 v{vMx[rb]}, v{vMx[rb]}, v{S + 8 * rb + 7}" for rb in range(2)]
        return PL(L) + xlane("v_max_f32", vMx, vMx2[0])

    EO = [0, 1, 2, 3, 8, 9, 10, 11, 4, 5, 6, 7, 12, 13, 14, 15]

    def exps(S, sub=False, inplace=False):
        L, pend, cnt = [], [], [0, 0]
        def flush(n):
            while len(pend) > n:
                r = pend.pop(0)
                rb = r >> 3
                cnt[rb] += 1
                if cnt[rb] == 2:
                    L.append(f"v_add_f32 v{vPs[rb]}, v{vE + r - 1}, v{vE + r}")
                elif cnt[rb] > 2:
                    L.append(f"v_add_f32 v{vPs[rb]}, v{vPs[rb]}, v{vE + r}")
        for r in EO:
            if inplace:
                L.append(f"v_add_f32 v{S + r}, v{S + r}, v{vNegM[r >> 3]}")
            if sub:
                L += [f"v_sub_f32 v{vE + r}, v{S + r}, v{vMx[r >> 3]}", f"v_exp_f32 v{vE + r}, v{vE + r}"]
            else:
                L.append(f"v_exp_f32 v{vE + r}, v{S + r}")
            pend.append(r)
            flush(1)
        flush(0)
        return PL(L)

    def cvts(Pr=vP):
        return PL([f"v_cvt_pk_bf16_f32 v{Pr + r}, v{vE + 2 * r}, v{vE + 2 * r + 1}" for r in range(8)])

    def lsadd():
        return PL([f"v_add_f32 v{vLs[rb]}, v{vLs[rb]}, v{vPs[rb]}" for rb in range(2)])

    shared = {}
    def check(tile, has_qk, recvt=None, it=None, pre=()):
        S, Sn = vS[tile % 2], vS[(tile + 1) % 2]
        blk = list(pre) + rowmax(S)
        for rb in range(2):
            blk += PL([f"v_max_f32 v{vMx[rb]}, 0, v{vMx[rb]}", f"v_exp_f32 v{vMx2[rb]}, -v{vMx[rb]}",
                       f"v_sub_f32 v{vNegM[rb]}, v{vNegM[rb]}, v{vMx[rb]}", f"v_mul_f32 v{vLs[rb]}, v{vLs[rb]}, v{vMx2[rb]}"])
        for dk in range(8):
            blk += PL([f"v_mul_f32 v{OB[dk] + r}, v{OB[dk] + r}, v{vMx2[r >> 3]}" for r in range(16)])
        if has_qk:
            for r in range(16):
                blk += PL([f"v_sub_f32 v{vC + r}, v{vC + r}, v{vMx[r >> 3]}", f"v_sub_f32 v{Sn + r}, v{Sn + r}, v{vMx[r >> 3]}"])
        blk += exps(S, sub=True)
        if recvt is not None:
            blk += cvts(recvt)
        if it is not None:
            if tile not in shared:
                shared[tile] = [Label(p.newlabel('rare'))] + blk + [P("s_waitcnt vmcnt(0)")]
                side.append(shared[tile])
            lr = p.newlabel('rarer')
            shared[tile] += PL([f"s_cmp_eq_u32 s{sIt}, {it}", f"s_cbranch_scc1 {lr}"] if it else [f"s_branch {lr}"])
            return [P(f"v_add_f32 v{vMx[0]}, v{vPs[0]}, v{vPs[1]}"),
                    Br(P(f"v_cmp_nge_f32 vcc, {THRESH}, v{vMx[0]}"), P(f"s_cbranch_vccnz {shared[tile][0].name}"), Label(lr))]
        return [P(f"v_add_f32 v{vMx[0]}, v{vPs[0]}, v{vPs[1]}"),
                sidecall(f"v_cmp_nge_f32 vcc, {THRESH}, v{vMx[0]}", blk, 'rare', 's_cbranch_vccnz')]

    def lin_io(op, reg, so, n, tags=()):
        L = [P(f"{op} {reg}, v{vL16}, s[{SWS}:{SWS+3}], s{so} offen offset:{(n & 3) * 1024}{qsm if 'store' in op else ' sc1'}", tags)]
        if n & 3 == 3:
            L.append(P(f"s_add_u32 s{so}, s{so}, 4096"))
        return L

    mark('att')
    lJob = p.newlabel('job')
    p.label(lJob)
    ph0 = qk(1, 0)
    qst = [lin_io("buffer_store_dwordx4", a(aQ + 4 * n, 4), sQo, n) for n in range(16)]
    emit(phA, ph0, ["U5"], [([maskchk(1)], 6, 20), (kv_dma(0, 3), 'bar', None), (fdrain(6), 2, 31), (flat(qst[:10]), 4, 31)], "A")

    mark('jA')
    def full(t, first=False):
        return pv(t - 1, first) + qk(t + 1, 16)
    ph1 = full(1, True)
    emit(ph0, ph1, ["U2", "U6"],
         [(flat(qst[10:]) + [P(f"s_mov_b32 s{sQo}, {OOB}")] + kv_dma(1, 2) + kv_dma(0, 4), 'bar', None),
          (rowmax(vS[0]) + PL([f"v_sub_f32 v{vNegM[rb]}, 0, v{vMx[rb]}" for rb in range(2)]) + exps(vS[0], sub=True) + lsadd() + cvts(), 1, 30)], "0")

    mark('j0')
    def hstore(i):
        return fstore(v(vH + 4 * i, 4), sHo, i & 3, int(i < 7))

    def std(t, first=False, pre=(), extra=(), it=None):
        sh = 0
        S = [([maskchk((t + 1) % 4, t >= 3)], 26 + sh, 31 + sh), (list(pre) + kv_dma(1, t + 2), vwin[0] + 3 * sh, vwin[1] + sh), (kv_dma(0, t + 4), 'bar', None)]
        if dsp and t >= 3:
            S[1:] = [(kv_dma(1, t + 2), 'sp', dsp[0]), (kv_dma(0, t + 4), 'sp', dsp[1])]
        if first:
            S.append((PL([f"v_mov_b32 v{vC + r}, v{vNegM[r >> 3]}" for r in range(16)]), 0, 25))
        ck = check(t, True, it=it)
        S += list(extra)
        S.insert(1, (exps(vS[t % 2], inplace=first) + ck[:1], 1, chk - 1 + sh))
        S.append((ck[1:], chk, chk + 4))
        S.append((lsadd() + cvts(), chk + 4, 62))
        if it:
            S += events(it, (t + 1) % 4)
        return S

    def btags(t):
        return [f"U{[2, 3, 0, 1][(t - 1) % 4]}", f"U{4 + (t + 1) % 4}"]

    emit(ph1, full(2), btags(2), std(1, first=True, extra=[(flat([hstore(i) for i in range(4, 5)]), 32, 63)]), "1")
    mark('j1')
    sig7 = sidecall(f"s_cmp_eq_u32 s{sW}, 0", signal2(128, vRWu[0]))
    emit(full(2), full(3), btags(3), std(2, pre=wo_dma(0), extra=[([sig7], 'bar', None), (flat([hstore(i) for i in range(5, 8)]), 20, 63)]), "2")
    mark('j2')
    lTail, lLoop = p.newlabel('tail'), p.newlabel('loop')
    p(f"s_cmp_eq_u32 s{sRem}, 0")
    p(f"s_cbranch_scc1 {lTail}")
    lC = [lLoop] + [p.newlabel('it') for _ in range(6)]
    lD = p.newlabel('disp')
    p(f"s_cmp_lg_u32 s{sIt}, 0")
    p(f"s_cbranch_scc1 {lD}")
    side.append(PL([Label(lD)] + [x for k in range(1, 5) for x in (f"s_cmp_eq_u32 s{sIt}, {k}", f"s_cbranch_scc1 {lC[k + 1]}")] + [f"s_branch {lC[6]}"]))
    for it in (1, 2, 3, 4, 5, 6, 0):
        if it == 0:
            p.raw(".p2align 6")
        p.label(lC[it])
        for t in (3, 4, 5, 6):
            ex = [(PL([f"s_sub_u32 s{sRem}, s{sRem}, 1", f"s_add_u32 s{sIt}, s{sIt}, 1"]), 0, 20)] if t == 3 else []
            emit(full(t), full(t + 1), btags(t + 1), ex + std(t, it=it), f"{it}.{t}")
        if it:
            p(f"s_cmp_eq_u32 s{sRem}, 0")
            p(f"s_cbranch_scc1 {lTail}")
    p(f"s_cmp_lg_u32 s{sRem}, 0")
    p(f"s_cbranch_scc1 {lLoop}")
    p.label(lTail)

    def lsum(): return xlane("v_add_f32", vLs, vMx2[0])

    def ocvt(dk, rb):
        b = OB[dk] + 8 * rb
        return PL([f"v_cvt_pk_bf16_f32 v{b + r}, v{b + 2 * r}, v{b + 2 * r + 1}" for r in range(4)])

    vP2 = vS[0]

    def phaseD(streams, nm):
        ck = check(3, False, vP2)
        emit(pv(2), pv(3, Pr=vP2), ["U1"], streams + [(exps(vS[1]) + cvts(vP2) + ck[:1] + [ck[1].cond], 1, 30)], nm)
        p.add([ck[1].br, ck[1].lab])

    def w_setup():
        t, t2, c = vML + 1, vML + 2, vML + 3
        L = [f"v_lshrrev_b32 v{t}, 6, v{vL16}", f"v_bfe_u32 v{t2}, v{t}, 1, 2", f"v_lshlrev_b32 v{t}, 7, v{t}",
             f"v_bfe_u32 v{c}, v{vL16}, 1, 5", f"v_add_u32 v{t}, v{t}, v{c}"]
        for nb in range(4):
            L += [f"v_xor_b32 v{c}, {nb}, v{t2}", f"v_lshl_add_u32 v{vWb + nb}, v{c}, 5, v{t}"]
        L += [f"v_add_u32 v{vWb + 8 + nb}, 0x20000, v{vWb + nb}" for nb in range(4)]
        L += [f"v_add_u32 v{vWb + 4 + nb}, 0x10000, v{vWb + nb}" for nb in range(4)]
        return PL(L)

    lFin, lPart, lM, lW = (p.newlabel(x) for x in ('fin', 'part', 'merge', 'wo'))
    p(f"s_cmp_lg_u32 s{sKind}, {HOLD}")
    p(f"s_cbranch_scc1 {lFin}")
    ql = PL([f"s_xor_b32 s{sOut}, s{sF}, 15", f"s_lshl_b32 s{sOut}, s{sOut}, 2", f"s_add_u32 s{sOut}, s{sOut}, s{sW}",
             f"s_lshl_b32 s{sOut}, s{sOut}, 14", f"s_add_u32 s{sOut}, s{sOut}, {F_Q}"])
    mark('h0')
    p.add(ql + lin(spin_check(vPl, 1, q_poll())))
    qld = [lin_io("buffer_load_dwordx4", a(aQ + 4 * n, 4), sOut, n) for n in range(16)]
    phaseD([(flat(qld[:qd]), 0, 20 if qd == 16 else 31)] + ([(kv_dma(1, 5), 'bar', None)] if qd == 16 else []), "Dh")
    mark('h1')
    def hold(dk):
        L = []
        for rb in range(2):
            L += ocvt(dk, rb) + PL([f"v_accvgpr_write_b32 a{aPO + 8 * dk + 4 * rb + r}, v{OB[dk] + 8 * rb + r}" for r in range(4)])
        return L
    S = [(lsadd() + lsum() + PL([f"v_rcp_f32 v{vInv[rb]}, v{vLs[rb]}" for rb in range(2)]) + job_init(), 0, 12),
         (PL([f"s_mov_b32 s{sKind}, {PART}", f"s_mov_b32 s{sMaskAt}, -1", f"s_sub_u32 s{sRem}, 6, s{sU}"]), 0, 12)]
    if qd < 16:
        S.insert(0, (flat(qld[qd:]) + kv_dma(1, 5), 0, 31))
    S += [(hold(dk), 4 * dk + 6, min(4 * dk + 11, 31)) for dk in range(7)]
    emit(pv(3, Pr=vP2), phA, ["U4"], S, "Eh")
    p.add(hold(7))
    mark('h2')
    p(f"s_branch {lJob}")
    p.label(lFin)
    mark('fin')
    W = [wphase(i) for i in range(7)]
    if fuse:
        p(f"s_cmp_eq_u32 s{sKind}, {PART}")
        p(f"s_cbranch_scc1 {lPart}")
    phaseD([(wo_dma(1), 0, 30), (w_setup() + ml_poll(), 0, 24)], "D")
    mark('d')
    p(f"s_cmp_eq_u32 s{sKind}, {MERGE}")
    p(f"s_cbranch_scc1 {lM}")
    if not fuse:
        p(f"s_cmp_eq_u32 s{sKind}, {PART}")
        p(f"s_cbranch_scc1 {lPart}")
    S = [(wo_dma(2), 0, 30), (lsadd() + lsum() + PL([f"v_rcp_f32 v{vInv[rb]}, v{vLs[rb]}" for rb in range(2)]), 0, 8)]
    S += [(ocvt(dk, 0) + ocvt(dk, 1), 4 * dk + 6, min(4 * dk + 11, 31)) for dk in range(6)]
    emit(pv(3, Pr=vP2), W[0], ["U8", "U9"], S, "Ef")
    p(f"s_branch {lW}")
    p.label(lPart)
    def postore(dk):
        L = []
        for rb in range(2):
            b = OB[dk] + 8 * rb
            L += ocvt(dk, rb) + lin_io("buffer_store_dwordx4", v(b, 4), sPo, 2 * dk + rb, ('po',))
        return L
    def unhold(dk):
        return PL([f"v_accvgpr_read_b32 v{OB[dk] + 8 * rb + r}, a{aPO + 8 * dk + 4 * rb + r}" for rb in range(2) for r in range(4)])
    S = [(lsadd() + lsum() + PL([f"v_mov_b32 v{vML + 2 * rb + k}, v{(vNegM, vLs)[k][rb]}" for rb in range(2) for k in range(2)]), 0, 8)]
    if fuse:
        n = fuse
        od = [(2, db) for db in range(n)] + [(3, db) for db in range(n)] + [(tl, db) for db in range(n, 16) for tl in (2, 3)]
        seg = [list(pv1(tl, db, a(ring(k), 4), vP if tl == 2 else vP2)) for k, (tl, db) in enumerate(od)]
        seg[n - LA - 1].append([WaitTag(("U1",)), P("s_barrier")])
        pre = []
        for db in range(n, 16):
            m, rd = pv1(2, db, v(vC + 4 * (db & 3), 4), vP)
            pre += rd + m
        pre += PL([f"v_mov_b32 v{vP + r}, 0" for r in range(8)])
        ck = check(3, False, vP2, pre=pre)
        av = [2 * od.index((3, 2 * dk + 1)) + 4 for dk in range(8)]
        lo = [max(av[dk], fp0 + fps * dk) for dk in range(7)]
        seg[n - 1].append([[], [ck[1].br, ck[1].lab]])
        S = [(exps(vS[1]) + cvts(vP2) + [ck[0], ck[1].cond], 0, 2 * n - 3), (wo_dma(1)[:fw], 0, 24 if fw > 6 else 16)] + \
            [(postore(dk), lo[dk], min(lo[dk] + fps - 1, 63)) for dk in range(7)] + [(w_setup(), 2 * n, 45), (S[0][0], 48, 63)]
        emit(seg, W[0], ["U8", "U9"], S, "Fp")
    else:
        S += [(postore(dk), 4 * dk + 6, min(4 * dk + 9, 31)) for dk in range(7)]
        emit(pv(3, Pr=vP2), W[0], ["U8", "U9"], S, "Ep")
    p.add(postore(7))
    mark('ep')
    wd = (wo_dma(1)[fw:] if fuse else []) + wo_dma(2)
    mls = [WaitTag(('po',)), P(f"buffer_store_dwordx4 {v(vML, 4)}, v{vL16}, s[{SWS}:{SWS+3}], s{sMl} offen sc1")]
    if not mle:
        p.add(wd)
    for dk in range(8):
        p.add(unhold(dk))
    if mle == 1:
        p.add(mls + wd)
    lW1 = p.newlabel('wo1')

    def sout(hb, tags=()):
        S = vS[hb]
        tb = vE if hb else vC
        L = []
        for rb in range(2):
            L += [f"v_mul_f32 v{S + 8 * rb + r}, v{S + 8 * rb + r}, v{vInv[rb]}" for r in range(8)]
            L += [f"v_cvt_pk_bf16_f32 v{tb + 4 * rb + r}, v{S + 8 * rb + 2 * r}, v{S + 8 * rb + 2 * r + 1}" for r in range(4)]
            L.append(P(f"buffer_store_dwordx4 {v(tb + 4 * rb, 4)}, v{vStQ}, s[{SWS}:{SWS+3}], s{sSo} offen{smod}", tags))
            L.append(f"s_add_u32 s{sSo}, s{sSo}, 65536")
        return PL(L)

    def wemit(i, extra, tail=(), pre=()):
        S = list(extra)
        if i <= 3:
            S.append((list(pre) + wo_dma(i + 3), posig if pre else 0, 62))
        if i > 0:
            S.append((sout(1, (f"s{i - 1}",)), 3, 31))
        S.append((sout(0), 35 + (len(tail[0][0]) if tail else 0), None))
        emit(W[i][:2] + list(tail[:1]) + W[i][2:20] + list(tail[1:]) + W[i][20:], W[i + 1] if i < 6 else None, [f"U{WU[i + 1]}", f"U{WU[i + 1] + 1}"] + ([f"s{6 - two}"] if two and i == fl[0] else []) if i < 6 else [], S, f"W{i}")
    wemit(0, [(mls, posig, 63)] if mle == 0 else [], pre=mls + wd if mle == 2 else [])
    mark('pw0')
    p(f"s_branch {lW1}")
    p.label(lM)
    idm = [([P(f"{M16} {v(O(db, rb), 4)}, {v(vI + 2 - 2 * (db & 1), 4)}, {a(aPO + 8 * (db >> 1) + 4 * rb, 4)}, {v(O(db, rb), 4)}")
             for rb in range(2)], []) for db in range(16)]
    vF = vMx
    L0, L = lsadd() + lsum(), []
    for rb in range(2):
        L += PL([f"v_sub_f32 v{vF[rb]}, v{vML + 2 * rb}, v{vNegM[rb]}", f"v_min_f32 v{vF[rb]}, {f2u(60.0)}, v{vF[rb]}",
                 f"v_exp_f32 v{vF[rb]}, v{vF[rb]}"])
    L2 = []
    for rb in range(2):
        L2 += PL([f"v_fma_f32 v{vLs[rb]}, v{vLs[rb]}, v{vF[rb]}, v{vML + 2 * rb + 1}", f"v_rcp_f32 v{vInv[rb]}, v{vLs[rb]}"])
    t, lo, hi = vRWu[0], vPs[0], vPs[1]
    L3 = [f"s_lshl_b32 s{sT}, s{sW}, 4", f"v_subrev_u32 v{t}, s{sT}, v{vRW}", f"v_mov_b32 v{lo}, 0x3f80", f"v_mov_b32 v{hi}, 0x3f800000"]
    L3 += [f"v_mov_b32 v{vI + k}, 0" for k in (0, 1, 4, 5)]
    for k in range(2):
        L3 += [f"v_cmp_eq_u32 vcc, {2 * k}, v{t}", f"v_cndmask_b32 v{vI + 2 + k}, 0, v{lo}, vcc",
               f"v_cmp_eq_u32 vcc, {2 * k + 1}, v{t}", f"v_cndmask_b32 v{vI + 2 + k}, v{vI + 2 + k}, v{hi}, vcc"]
    if emw:
        emit(pv(3, Pr=vP2), W[0], ["U8", "U9"], [(wo_dma(2), 0, 24), (ml_poll(), mlp, 31), (L0 + PL(L3), 0, 31)], "Em1")
    ok, spin = p.newlabel('mok'), p.newlabel('mspin')
    if fsp & 1:
        def mt(r): return [f"v_min_u32 v{vMx[0]}, v{r + 1}, v{r + 3}", f"v_cmp_eq_u32 vcc, 0, v{vMx[0]}"]
        R = [vC, vC + 4, vC + 8]
        p.add(ml_poll(R[0]) + mt(vML) + [f"s_cbranch_vccz {ok}", f"s_sleep {fsl}"] + ml_poll(R[1]) + [f"s_sleep {fsl}"] + ml_poll(R[2]))
        stag_spin(R, ml_poll, lambda r: mt(r) + [f"v_mov_b32 v{vML + k}, v{r + k}" for k in range(4)])
    else:
        p(f"s_mov_b32 s{sT2}, 0")
        p.label(spin)
        p(f"v_min_u32 v{vMx[0]}, v{vML + 1}, v{vML + 3}")
        p(f"v_cmp_eq_u32 vcc, 0, v{vMx[0]}")
        p(f"s_cbranch_vccz {ok}" if 'g' not in tx else f"s_branch {ok}")
        p(f"s_add_u32 s{sT2}, s{sT2}, 1")
        p(f"s_cmp_gt_u32 s{sT2}, 0x40000")
        p(f"s_cbranch_scc1 {ok}")
        p("s_sleep 2")
        p.add(ml_poll())
        p(f"s_branch {spin}")
    p.label(ok)
    mark('mok')
    pol = [lin_io("buffer_load_dwordx4", a(aPO + 4 * n, 4), sPo, n) for n in range(16)]
    p.add(flat(pol[:4] if emw == 2 else pol))
    if emw:
        p.add(L)
        for dk in range(8):
            p.add([f"v_mul_f32 v{OB[dk] + r}, v{OB[dk] + r}, v{vF[r >> 3]}" for r in range(16)] + (flat(pol[4 + 2 * dk:6 + 2 * dk]) if emw == 2 else []))
        p.add(L2)
        mark('wo')
        seg = idm[:4]
        for k in range(8):
            seg += W[0][2 * k:2 * k + 2] + idm[2 * k + 4:2 * k + 6]
        seg += W[0][16:]
        S = [(ocvt(dk, 0) + ocvt(dk, 1), (5, 9)[dk] if dk < 2 else 8 * dk + 2, min(8 * dk + 7, 59)) for dk in range(8)]
        S += [(wo_dma(3), 8, 94), (sout(0), 67, None)]
        emit(seg, W[1], [f"U{WU[1]}", f"U{WU[1] + 1}"], S, "EW")
        p(f"s_branch {lW1}")
    else:
        S = [(wo_dma(2), 0, 60), (L0 + L + PL(L3), 0, 7)]
        for dk in range(8):
            S.append((PL([f"v_mul_f32 v{OB[dk] + r}, v{OB[dk] + r}, v{vF[r >> 3]}" for r in range(16)]), max(8 + 6 * dk, 4 * dk + 6), min(13 + 6 * dk, 30 + 4 * dk)))
        S.append((L2, 50, 63))
        S += [(ocvt(dk, 0) + ocvt(dk, 1), 38 + 4 * dk, min(43 + 4 * dk, 63)) for dk in range(6)]
        emit(pv(3, Pr=vP2) + idm, W[0], ["U8", "U9"], S, "Em")
    p.label(lW)
    mark('wo')
    wemit(0, [(ocvt(6, 0) + ocvt(6, 1) + ocvt(7, 0) + ocvt(7, 1), 3, 20)])
    p.label(lW1)
    def ch(dk, rb): return OB[dk] + 8 * rb + 4
    vSa, vSel = [ch(0, 0), ch(0, 1), ch(1, 0), ch(1, 1)], [24, 28]
    vX, vXo = [156, 158, 128, 130], 135
    sXo = sKend
    t, t2 = vRWu
    L = [f"s_lshl_b32 s{sXo}, s{sHead}, 1", f"s_add_u32 s{sXo}, s{sXo}, s{sWr}",
         f"s_lshl_b32 s{sT}, s{sU}, 5", f"s_add_u32 s{sXo}, s{sXo}, s{sT}", f"s_mul_i32 s{sXo}, s{sXo}, {4 * 896}",
         f"s_lshl_b32 s{sT}, s{sWc}, 6", f"s_add_u32 s{sXo}, s{sXo}, s{sT}",
         f"v_bfe_u32 v{t}, v{vL16}, 6, 2", f"v_mul_u32_u24 v{vXo}, 896, v{t}",
         f"v_bfe_u32 v{t}, v{vL16}, 9, 1", f"v_lshl_add_u32 v{vXo}, v{t}, 7, v{vXo}",
         f"v_bfe_u32 v{t}, v{vL16}, 8, 1", f"v_lshl_add_u32 v{vXo}, v{t}, 5, v{vXo}",
         f"v_bfe_u32 v{t}, v{vL16}, 4, 2", f"v_lshl_add_u32 v{vXo}, v{t}, 3, v{vXo}"]
    if 's' in tx:
        L.append(f"s_mov_b32 s{sRs}, {OOB}")
    def xio(op, reg, sr, m):
        x = P(f"{op} {v(reg, 2)}, v{vXo}, s[{sr}:{sr+3}], s{sXo} offen offset:{256 * m}{omod if 'store' in op else ''}")
        return [x] if m < 3 else [[P("s_mov_b32 exec_hi, 0"), x, P("s_mov_b32 exec_hi, -1")]]
    rs2 = PL(L) + [NT(f"buffer_load_dword v{vX[m]}, v{vXo}, s[{SO}:{SO+3}], s{sXo} offen offset:{256 * m}") for m in range(otch)] + \
        [y for m in range(4) for y in xio("buffer_load_dwordx2", vX[m], SX, m)]
    def sreg(i, j): return 160 + 16 * i + 4 * j if i < 6 else 140 + 4 * j

    def rload(i, j):
        return P(f"buffer_load_dwordx4 {v(sreg(i, j), 4)}, v{vL16}, s[{SWS}:{SWS+3}], s{sT} offen offset:{j * 1024}{rmod}")

    def rbase(i, b=sRs): return P(f"s_add_u32 s{sT}, s{b}, {i * PHS}")

    def rmf(I):
        return [P(f"{M16} {v(vSa[i >> 1], 4)}, {v(vSel[i & 1], 4)}, {v(sreg(i, j), 4)}, {'0' if j == 0 and i & 1 == 0 else v(vSa[i >> 1], 4)}")
                for i in I for j in range(4)]

    def settle(I):
        top, redo, fb, ok = (p.newlabel(x) for x in ('st', 'sr', 'sf', 'so'))
        R = [sreg(i, j) + 2 for i in I for j in range(4)]
        p(f"s_mov_b32 s{sKnx}, 0")
        p.label(top)
        for n, r in enumerate(R):
            p(f"v_cmp_eq_u32 {'vcc' if n == 0 else f's[{sMk[n % 4]}:{sMk[n % 4]+1}]'}, v{vBig}, v{r}")
            if n >= 2:
                p(f"s_or_b64 vcc, vcc, s[{sMk[(n - 1) % 4]}:{sMk[(n - 1) % 4]+1}]")
        p(f"s_or_b64 vcc, vcc, s[{sMk[(len(R) - 1) % 4]}:{sMk[(len(R) - 1) % 4]+1}]")
        p(f"s_cbranch_scc1 {redo}")
        p.label(ok)
        B = [Label(redo), f"s_add_u32 s{sKnx}, s{sKnx}, 1", f"s_cmp_gt_u32 s{sKnx}, 400", f"s_cbranch_scc1 {fb}"] + ([f"s_sleep {rsleep}"] if rsleep else [])
        for i in I:
            B.append(rbase(i))
            for j in range(4):
                sk = p.newlabel('sk')
                B += [f"v_cmp_eq_u32 vcc, v{vBig}, v{sreg(i, j) + 2}", f"s_cbranch_vccz {sk}", "s_mov_b64 exec, vcc", rload(i, j),
                      "s_mov_b64 exec, -1", Label(sk)]
        B += ["s_waitcnt vmcnt(0)", f"s_branch {top}", Label(fb)] + w_poll(vPl) + lin(spin_check(vPl, 4, w_poll(vPl)))
        for i in I:
            B += [rbase(i)] + [rload(i, j) for j in range(4)]
        side.append(PL(B + ["s_waitcnt vmcnt(0)", f"s_branch {ok}"]))
    EX = {1: [], 2: [], 3: [], 4: [(rs2, 0, 63)], 5: [(sel_setup(vSel, t, t2), 0, 63)], 6: []}
    vOwn, vQ2 = 136, 137
    if two:
        EX[fl[0]].insert(0, ([wsignal(3, vMx[0])], 'bar', 63))
        EX[6].append((PL([f"v_bfe_u32 v{vOwn}, v{vL16}, 4, 4", f"v_cmp_eq_u32 vcc, s{sHead}, v{vOwn}",
                          f"v_cndmask_b32 v{vOwn}, 0, 7, vcc"]), 0, 40))
        EX[6].append((w_poll(vPl), pl6, 63))
    for i in range(1, 7):
        wemit(i, EX[i])
    p.add(sout(1, ("s6",)))
    mark('end')
    vG, vXf, F = 64, 112, 32
    F = [OB[k >> 3] + 8 * ((k >> 2) & 1) + (k & 3) for k in range(16)]

    def sl(I, b=sRs): return [x for i in I for x in [rbase(i, b)] + [rload(i, j) for j in range(4)]]

    def fwork(mid=()):
        for m in range(4):
            for k in range(2):
                p.add([f"v_lshlrev_b32 v{vXf + 4 * m + 2 * k}, 16, v{vX[m] + k}", f"v_and_b32 v{vXf + 4 * m + 2 * k + 1}, 0xffff0000, v{vX[m] + k}"])
        p.wait_tags('fl')
        p.add([f"v_accvgpr_read_b32 v{F[k]}, a{aFA(0) + k}" for k in range(4 * ((27 - nring) >> 3) + 4)])
        p.add(list(mid))
        for q in range(28 - nring, 28):
            d = v(F[4 * (q >> 3)], 4)
            p(f"{M16} {d}, {v(vSel[(q >> 2) & 1], 4)}, {a(aFL(q), 4)}, {d if q & 7 else '0'}")

    def silu():
        p.add([f"v_mul_f32 v{vG + k}, {f2u(-LOG2E)}, v{F[k]}" for k in range(16)])
        p.add([f"v_exp_f32 v{vG + k}, v{vG + k}" for k in range(16)])
        p.add([f"v_add_f32 v{vG + k}, 1.0, v{vG + k}" for k in range(16)])
        p.add([f"v_rcp_f32 v{vG + k}, v{vG + k}" for k in range(16)])
        p.add([f"v_mul_f32 v{vG + k}, v{vG + k}, v{F[k]}" for k in range(16)])
    if not two:
        p.wait_tags("s6")
        p.add(wsignal(7, t))
        p.add(w_poll(vPl))
        if fsp & 2:
            fwork(w_poll(vOwn))
            p.add(w_poll(vQ2))
            stag_spin([vPl, vOwn, vQ2], w_poll, lambda r: [f"v_and_b32 v{r}, 4, v{r}", f"v_cmp_ne_u32 vcc, 4, v{r}"])
        else:
            fwork()
            p.add(lin(spin_check(vPl, 4 if 'z' not in tx else 0, w_poll(vPl))))
        mark('e0')
        p.add(sl(range(7)))
        silu()
    else:
        sNa = sKnx
        la, lb, lc, ld = (p.newlabel(x) for x in ('ta', 'tb', 'tc', 'td'))
        rp = w_poll(vPl) + [P(f"v_or_b32 v{vPl}, v{vPl}, v{vOwn}")]
        p.add([f"v_or_b32 v{vPl}, v{vPl}, v{vOwn}", f"v_and_b32 v{t}, 2, v{vPl}", f"v_cmp_ne_u32 vcc, 2, v{t}",
               f"s_cmp_eq_u64 vcc, 0", f"s_cselect_b32 s{sNa}, s{sRs}, {OOB}"] + sl(range(7 - two), sNa))
        mark('ea')
        fwork()
        silu()
        p.wait_tags("s6")
        p.add(wsignal(7, t))
        p.add(w_poll(vQ2))
        p("s_barrier")
        p.add([f"v_and_b32 v{t}, 4, v{vPl}", f"v_cmp_ne_u32 vcc, 4, v{t}", f"s_cbranch_vccz {lc}",
               f"v_or_b32 v{vPl}, v{vQ2}, v{vOwn}", f"s_cmp_eq_u32 s{sNa}, s{sRs}", f"s_cbranch_scc1 {ld}",
               f"v_mov_b32 v{vQ2}, v{vPl}"] + lin(spin_check(vQ2, 2, rp + [P(f"v_mov_b32 v{vQ2}, v{vPl}")])) + sl(range(7 - two)) + [Label(ld)])
        p.add(lin(spin_check(vPl, 4, rp)))
        p.label(lc)
        mark('e0')
        p.add(sl(range(7 - two, 7)))

    def fin(m):
        p.add([f"v_fmac_f32 v{vXf + 4 * m + q}, v{vSa[m] + q}, v{vG + 4 * m + q}" for q in range(4)])
        p.add([f"v_cvt_pk_bf16_f32 v{vX[m] + k}, v{vXf + 4 * m + 2 * k}, v{vXf + 4 * m + 2 * k + 1}" for k in range(2)])
        p.add(xio("buffer_store_dwordx2", vX[m], SO, m))
    ne = 7 - npz
    p.add(rmf(range(ne)))
    for m in range(ne // 2 if npz else 4):
        fin(m)
    if npz:
        mark('e2')
        settle(range(ne, 7))
        mark('ok')
        p.add(rmf(range(ne, 7)))
        for m in range(ne // 2, 4):
            fin(m)
    stp.finish()
    p.label(done)
    p("s_endpgm")
    for b in side:
        p.add(b)
    return p
```

```python
from build9 import *
B = dict(verbose=False)
for n, kw in zip('bcdef', (dict(psleep=1), dict(sig_k=25, st1=23), dict(lnh=60), dict(st0=0, c2=0, wdl=56, tpos=1, tdel=(12, 7, 12, 14)), dict(sig_k=27, st1=25, st0=0))):
    try:
        build(f"e_{n}.s", kw=dict(**kw, **B))
    except Exception as e:
        print(n, 'FAIL', repr(e)[:100])
```
